```python
import torch

def _softmax(x, axis=-1):
    return torch.softmax(x, dim=axis)
def _gelu(x):
    return torch.nn.functional.gelu(x, approximate="tanh")
def _silu(x):
    return torch.nn.functional.silu(x)
def _sigmoid(x):
    return torch.sigmoid(x)
def _layernorm(x, axis=-1, eps=1e-5):
    m = x.mean(dim=axis, keepdim=True)
    v = x.var(dim=axis, keepdim=True, unbiased=False)
    return (x - m) / torch.sqrt(v + eps)
def _scatter_add(tgt, idx, src, axis=0):
    return tgt.clone().index_add_(axis, idx, src)
def _segment_sum(src, seg, n):
    out = torch.zeros((n,) + src.shape[1:], dtype=src.dtype)
    return out.index_add_(0, seg, src)
def _pad(x, pw):
    flat = tuple(v for pair in reversed(pw) for v in pair)
    return torch.nn.functional.pad(x, flat)

kernel_name = 'gated_mix__ssm_conv_s5__ssm_conv_s5__prompt'

def setup_inputs():

    _w = (lambda a: (lambda t: t.to(torch.bfloat16) if t.is_floating_point() else t)(torch.as_tensor(a)))
    def _A_setup():
        B, S, D = 1, 2048, 640
        P = D
        Lambda_re = -0.5 * (lambda _x: torch.exp(torch.as_tensor(_x)))((lambda *s: torch.randn(*s, dtype=torch.bfloat16) * 0.2)(P))
        Lambda_im = (lambda *s: torch.randn(*s, dtype=torch.bfloat16) * 0.4)(P) * 1.0
        B_re = (lambda *s: torch.randn(*s, dtype=torch.bfloat16) * 0.2)(P, D) * (D ** -0.5)
        B_im = (lambda *s: torch.randn(*s, dtype=torch.bfloat16) * 0.2)(P, D) * (D ** -0.5)
        C_re = (lambda *s: torch.randn(*s, dtype=torch.bfloat16) * 0.2)(D, P) * (P ** -0.5)
        C_im = (lambda *s: torch.randn(*s, dtype=torch.bfloat16) * 0.2)(D, P) * (P ** -0.5)
        log_dt = (lambda *s: torch.randn(*s, dtype=torch.bfloat16) * 0.2)(P) * 0.3 - 2.0
        Dskip = (lambda *s: torch.randn(*s, dtype=torch.bfloat16) * 0.05)(D)
        return {
            "x": _w((lambda *s: torch.randn(*s, dtype=torch.bfloat16) * 0.05)(B, S, D)),
            "Lambda_re": _w(Lambda_re),
            "Lambda_im": _w(Lambda_im),
            "B_re": _w(B_re),
            "B_im": _w(B_im),
            "C_re": _w(C_re),
            "C_im": _w(C_im),
            "log_dt": _w(log_dt),
            "Dskip": _w(Dskip),
        }
    _A_in = _A_setup()

    def _B_setup():
        B, S, D = 1, 2048, 640
        P = D
        Lambda_re = -0.5 * (lambda _x: torch.exp(torch.as_tensor(_x)))((lambda *s: torch.randn(*s, dtype=torch.bfloat16) * 0.2)(P))
        Lambda_im = (lambda *s: torch.randn(*s, dtype=torch.bfloat16) * 0.4)(P) * 1.0
        B_re = (lambda *s: torch.randn(*s, dtype=torch.bfloat16) * 0.2)(P, D) * (D ** -0.5)
        B_im = (lambda *s: torch.randn(*s, dtype=torch.bfloat16) * 0.2)(P, D) * (D ** -0.5)
        C_re = (lambda *s: torch.randn(*s, dtype=torch.bfloat16) * 0.2)(D, P) * (P ** -0.5)
        C_im = (lambda *s: torch.randn(*s, dtype=torch.bfloat16) * 0.2)(D, P) * (P ** -0.5)
        log_dt = (lambda *s: torch.randn(*s, dtype=torch.bfloat16) * 0.2)(P) * 0.3 - 2.0
        Dskip = (lambda *s: torch.randn(*s, dtype=torch.bfloat16) * 0.05)(D)
        return {
            "x": _w((lambda *s: torch.randn(*s, dtype=torch.bfloat16) * 0.05)(B, S, D)),
            "Lambda_re": _w(Lambda_re),
            "Lambda_im": _w(Lambda_im),
            "B_re": _w(B_re),
            "B_im": _w(B_im),
            "C_re": _w(C_re),
            "C_im": _w(C_im),
            "log_dt": _w(log_dt),
            "Dskip": _w(Dskip),
        }
    _B_in = _B_setup()

    return {
        "A_x": _A_in["x"],
        "A_Lambda_re": _A_in["Lambda_re"],
        "A_Lambda_im": _A_in["Lambda_im"],
        "A_B_re": _A_in["B_re"],
        "A_B_im": _A_in["B_im"],
        "A_C_re": _A_in["C_re"],
        "A_C_im": _A_in["C_im"],
        "A_log_dt": _A_in["log_dt"],
        "A_Dskip": _A_in["Dskip"],
        "B_x": _B_in["x"],
        "B_Lambda_re": _B_in["Lambda_re"],
        "B_Lambda_im": _B_in["Lambda_im"],
        "B_B_re": _B_in["B_re"],
        "B_B_im": _B_in["B_im"],
        "B_C_re": _B_in["C_re"],
        "B_C_im": _B_in["C_im"],
        "B_log_dt": _B_in["log_dt"],
        "B_Dskip": _B_in["Dskip"],
        "gate_w": _w((lambda *s: torch.randn(*s, dtype=torch.bfloat16) * 0.05)(640) * 16.0),
    }

def reference(A_x, A_Lambda_re, A_Lambda_im, A_B_re, A_B_im, A_C_re, A_C_im, A_log_dt, A_Dskip, B_x, B_Lambda_re, B_Lambda_im, B_B_re, B_B_im, B_C_re, B_C_im, B_log_dt, B_Dskip, gate_w):
    def _A_ref(x, Lambda_re, Lambda_im, B_re, B_im, C_re, C_im, log_dt, Dskip):
        Bsz, L, H = x.shape
        Lam = Lambda_re + 1j * Lambda_im
        Bmat = B_re + 1j * B_im
        Cmat = C_re + 1j * C_im
        dt = torch.exp(log_dt)
        Lam_bar = torch.exp(dt * Lam)
        B_bar = ((Lam_bar - 1.0) / Lam)[:, None] * Bmat
        Bu = torch.einsum("bld,pd->blp", x + 0j, B_bar)
        h = torch.zeros_like(Bu[:, 0, :])
        hs = []
        for t in range(L):
            h = Lam_bar[None, :] * h + Bu[:, t, :]
            hs.append(h)
        hseq = torch.stack(hs, 1)
        y = 2.0 * torch.einsum("blp,dp->bld", hseq, Cmat).real + x * Dskip[None, None, :]
        return y

    def _B_ref(x, Lambda_re, Lambda_im, B_re, B_im, C_re, C_im, log_dt, Dskip):
        Bsz, L, H = x.shape
        Lam = Lambda_re + 1j * Lambda_im
        Bmat = B_re + 1j * B_im
        Cmat = C_re + 1j * C_im
        dt = torch.exp(log_dt)
        Lam_bar = torch.exp(dt * Lam)
        B_bar = ((Lam_bar - 1.0) / Lam)[:, None] * Bmat
        Bu = torch.einsum("bld,pd->blp", x + 0j, B_bar)
        h = torch.zeros_like(Bu[:, 0, :])
        hs = []
        for t in range(L):
            h = Lam_bar[None, :] * h + Bu[:, t, :]
            hs.append(h)
        hseq = torch.stack(hs, 1)
        y = 2.0 * torch.einsum("blp,dp->bld", hseq, Cmat).real + x * Dskip[None, None, :]
        return y

    x = A_x
    g = _sigmoid((x * gate_w).sum(-1, keepdims=True))
    a = _A_ref(x, A_Lambda_re, A_Lambda_im, A_B_re, A_B_im, A_C_re, A_C_im, A_log_dt, A_Dskip)
    b = _B_ref(x, B_Lambda_re, B_Lambda_im, B_B_re, B_B_im, B_C_re, B_C_im, B_log_dt, B_Dskip)
    return g * a + (1 - g) * b
```

```python
import re


class Emitter:
    def __init__(self):
        self.lines = []
        self.vmq = []
        self.lgq = []
        self.nlabel = 0

    def __call__(self, text):
        self.lines.append(text)

    def c(self, text):
        self.lines.append("; " + text)

    def label(self, name):
        self.lines.append(name + ":")

    def vm(self, tag, text):
        self.lines.append(text)
        self.vmq.append(tag)

    def lg(self, tag, text):
        self.lines.append(text)
        self.lgq.append(tag)

    def _need(self, q, tags):
        last = -1
        for i, t in enumerate(q):
            if t in tags:
                last = i
        return last

    def wait(self, vm=(), lg=()):
        if isinstance(vm, str):
            vm = (vm,)
        if isinstance(lg, str):
            lg = (lg,)
        parts = []
        iv = self._need(self.vmq, set(vm)) if vm != "all" else len(self.vmq) - 1
        if iv >= 0:
            n = len(self.vmq) - 1 - iv
            assert n <= 63, "vmcnt overflow %d" % n
            parts.append("vmcnt(%d)" % n)
            self.vmq = self.vmq[iv + 1:]
        il = self._need(self.lgq, set(lg))
        if il >= 0:
            n = len(self.lgq) - 1 - il
            if n > 15:
                n = 15
                il = len(self.lgq) - 1 - n
            parts.append("lgkmcnt(%d)" % n)
            self.lgq = self.lgq[il + 1:]
        if parts:
            self.lines.append("s_waitcnt " + " ".join(parts))
            return True
        return False

    def wait_all(self, vm=False, lg=False):
        parts = []
        if vm:
            parts.append("vmcnt(0)")
            self.vmq = []
        if lg:
            parts.append("lgkmcnt(0)")
            self.lgq = []
        self.lines.append("s_waitcnt " + " ".join(parts))

    def outstanding_lg(self, tag):
        return tag in self.lgq

    def outstanding_vm(self, tag):
        return tag in self.vmq

    def text(self):
        return "\n".join(self.lines)


_REG = re.compile(r"(-|abs\()?\b([vas])(\d+)\b|\b([vas])\[(\d+):(\d+)\]")


def _regs(op):
    out = []
    for m in _REG.finditer(op):
        if m.group(2):
            out.append((m.group(2), int(m.group(3))))
        else:
            for k in range(int(m.group(5)), int(m.group(6)) + 1):
                out.append((m.group(4), k))
    for nm in ("vcc", "exec", "m0"):
        if re.search(r"\b%s\b" % nm, op):
            out.append((nm, 0))
    return out


TRANS = ("v_exp_f32", "v_log_f32", "v_rcp_f32", "v_rsq_f32", "v_sqrt_f32", "v_sin_f32", "v_cos_f32")


def parse(line):
    line = line.split(";")[0].strip()
    if not line or line.endswith(":") or line.startswith("."):
        return None
    parts = line.split(None, 1)
    op = parts[0]
    rest = parts[1] if len(parts) > 1 else ""
    ops = [o.strip() for o in re.split(r",(?![^\[]*\])", rest)] if rest else []
    d = dict(op=op, ops=ops, line=line, w=[], r=[])
    is_valu = op.startswith("v_")
    d["valu"] = is_valu and not op.startswith("v_mfma")
    d["mfma"] = op.startswith("v_mfma")
    d["vmem"] = op.startswith("buffer_") or op.startswith("global_")
    d["ds"] = op.startswith("ds_")
    d["salu"] = op.startswith("s_")
    if op.startswith("v_mfma"):
        d["w"] = _regs(ops[0])
        d["ra"] = _regs(ops[1]) + _regs(ops[2])
        d["rc"] = _regs(ops[3])
        d["r"] = d["ra"] + d["rc"]
    elif op.startswith("v_cmp"):
        d["w"] = _regs(ops[0])
        d["r"] = sum((_regs(o) for o in ops[1:]), [])
    elif op.startswith("v_permlane") and "swap" in op:
        d["w"] = _regs(ops[0]) + _regs(ops[1])
        d["r"] = list(d["w"])
    elif is_valu:
        d["w"] = _regs(ops[0])
        d["r"] = sum((_regs(o) for o in ops[1:]), [])
        if op.startswith(("v_fmac", "v_dot2c")) or "dpp" in op or "row_" in line:
            d["r"] += d["w"]
        if op.startswith(("v_add_co", "v_addc_co", "v_sub_co")):
            d["w"] += _regs(ops[1])
    elif d["vmem"]:
        lds = re.search(r"\blds\b", line) is not None
        if "store" in op or ("atomic" in op):
            d["r"] = sum((_regs(o) for o in ops), [])
            d["store"] = True
            if op.startswith("buffer_"):
                d["sdata"] = _regs(ops[0])
            else:
                d["sdata"] = _regs(ops[1])
        elif lds:
            d["r"] = sum((_regs(o) for o in ops), []) + [("m0", 0)]
            d["ldsdma"] = True
        elif op in ("buffer_wbl2", "buffer_inv"):
            pass
        else:
            d["w"] = _regs(ops[0])
            d["r"] = sum((_regs(o) for o in ops[1:]), [])
    elif d["ds"]:
        if "read" in op or "permute" in op or "swizzle" in op:
            d["w"] = _regs(ops[0])
            d["r"] = sum((_regs(o) for o in ops[1:]), [])
        else:
            d["r"] = sum((_regs(o) for o in ops), [])
    elif d["salu"]:
        if op.startswith(("s_cmp", "s_cbranch", "s_branch", "s_waitcnt", "s_barrier", "s_nop", "s_sleep", "s_endpgm", "s_setprio")):
            d["r"] = sum((_regs(o) for o in ops), [])
        else:
            d["w"] = _regs(ops[0]) if ops else []
            d["r"] = sum((_regs(o) for o in ops[1:]), [])
            if "saveexec" in op:
                d["w"].append(("exec", 0))
    return d


def check_hazards(text, verbose=True):
    ins = [p for p in (parse(l) for l in text.splitlines()) if p]
    problems = []

    def states_between(i, j):
        n = 0
        for k in range(i + 1, j):
            if ins[k]["op"] == "s_nop":
                n += int(ins[k]["ops"][0], 0) + 1
            else:
                n += 1
        return n

    W = 24
    for j, b in enumerate(ins):
        for i in range(max(0, j - W), j):
            a = ins[i]
            need = 0
            why = ""
            aw = set(a["w"])
            br = set(b["r"])
            bw = set(b["w"])
            if a["mfma"]:
                passes = 4 if "16x16x32" in a["op"] else 8
                if b["mfma"]:
                    if aw & set(b["ra"]):
                        need, why = {4: 8, 8: 12}[passes], "mfma D -> mfma A/B"
                    elif aw & set(b["rc"]) and a["w"] != b["rc"]:
                        need, why = {4: 6, 8: 10}[passes], "mfma D -> mfma C partial"
                elif (b["valu"] or b["vmem"] or b["ds"]) and (aw & (br | bw)):
                    need, why = {4: 8, 8: 12}[passes], "mfma D -> valu/mem"
                if b["valu"] and set(a["rc"]) & bw and not need:
                    need, why = {4: 3, 8: 7}[passes], "mfma C read -> valu write"
            if a["valu"]:
                vw = {r for r in aw if r[0] in "va" and r[0] not in ("vcc",)}
                vw = {r for r in vw if r[0] in ("v", "a")}
                sw = {r for r in aw if r[0] in ("s", "vcc")}
                if b["mfma"] and vw & br:
                    need, why = max(need, 2), "valu -> mfma"
                if b["op"].startswith(("v_readlane", "v_readfirstlane")) and vw & br:
                    need, why = max(need, 1), "valu -> readlane"
                if b["op"].startswith("v_permlane") and vw & br:
                    need, why = max(need, 2), "valu -> permlane"
                if ("row_" in b["line"] or "dpp" in b["op"] or "quad_perm" in b["line"]) and vw & br:
                    need, why = max(need, 2), "valu -> dpp"
                if a["op"].startswith(TRANS) and b["valu"] and not b["op"].startswith(TRANS) and vw & br:
                    need, why = max(need, 1), "trans -> valu"
                if b["vmem"] and sw & br:
                    need, why = max(need, 5), "valu sgpr -> vmem"
                if b["valu"] and sw & br:
                    need, why = max(need, 2), "valu sgpr/vcc -> valu"
                if ("exec", 0) in aw and (b["mfma"]):
                    need, why = max(need, 4), "valu exec -> mfma"
            if a["salu"] and ("m0", 0) in aw and b.get("ldsdma"):
                need, why = max(need, 1), "m0 -> lds dma"
            if a.get("store") and len(a["sdata"]) >= 3 and set(a["sdata"]) & bw:
                need, why = max(need, 2 if b["valu"] else 1), "store data WAR"
            if need and states_between(i, j) < need:
                problems.append("%s: need %d have %d\n    %s\n    %s" % (why, need, states_between(i, j), a["line"], b["line"]))
    if verbose:
        for p in problems:
            print("HAZARD", p)
    return problems
```

```python
import sys
from asmlib import Emitter, check_hazards

KNAME = "gated_mix__ssm_conv_s5__ssm_conv_s5__prompt_kernel"

MAT = 128 * 40 * 512
E_OFF = 4 * MAT
G_OFF = E_OFF + 16 * 16 * 640
F_OFF = G_OFF + 2048 * 8
ST_OFF = F_OFF + 16 * 128
OOB = 0x7FF00000
SLOT = 40960
ETAB = SLOT
TTAB = SLOT + 11520
TRS = SLOT + 23040
PTAB = SLOT + 36864
RED = SLOT
SPIN = 1 << 16

SX, SB, SC, SWS, SE, SDBG, SOUT, ST0, ST1, ST2 = 4, 8, 12, 16, 20, 24, 28, 32, 36, 40
sW = 3
KA = 44
sI, sJ, sTT, sDT = 88, 89, 90, 91
sM0X, sM0B, sM0C = 92, 93, 94
sK, sKC = 95, 96
sT0, sT1, sT2 = 97, 98, 99
sCNT = 100
sH = 44
sHB0, sHB1 = 54, 55
sE1, sE2 = 56, 57
sXS = 58
sOS = 62
sGS = 66
sSTAMP = 68


def srd(r):
    return "s[%d:%d]" % (r, r + 3)


def vr(r, n=1):
    return "v%d" % r if n == 1 else "v[%d:%d]" % (r, r + n - 1)


def ar(r, n=1):
    return "a%d" % r if n == 1 else "a[%d:%d]" % (r, r + n - 1)


vL = 1
ACC = 16
HBUF = 16
BF = 96
AF = 136
vRA, vRB, vDX, vDB = 156, 164, 172, 176
vPC, vRC = 181, 191
vE, vG, vF = 197, 198, 199
PA, PCF = 200, 220
SKIP = 200
vA8, vA128, vCO = 232, 234, 236
ACC2 = 96
CJ = 136
CV = 156
PART = 232
G4 = 248
vHL, vPW, vPRA, vPRB = 252, 253, 254, 255
vOA, vOB = 14, 15


def acc(mt, nt):
    return ACC + (mt * 10 + nt) * 4


def U(kind, n, s):
    return acc(s >> 1, n + 5 * kind) + 2 * (s & 1)


def cfrag(sig, ks, n):
    f = ks * 5 + n
    if sig < 6:
        return ar(40 * sig + 4 * f, 4)
    if sig == 6:
        return ar(240 + 4 * f, 4) if f < 4 else vr(CV + 4 * (f - 4), 4)
    return None


CSLOT = {0: 2, 1: 3, 2: 0, 3: 2, 4: 3, 5: 0, 6: 2, 7: 3, 8: 0, 9: 2}
CSI = {0: 0, 2: 1, 3: 2}

BC_LO = "op_sel_hi:[0,1,1]"
BC_HI = "op_sel:[1,0,0] op_sel_hi:[1,1,1]"
BC_HI_SW = "op_sel:[1,1,0] op_sel_hi:[1,0,1]"
NEG0 = "neg_lo:[1,0,0] neg_hi:[1,0,0]"


def generate(mapmode=0, rot1=(0, 0), rot2=1, stamps=False, outflag="sc1", lastflag="sc1", dmaflag="", cflag=""):
    E = Emitter()
    nst = [0]

    def stamp():
        if stamps:
            k = nst[0]
            nst[0] += 1
            E("s_memtime s[%d:%d]" % (sT1, sT1 + 1))
            E.wait_all(lg=True)
            E("s_mov_b32 s%d, s%d" % (sSTAMP + k, sT1))

    def cmul(dst, x, y, tmp=None):
        t = tmp if tmp is not None else dst
        E("v_pk_mul_f32 %s, %s, %s op_sel_hi:[0,1]" % (vr(t, 2), vr(x, 2), vr(y, 2)))
        E("v_pk_fma_f32 %s, %s, %s, %s %s neg_lo:[0,1,0]" % (vr(dst, 2), vr(x, 2), vr(y, 2), vr(t, 2), BC_HI_SW))

    E("s_cmp_ge_u32 s2, 256")
    E("s_cbranch_scc1 L_end")
    E("s_load_dwordx16 s[44:59], s[0:1], 0")
    E("s_load_dwordx16 s[60:75], s[0:1], 64")
    E("s_load_dwordx8 s[76:83], s[0:1], 128")
    E("s_load_dwordx4 s[84:87], s[0:1], 160")
    if stamps:
        E("s_memrealtime s[100:101]")
        E("s_memtime s[4:5]")
    E("s_getpc_b64 s[98:99]")
    E.label("L_pc")
    E("v_lshlrev_b32 v2, 7, v0")
    E("v_min_u32 v2, L_last-L_pc, v2")
    E.c("pull this kernel's own code into L2 while the first tiles are fetched")
    E.vm("pf", "global_load_dword v3, v2, s[98:99]")
    E("v_lshrrev_b32 v4, 6, v0")
    E("v_and_b32 v%d, 63, v0" % vL)
    E("v_readfirstlane_b32 s%d, v4" % sW)
    E("s_and_b32 s%d, s2, 7" % sT0)
    E("s_lshr_b32 s%d, s2, 3" % sKC)
    if mapmode == 0:
        E("s_and_b32 s%d, s%d, 1" % (sI, sT0))
        E("s_lshl_b32 s%d, s%d, 3" % (sI, sI))
        E("s_and_b32 s%d, s%d, 7" % (sDT, sKC))
        E("s_add_u32 s%d, s%d, s%d" % (sI, sI, sDT))
        E("s_lshr_b32 s%d, s%d, 1" % (sJ, sT0))
        E("s_lshl_b32 s%d, s%d, 2" % (sJ, sJ))
        E("s_lshr_b32 s%d, s%d, 3" % (sK, sKC))
        E("s_add_u32 s%d, s%d, s%d" % (sJ, sJ, sK))
        E("s_lshl_b32 s%d, s%d, 2" % (sTT, sT0))
        E("s_add_u32 s%d, s%d, s%d" % (sTT, sTT, sK))
    else:
        E("s_lshl_b32 s%d, s%d, 1" % (sI, sT0))
        E("s_and_b32 s%d, s%d, 1" % (sJ, sKC))
        E("s_add_u32 s%d, s%d, s%d" % (sI, sI, sJ))
        E("s_lshr_b32 s%d, s%d, 1" % (sJ, sKC))
        E("s_lshl_b32 s%d, s%d, 1" % (sTT, sI))
        E("s_lshr_b32 s%d, s%d, 3" % (sK, sJ))
        E("s_add_u32 s%d, s%d, s%d" % (sTT, sTT, sK))
        E("s_and_b32 s%d, s%d, 7" % (sDT, sJ))
    if rot1 == (0, 0):
        E("s_mov_b32 s%d, 0" % sK)
    else:
        E("s_mul_i32 s%d, s%d, %d" % (sK, sI, rot1[0]))
        E("s_mul_i32 s%d, s%d, %d" % (sT0, sJ, rot1[1]))
        E("s_add_u32 s%d, s%d, s%d" % (sK, sK, sT0))
        E("s_mul_i32 s%d, s%d, 6554" % (sT0, sK))
        E("s_lshr_b32 s%d, s%d, 16" % (sT0, sT0))
        E("s_mul_i32 s%d, s%d, 10" % (sT0, sT0))
        E("s_sub_u32 s%d, s%d, s%d" % (sK, sK, sT0))
        E("s_lshl_b32 s%d, s%d, 7" % (sK, sK))
    E("s_lshl_b32 s%d, s%d, 12" % (sM0X, sW))
    E("s_mul_i32 s%d, s%d, 5120" % (sM0B, sW))
    E("s_add_u32 s%d, s%d, 16384" % (sM0B, sM0B))
    E("s_mul_i32 s%d, s%d, 10240" % (sM0C, sW))
    E("v_lshrrev_b32 v4, 4, v%d" % vL)
    E("v_and_b32 v5, 7, v%d" % vL)
    E("v_xor_b32 v5, v5, v4")
    E("v_lshlrev_b32 v5, 4, v5")
    E("v_lshrrev_b32 v6, 5, v%d" % vL)
    E("v_lshlrev_b32 v6, 3, v6")
    E("v_bfe_u32 v8, v%d, 3, 1" % vL)
    E("v_lshl_add_u32 v6, v8, 2, v6")
    E("v_and_b32 v8, 1, v4")
    E("v_add_u32 v6, v6, v8")
    E("s_lshl_b32 s%d, s%d, 7" % (sT0, sI))
    E("s_lshl_b32 s%d, s%d, 5" % (sT1, sW))
    E("s_add_u32 s%d, s%d, s%d" % (sT0, sT0, sT1))
    E("v_add_u32 v6, s%d, v6" % sT0)
    E("v_mul_u32_u24 v6, 1280, v6")
    E("v_add_u32 v%d, v6, v5" % (vDX + 0))
    E("v_xor_b32 v6, 64, v%d" % (vDX + 0))
    E("v_add_u32 v%d, %d, v6" % (vDX + 1, 16 * 1280 - 1024))
    E("v_add_u32 v%d, %d, v%d" % (vDX + 2, 2 * 1280 - 2048, vDX + 0))
    E("v_add_u32 v%d, %d, v6" % (vDX + 3, 18 * 1280 - 3072))
    E("v_lshrrev_b32 v7, 3, v%d" % vL)
    E("v_mul_u32_u24 v7, 1280, v7")
    E("v_add_u32 v7, v7, v5")
    E("s_and_b32 s%d, s%d, 7" % (sT0, sJ))
    E("s_mul_i32 s%d, s%d, 80" % (sT0, sT0))
    E("s_and_b32 s%d, s%d, 1" % (sT1, sW))
    E("s_mul_i32 s%d, s%d, 40" % (sT2, sT1))
    E("s_add_u32 s%d, s%d, s%d" % (sT2, sT2, sT0))
    E("s_mul_i32 s%d, s%d, 1280" % (sT2, sT2))
    E("s_lshl_b32 s%d, s%d, 6" % (sT1, sT1))
    E("v_xor_b32 v8, s%d, v7" % sT1)
    E("v_add_u32 v%d, s%d, v8" % (vDB + 0, sT2))
    E("v_xor_b32 v8, 64, v%d" % (vDB + 0))
    E("v_add_u32 v%d, %d, v8" % (vDB + 1, 8 * 1280 - 1024))
    E("v_add_u32 v%d, %d, v%d" % (vDB + 2, 16 * 1280 - 2048, vDB + 0))
    E("v_add_u32 v%d, %d, v8" % (vDB + 3, 24 * 1280 - 3072))
    E("v_add_u32 v%d, %d, v%d" % (vDB + 4, 32 * 1280, vDB + 0))
    E("s_mul_i32 s%d, s%d, 20" % (sT1, sW))
    E("v_add_u32 v10, s%d, v%d" % (sT1, vL))
    E("v_add_u32 v9, s%d, v10" % sT0)
    E("v_lshlrev_b32 v9, 1, v9")
    if stamps:
        E("s_waitcnt lgkmcnt(0)")
        E("s_mov_b32 s101, s100")
        E("s_mov_b32 s100, s4")
    E("s_waitcnt lgkmcnt(0)")
    E("s_mov_b32 s%d, s44" % SX)
    E("s_mov_b32 s%d, s45" % (SX + 1))
    E("s_mov_b32 s%d, %d" % (SX + 2, 2048 * 1280))
    E("s_mov_b32 s%d, 0x20000" % (SX + 3))
    E("s_cmp_ge_u32 s%d, 8" % sJ)
    E("s_cselect_b64 s[50:51], s[68:69], s[50:51]")
    E("s_cselect_b64 s[52:53], s[70:71], s[52:53]")
    E("s_cselect_b64 s[%d:%d], s[64:65], s[46:47]" % (ST0, ST0 + 1))
    E("s_cselect_b64 s[%d:%d], s[66:67], s[48:49]" % (ST1, ST1 + 1))
    E("s_cselect_b64 s[%d:%d], s[76:77], s[58:59]" % (ST2, ST2 + 1))
    E("s_cmp_ge_u32 s%d, 2" % sW)
    E("s_cselect_b64 s[%d:%d], s[52:53], s[50:51]" % (SB, SB + 1))
    E("s_cselect_b64 s[54:55], s[72:73], s[54:55]")
    E("s_cselect_b64 s[56:57], s[74:75], s[56:57]")
    E("s_mov_b32 s%d, %d" % (SB + 2, 640 * 1280))
    E("s_mov_b32 s%d, 0x20000" % (SB + 3))

    def dma_stage_ops(n):
        slot = (n % 4) * SLOT
        ops = []
        for u in range(4):
            pre = ["s_add_u32 m0, s%d, %d" % (sM0X, slot)] if u == 0 else []
            ops.append((pre, "buffer_load_dwordx4 v%d, %s, s%d offen offset:%d lds %s" % (vDX + u, srd(SX), sK, 1024 * u, dmaflag), []))
        for v in range(5):
            pre = []
            if v == 0:
                pre = ["s_add_u32 m0, s%d, %d" % (sM0B, slot)]
            if v == 4:
                pre = ["s_add_u32 m0, s%d, %d" % (sM0B, slot + 4096)]
            post = []
            if v == 4:
                post = ["s_add_u32 s%d, s%d, 128" % (sK, sK)]
                if rot1 != (0, 0):
                    post += ["s_cmp_eq_u32 s%d, 1280" % sK, "s_cselect_b32 s%d, 0, s%d" % (sK, sK)]
            ops.append((pre, "buffer_load_dwordx4 v%d, %s, s%d offen offset:%d lds %s" % (vDB + v, srd(SB), sK, 1024 * (v & 3) if v < 4 else 0, dmaflag), post))
        return ops

    def dma_c_ops(sig):
        slot = CSLOT[sig] * SLOT
        ops = []
        for u in range(10):
            pre = ["s_add_u32 m0, s%d, %d" % (sM0C, slot + 4096 * (u >> 2))] if (u & 3) == 0 else []
            post = []
            if u == 9:
                post = ["s_add_u32 s%d, s%d, 128" % (sKC, sKC), "s_cmp_eq_u32 s%d, 1280" % sKC, "s_cselect_b32 s%d, 0, s%d" % (sKC, sKC)]
            ops.append((pre, "buffer_load_dwordx4 v%d, %s, s%d offen offset:%d lds %s" % (vPC + u, srd(SC), sKC, 1024 * (u & 3), cflag), post))
        return ops

    def emit_dma(tag, ops):
        for pre, d, post in ops:
            for p in pre:
                E(p)
                E("s_nop 0")
            E.vm(tag, d)
            for p in post:
                E(p)

    emit_dma("st0", dma_stage_ops(0))
    for r in (ST0, ST1, ST2):
        E("s_mov_b32 s%d, 1280" % (r + 2))
        E("s_mov_b32 s%d, 0x20000" % (r + 3))
    E.vm("par", "buffer_load_ushort v11, v9, %s, 0 offen" % srd(ST0))
    E.vm("par", "buffer_load_ushort v12, v9, %s, 0 offen" % srd(ST1))
    E.vm("par", "buffer_load_ushort v13, v9, %s, 0 offen" % srd(ST2))
    E("s_and_b32 s%d, s%d, 1" % (sT0, sW))
    E("s_cmp_lg_u32 s%d, 0" % sT0)
    E("s_cselect_b64 s[%d:%d], s[56:57], s[54:55]" % (SC, SC + 1))
    E("s_mov_b32 s%d, %d" % (SC + 2, 640 * 1280))
    E("s_mov_b32 s%d, 0x20000" % (SC + 3))
    E("s_mov_b32 s%d, s86" % SWS)
    E("s_mov_b32 s%d, s87" % (SWS + 1))
    E("s_mov_b32 s%d, %d" % (SWS + 2, ST_OFF + (256 * 4 * 128 if stamps else 0)))
    E("s_mov_b32 s%d, 0x20000" % (SWS + 3))
    E("s_mul_i32 s%d, s%d, 10240" % (sT0, sJ))
    E("s_add_u32 s%d, s%d, %d" % (sT0, sT0, E_OFF))
    E("s_add_u32 s%d, s86, s%d" % (SE, sT0))
    E("s_addc_u32 s%d, s87, 0" % (SE + 1))
    E("s_mov_b32 s%d, 10240" % (SE + 2))
    E("s_mov_b32 s%d, 0x20000" % (SE + 3))
    E("s_mov_b32 s%d, s84" % SDBG)
    E("s_mov_b32 s%d, s85" % (SDBG + 1))
    E("s_mov_b32 s%d, 256" % (SDBG + 2))
    E("s_mov_b32 s%d, 0x20000" % (SDBG + 3))
    E("s_mov_b32 s%d, s82" % SOUT)
    E("s_mov_b32 s%d, s83" % (SOUT + 1))
    E("s_mov_b32 s%d, %d" % (SOUT + 2, 2048 * 640 * 4))
    E("s_mov_b32 s%d, 0x20000" % (SOUT + 3))
    E("s_mov_b32 s%d, s80" % ST0)
    E("s_mov_b32 s%d, s81" % (ST0 + 1))
    E("s_mov_b32 s%d, s60" % ST1)
    E("s_mov_b32 s%d, s61" % (ST1 + 1))
    E("s_mov_b32 s%d, s78" % ST2)
    E("s_mov_b32 s%d, s79" % (ST2 + 1))
    if stamps:
        E("s_mov_b32 s%d, s101" % (sSTAMP + 19))
        E("s_mov_b32 s%d, s100" % (sSTAMP + 17))
    E("s_sub_u32 s%d, 15, s%d" % (sT0, sI))
    E("s_mul_i32 s%d, s%d, 640" % (sT0, sT0))
    E("v_lshlrev_b32 v2, 3, v10")
    E("v_add_u32 v2, s%d, v2" % sT0)
    E("v_mov_b32 v4, 0x%x" % OOB)
    E("v_cmp_gt_u32 vcc, 20, v%d" % vL)
    E("s_lshl_b32 s%d, s%d, 7" % (sT0, sI))
    E("s_lshl_b32 s%d, s%d, 3" % (sT1, sJ))
    E("v_cndmask_b32 v%d, v4, v2, vcc" % vE)
    E("s_add_u32 s%d, s%d, s%d" % (sT0, sT0, sT1))
    E("s_lshl_b32 s%d, s%d, 1" % (sT1, sW))
    E("s_add_u32 s%d, s%d, s%d" % (sT0, sT0, sT1))
    E("v_lshrrev_b32 v2, 5, v%d" % vL)
    E("v_add_u32 v8, s%d, v2" % sT0)
    E("v_lshlrev_b32 v2, 3, v8")
    E("v_add_u32 v2, %d, v2" % G_OFF)
    E("v_and_b32 v5, 31, v%d" % vL)
    E("v_cmp_eq_u32 vcc, 0, v5")
    E("s_lshl_b32 s%d, s%d, 7" % (sT0, sI))
    E("s_lshl_b32 s%d, s%d, 2" % (sT1, sJ))
    E("v_cndmask_b32 v%d, v4, v2, vcc" % vG)
    E("s_add_u32 s%d, s%d, s%d" % (sT0, sT0, sT1))
    E("s_add_u32 s%d, s%d, %d" % (sT0, sT0, F_OFF))
    E("v_mov_b32 v2, s%d" % sT0)
    E("v_cmp_eq_u32 vcc, 0, v0")
    E("v_mov_b32 v14, -1")
    E("v_mov_b32 v15, -1")
    E("v_cndmask_b32 v%d, v4, v2, vcc" % vF)
    E("v_mov_b32 v6, 0")
    E.vm("clr", "buffer_store_dwordx2 v[14:15], v%d, %s, 0 offen sc1" % (vE, srd(SE)))
    E.vm("clr", "buffer_store_dwordx2 v[14:15], v%d, %s, 0 offen sc1" % (vG, srd(SWS)))
    E.vm("clr", "buffer_store_dword v6, v%d, %s, 0 offen sc1" % (vF, srd(SWS)))
    emit_dma("st1", dma_stage_ops(1))
    emit_dma("st2", dma_stage_ops(2))
    E("s_lshl_b32 s%d, s%d, 4" % (sT0, sI))
    E("s_add_u32 s%d, s%d, s%d" % (sT0, sT0, sJ))
    E("v_mov_b32 v2, s%d" % sT0)
    E("v_cndmask_b32 v5, v4, v2, vcc")
    E("v_and_b32 v2, 15, v%d" % vL)
    E("v_lshrrev_b32 v3, 1, v2")
    E("v_lshrrev_b32 v4, 4, v%d" % vL)
    E("v_xor_b32 v3, v3, v4")
    E("v_lshlrev_b32 v3, 4, v3")
    E("v_lshl_add_u32 v2, v2, 7, v3")
    E("v_xor_b32 v3, 64, v2")
    for ks in range(2):
        E("v_add_u32 v%d, s%d, v%d" % (vRA + 4 * ks, sM0X, 2 + ks))
        E("v_add_u32 v%d, 16384, v%d" % (vRB + 4 * ks, 2 + ks))
        E("v_add_u32 v%d, s%d, v%d" % (vRC + 3 * ks, sM0C, 2 + ks))
        for s in range(1, 4):
            E("v_add_u32 v%d, %d, v%d" % (vRA + 4 * ks + s, s * SLOT, vRA + 4 * ks))
            E("v_add_u32 v%d, %d, v%d" % (vRB + 4 * ks + s, s * SLOT, vRB + 4 * ks))
        E("v_add_u32 v%d, %d, v%d" % (vRC + 3 * ks + 1, 2 * SLOT, vRC + 3 * ks))
        E("v_add_u32 v%d, %d, v%d" % (vRC + 3 * ks + 2, 3 * SLOT, vRC + 3 * ks))
    E("s_mul_i32 s%d, s%d, %d" % (sT0, sDT, 80 * 1280))
    E("v_add_u32 v%d, s%d, v7" % (vPC, sT0))
    E("v_xor_b32 v7, 64, v%d" % vPC)
    for u in range(1, 10):
        E("v_add_u32 v%d, %d, v%d" % (vPC + u, 8 * u * 1280 - 1024 * (u & 3), 7 if (u & 1) else vPC))
    if rot2:
        E("s_lshl_b32 s%d, s%d, 7" % (sKC, sDT))
    else:
        E("s_mov_b32 s%d, 0" % sKC)

    LOG2E = 0x3FB8AA3B
    LOG2E_LO = 0x32A5705F
    LN2 = 0x3F317218

    def exp_nat(dst, x, t0, t1):
        E("v_mul_f32 v%d, s%d, v%d" % (t0, sT0, x))
        E("v_fma_f32 v%d, v%d, s%d, -v%d" % (t1, x, sT0, t0))
        E("v_exp_f32 v%d, v%d" % (t0, t0))
        E("v_fma_f32 v%d, v%d, s%d, v%d" % (t1, x, sT1, t1))
        E("v_mul_f32 v%d, s%d, v%d" % (t1, sT2, t1))
        E("v_fma_f32 v%d, v%d, v%d, v%d" % (dst, t0, t1, t0))

    E("s_mov_b32 s%d, 0x%x" % (sT0, LOG2E))
    E("s_mov_b32 s%d, 0x%x" % (sT1, LOG2E_LO))
    E("s_mov_b32 s%d, 0x%x" % (sT2, LN2))
    T = 238
    E.wait(vm="par")
    E("v_lshlrev_b32 v13, 16, v13")
    E("v_lshlrev_b32 v%d, 16, v11" % (T + 0))
    E("v_lshlrev_b32 v%d, 16, v12" % (T + 1))
    exp_nat(13, 13, 2, 3)
    E("v_cvt_pk_bf16_f32 v13, v13, v13")
    E("v_lshlrev_b32 v13, 16, v13")
    E("v_mul_f32 v11, v13, v%d" % (T + 0))
    E("v_mul_f32 v12, v13, v%d" % (T + 1))
    exp_nat(11, 11, 2, 3)
    E("v_mul_f32 v12, 0.15915494, v12")
    E("v_rndne_f32 v2, v12")
    E("v_sub_f32 v12, v12, v2")
    E("v_cos_f32 v2, v12")
    E("v_sin_f32 v3, v12")
    E("v_mul_f32 v4, v%d, v%d" % (T + 0, T + 0))
    E("v_fmac_f32 v4, v%d, v%d" % (T + 1, T + 1))
    E("v_mul_f32 v%d, v11, v2" % (T + 2))
    E("v_mul_f32 v%d, v11, v3" % (T + 3))
    E("v_rcp_f32 v4, v4")
    cmul(T + 6, T + 2, T + 2)
    cmul(T + 4, T + 6, T + 6)
    cmul(vA8, T + 4, T + 4)
    cmul(T + 6, vA8, vA8)
    cmul(T + 8, T + 6, T + 6)
    cmul(T + 6, T + 8, T + 8)
    cmul(vA128, T + 6, T + 6)
    E("v_add_f32 v4, v4, v4")
    E("v_add_f32 v2, -1.0, v%d" % (T + 2))
    E("v_mul_f32 v6, v2, v%d" % (T + 0))
    E("v_fmac_f32 v6, v%d, v%d" % (T + 3, T + 1))
    E("v_mul_f32 v7, v%d, v%d" % (T + 3, T + 0))
    E("v_fma_f32 v7, -v2, v%d, v7" % (T + 1))
    E("v_mul_f32 v%d, v4, v6" % (vCO + 0))
    E("v_mul_f32 v%d, v4, v7" % (vCO + 1))
    E("v_lshlrev_b32 v2, 5, v10")
    E("v_add_u32 v2, %d, v2" % PTAB)
    E("s_mov_b64 exec, 0xfffff")
    E.lg("ptw", "ds_write_b128 v2, %s" % vr(T + 2, 4))
    E.lg("ptw", "ds_write_b64 v2, %s offset:16" % vr(vCO, 2))
    E("s_mov_b64 exec, -1")
    E("v_mov_b32 v6, 1")
    E("v_and_b32 v9, 15, v%d" % vL)
    E("v_lshlrev_b32 v9, 5, v9")
    E("v_add_u32 v9, %d, v9" % PTAB)
    E.wait(vm=("clr", "st0"), lg="ptw")
    E("s_barrier")
    E.vm("cb", "buffer_store_byte v6, v5, %s, 0 offen sc1" % srd(SDBG))
    stamp()

    issueG = {}

    def rdA(kap, mt):
        n, ks = kap >> 1, kap & 1
        return ("A%d_%d" % (kap, mt), "ds_read_b128 %s, v%d offset:%d" % (vr(AF + 8 * (kap & 1) + 4 * mt, 4), vRA + 4 * ks + n % 4, 2048 * mt))

    def rdB(kap, nt):
        n, ks = kap >> 1, kap & 1
        return ("B%d_%d" % (kap, nt), "ds_read_b128 %s, v%d offset:%d" % (vr(BF + 4 * nt, 4), vRB + 4 * ks + n % 4, 2048 * nt))

    side = {}

    def at(G, fn):
        side.setdefault(G, []).append(fn)

    def lgop(G, rd):
        def f():
            E.lg(rd[0], rd[1])
            issueG[rd[0]] = G
        at(G, f)

    for kap in range(19):
        g0 = 20 * kap
        if kap & 1 == 0:
            lgop(g0 + 0, rdA(kap + 1, 0))
            lgop(g0 + 2, rdA(kap + 1, 1))
            for nt in range(10):
                lgop(g0 + 2 * nt + 1, rdB(kap + 1, nt))
        else:
            lgop(g0 + 6, rdA(kap + 1, 0))
            lgop(g0 + 8, rdA(kap + 1, 1))
            for nt, g in enumerate([7, 9, 10, 11, 12, 13, 14, 15, 17, 19]):
                lgop(g0 + g, rdB(kap + 1, nt))

    def place_dma(tag, ops, G0, offs):
        for (pre, d, post), o in zip(ops, offs):
            for p in pre:
                at(G0 + o - 1, (lambda p=p: E(p)))
            at(G0 + o, (lambda d=d: E.vm(tag, d)))
            for k, p in enumerate(post):
                at(G0 + o + 1, (lambda p=p: E(p)))

    place_dma("st3", dma_stage_ops(3), 1, [0, 3, 5, 8, 11, 13, 16, 18, 21])
    for n in range(10):
        G = 20 * (2 * n + 1) + 5

        def bar(n=n):
            E.wait(vm=("st%d" % (n + 1),))
            E.wait_all(lg=True)
            E("s_barrier")
        at(G, bar)
        if n + 4 <= 9:
            place_dma("st%d" % (n + 4), dma_stage_ops(n + 4), G + 2, [0, 4, 9, 13, 17, 21, 26, 30, 34])
        elif n <= 8:
            place_dma("c%d" % (n - 6), dma_c_ops(n - 6), G + 2, [0, 4, 8, 11, 15, 19, 23, 27, 30, 34])
    for n in range(5):
        lgop(20 * 19 + 6 + 2 * n, ("pa%d" % n, "ds_read_b128 %s, v9 offset:%d" % (vr(PA + 4 * n, 4), 512 * n)))
        lgop(20 * 19 + 7 + 2 * n, ("pc%d" % n, "ds_read_b64 %s, v9 offset:%d" % (vr(PCF + 2 * n, 2), 512 * n + 16)))

    for rd in [rdA(0, 0), rdB(0, 0), rdA(0, 1)] + [rdB(0, nt) for nt in range(1, 10)]:
        E.lg(rd[0], rd[1])
        issueG[rd[0]] = -1

    def need_lg(tags, G):
        tags = [t for t in tags if E.outstanding_lg(t)]
        if not tags:
            return
        extra = [t for t in E.lgq if issueG.get(t, 1 << 30) <= G - 8]
        E.wait(lg=tags + extra)

    for kap in range(20):
        for nt in range(10):
            for mt in range(2):
                G = 20 * kap + 2 * nt + mt
                need_lg(["A%d_%d" % (kap, mt), "B%d_%d" % (kap, nt)], G)
                d = vr(acc(mt, nt), 4)
                E("v_mfma_f32_16x16x32_bf16 %s, %s, %s, %s" % (d, vr(AF + 8 * (kap & 1) + 4 * mt, 4), vr(BF + 4 * nt, 4), d if kap else "0"))
                for fn in side.pop(G, []):
                    fn()
    assert not side, sorted(side)
    stamp()

    E1 = 96
    E2 = 116
    EL = 136
    ET = 96
    ELO = 146
    E("v_and_b32 v2, 15, v%d" % vL)
    E("v_mul_u32_u24 v2, 144, v2")
    E("v_lshrrev_b32 v3, 4, v%d" % vL)
    E("v_lshl_add_u32 v2, v3, 3, v2")
    E("s_lshl_b32 s%d, s%d, 5" % (sT0, sW))
    E("s_add_u32 s%d, s%d, %d" % (sT0, sT0, ETAB))
    E("v_add_u32 v12, s%d, v2" % sT0)
    E("v_mul_u32_u24 v13, 144, v10")
    E("v_add_u32 v13, %d, v13" % ETAB)
    E.wait(lg=["pa%d" % n for n in range(5)] + ["pc%d" % n for n in range(5)])
    E(".p2align 3")

    def scan_step(dre, dim, pre, pim, ure, uim, a, conj=False):
        E("v_pk_fma_f32 %s, %s, %s, %s %s" % (vr(dre, 2), vr(a, 2), vr(pre, 2), vr(ure, 2), BC_LO))
        E("v_pk_fma_f32 %s, %s, %s, %s %s" % (vr(dim, 2), vr(a, 2), vr(pim, 2), vr(uim, 2), BC_LO))
        E("v_pk_fma_f32 %s, %s, %s, %s %s %s" % (vr(dre, 2), vr(a, 2), vr(pim, 2), vr(dre, 2), BC_HI, "" if conj else NEG0))
        E("v_pk_fma_f32 %s, %s, %s, %s %s %s" % (vr(dim, 2), vr(a, 2), vr(pre, 2), vr(dim, 2), BC_HI, NEG0 if conj else ""))

    for n in range(5):
        a = PA + 4 * n
        e = E1 + 4 * n
        scan_step(e, e + 2, U(0, n, 0), U(1, n, 0), U(0, n, 1), U(1, n, 1), a)
        scan_step(E2, E2 + 2, e, e + 2, U(0, n, 2), U(1, n, 2), a)
        scan_step(e, e + 2, E2, E2 + 2, U(0, n, 3), U(1, n, 3), a)
        E("v_fma_f32 v%d, v%d, v%d, v%d" % (EL + 2 * n, a + 2, e, e + 1))
        E("v_fma_f32 v%d, v%d, v%d, v%d" % (EL + 2 * n + 1, a + 2, e + 2, e + 3))
        E("v_fma_f32 v%d, -v%d, v%d, v%d" % (EL + 2 * n, a + 3, e + 2, EL + 2 * n))
        E("v_fma_f32 v%d, v%d, v%d, v%d" % (EL + 2 * n + 1, a + 3, e, EL + 2 * n + 1))
        E.lg("etw", "ds_write_b64 v12, %s offset:%d" % (vr(EL + 2 * n, 2), 2304 * n))
    for n in range(5):
        e = E1 + 4 * n
        c = PCF + 2 * n
        E("v_mul_f32 v%d, v%d, v%d" % (ELO + 2 * n, c, e))
        E("v_mul_f32 v%d, v%d, v%d" % (ELO + 2 * n + 1, c + 1, e))
        E("v_fma_f32 v%d, -v%d, v%d, v%d" % (ELO + 2 * n, c + 1, e + 2, ELO + 2 * n))
        E("v_fma_f32 v%d, -v%d, v%d, -v%d" % (ELO + 2 * n + 1, c, e + 2, ELO + 2 * n + 1))
        if n == 1:
            E.wait(lg="etw")
            E("s_barrier")
    E("s_mov_b64 exec, 0xfffff")
    for k in range(8):
        E.lg("etr%d" % k, "ds_read_b128 %s, v13 offset:%d" % (vr(ET + 2 + 4 * k, 4), 16 * k))
    S0, S1 = 2, 4
    cur = ET + 2
    for j in range(1, 16):
        E.wait(lg="etr%d" % (j >> 1))
        nxt = S0 if cur != S0 else S1
        E("v_pk_fma_f32 %s, %s, %s, %s %s" % (vr(nxt, 2), vr(vA8, 2), vr(cur, 2), vr(ET + 2 + 2 * j, 2), BC_LO))
        E("v_pk_fma_f32 %s, %s, %s, %s %s neg_lo:[0,1,0]" % (vr(nxt, 2), vr(vA8, 2), vr(cur, 2), vr(nxt, 2), BC_HI_SW))
        cur = nxt
    E("v_min_u32 v%d, -2, v%d" % (cur, cur))
    E("v_min_u32 v%d, -2, v%d" % (cur + 1, cur + 1))
    E.vm("epub", "buffer_store_dwordx2 %s, v%d, %s, 0 offen sc1" % (vr(cur, 2), vE, srd(SE)))
    E("s_mov_b64 exec, -1")
    stamp()

    GX, GW = 156, 168
    E("v_and_b32 v2, 31, v%d" % vL)
    E("v_lshlrev_b32 v3, 4, v2")
    E("v_mul_u32_u24 v4, 1280, v8")
    E("v_add_u32 v4, v4, v3")
    E("v_cmp_gt_u32 vcc, 16, v2")
    E("v_mov_b32 v5, 0x%x" % OOB)
    E.vm("gld", "buffer_load_dwordx4 %s, v4, %s, 0 offen" % (vr(GX, 4), srd(SX)))
    E("v_cndmask_b32 v6, v5, v4, vcc")
    E("v_cndmask_b32 v7, v5, v3, vcc")
    E.vm("gld", "buffer_load_dwordx4 %s, v4, %s, 0 offen offset:512" % (vr(GX + 4, 4), srd(SX)))
    E.vm("gld", "buffer_load_dwordx4 %s, v6, %s, 0 offen offset:1024" % (vr(GX + 8, 4), srd(SX)))
    E.vm("gld", "buffer_load_dwordx4 %s, v3, %s, 0 offen" % (vr(GW, 4), srd(ST0)))
    E.vm("gld", "buffer_load_dwordx4 %s, v3, %s, 0 offen offset:512" % (vr(GW + 4, 4), srd(ST0)))
    E.vm("gld", "buffer_load_dwordx4 %s, v7, %s, 0 offen offset:1024" % (vr(GW + 8, 4), srd(ST0)))
    E("v_lshlrev_b32 v9, 2, v%d" % vL)
    E.vm("dbg", "buffer_load_dword v11, v9, %s, 0 offen sc1" % srd(SDBG))

    def c_move(sig):
        E.wait(vm="c%d" % sig)
        si = CSI[CSLOT[sig]]
        for ks in range(2):
            for n in range(5):
                E.lg("cm%d" % sig, "ds_read_b128 %s, v%d offset:%d" % (cfrag(sig, ks, n), vRC + 3 * ks + si, 2048 * n))

    def c_dma(sig, after=None):
        if after is not None:
            E.wait(lg="cm%d" % after)
        emit_dma("c%d" % sig, dma_c_ops(sig))

    def scale_u(n):
        c = PCF + 2 * n
        for s in range(4):
            ur, ui = U(0, n, s), U(1, n, s)
            E("v_pk_mul_f32 v[2:3], %s, %s op_sel:[1,0] op_sel_hi:[1,1] neg_lo:[1,0] neg_hi:[1,0]" % (vr(c, 2), vr(ui, 2)))
            E("v_pk_mul_f32 %s, %s, %s op_sel_hi:[0,1] neg_lo:[1,0] neg_hi:[1,0]" % (vr(ui, 2), vr(c, 2), vr(ui, 2)))
            E("v_pk_fma_f32 %s, %s, %s, %s %s %s" % (vr(ui, 2), vr(c, 2), vr(ur, 2), vr(ui, 2), BC_HI, NEG0))
            E("v_pk_fma_f32 %s, %s, %s, v[2:3] %s" % (vr(ur, 2), vr(c, 2), vr(ur, 2), BC_LO))

    c_move(0)
    scale_u(0)
    c_dma(3, after=0)
    c_move(1)
    scale_u(1)
    c_dma(4, after=1)
    c_move(2)
    scale_u(2)
    scale_u(3)
    scale_u(4)
    for j in range(15):
        r = ET + 2 + 2 * j
        E("v_pk_mul_f32 v[2:3], %s, %s op_sel_hi:[0,1] neg_hi:[1,0]" % (vr(vCO, 2), vr(r, 2)))
        E("v_pk_fma_f32 %s, %s, %s, v[2:3] %s %s" % (vr(r, 2), vr(vCO, 2), vr(r, 2), BC_HI_SW, NEG0))
    E.wait(vm="gld")
    E("s_mov_b32 s%d, 0xffff0000" % sT0)
    for k in range(12):
        E("v_lshlrev_b32 v2, 16, v%d" % (GX + k))
        E("v_and_b32 v3, s%d, v%d" % (sT0, GX + k))
        E("v_lshlrev_b32 v4, 16, v%d" % (GW + k))
        E("v_and_b32 v5, s%d, v%d" % (sT0, GW + k))
        E("v_pk_mul_f32 v[2:3], v[2:3], v[4:5]")
        E("v_cvt_pk_bf16_f32 v%d, v2, v3" % (GX + k))
    for k in range(12):
        d = 6 if k == 0 else 2
        E("v_lshlrev_b32 v%d, 16, v%d" % (d, GX + k))
        E("v_and_b32 v%d, s%d, v%d" % (d + 1, sT0, GX + k))
        if k:
            E("v_pk_add_f32 v[6:7], v[6:7], v[2:3]")
    E("v_add_f32 v14, v6, v7")
    for sh in (8, 4, 2, 1):
        E("s_nop 1")
        E("v_add_f32_dpp v14, v14, v14 row_ror:%d row_mask:0xf bank_mask:0xf" % sh)
    E("v_mov_b32 v15, v14")
    E("s_nop 1")
    E("v_permlane16_swap_b32 v14, v15")
    E("v_add_f32 v14, v14, v15")
    E("v_cvt_pk_bf16_f32 v14, v14, v14")
    E("v_lshlrev_b32 v14, 16, v14")
    E("v_mul_f32 v14, 0x%x, v14" % (LOG2E | 0x80000000))
    E("v_exp_f32 v14, v14")
    E("s_nop 0")
    E("v_add_f32 v14, 1.0, v14")
    E("v_rcp_f32 v14, v14")
    E("s_nop 0")
    E("v_cvt_pk_bf16_f32 v14, v14, v14")
    E("v_lshlrev_b32 v14, 16, v14")
    E("v_sub_f32 v15, 1.0, v14")
    E("v_cvt_pk_bf16_f32 v15, v15, v15")
    E("v_lshlrev_b32 v15, 16, v15")
    E.vm("gpub", "buffer_store_dwordx2 v[14:15], v%d, %s, 0 offen sc1" % (vG, srd(SWS)))
    E("s_mov_b32 s%d, 0" % sCNT)
    E("s_mov_b32 s%d, 0x01010101" % sT0)
    E.wait(vm="dbg")
    E.label("L_clr")
    E("v_cmp_ne_u32 vcc, s%d, v11" % sT0)
    E("s_add_u32 s%d, s%d, 1" % (sCNT, sCNT))
    E("s_cbranch_vccz L_clr_ok")
    E("s_cmp_gt_u32 s%d, %d" % (sCNT, SPIN))
    E("s_cbranch_scc1 L_clr_ok")
    E("s_sleep 4")
    E("buffer_load_dword v11, v9, %s, 0 offen sc1" % srd(SDBG))
    E("s_waitcnt vmcnt(0)")
    E("s_branch L_clr")
    E.label("L_clr_ok")
    PK = [156 + 2 * k for k in range(12)] + [130, 132, 134]
    E("s_sub_u32 s%d, 16, s%d" % (sT0, sI))
    E("s_mul_i32 s%d, s%d, 640" % (sT0, sT0))
    E("v_lshlrev_b32 v9, 3, v10")
    E("v_add_u32 v9, s%d, v9" % sT0)
    E("s_mov_b32 s%d, 3840" % sE1)
    E("s_mov_b32 s%d, 7680" % sE2)
    E("s_mov_b32 s%d, 0" % sCNT)
    E("s_mov_b64 exec, 0xfffff")
    stamp()
    E.label("L_ep")
    for k in range(15):
        so = ["0", "s%d" % sE1, "s%d" % sE2][k // 6]
        E("buffer_load_dwordx2 %s, v9, %s, %s offen offset:%d sc1" % (vr(PK[k], 2), srd(SE), so, 640 * (k % 6)))
    E.wait_all(vm=True)
    regs = [r for p in PK for r in (p, p + 1)]
    E("v_max3_u32 v2, v%d, v%d, v%d" % tuple(regs[:3]))
    for k in range(3, 29, 2):
        E("v_max3_u32 v2, v2, v%d, v%d" % (regs[k], regs[k + 1]))
    E("v_max_u32 v2, v2, v%d" % regs[29])
    E("v_cmp_eq_u32 vcc, -1, v2")
    E("s_add_u32 s%d, s%d, 1" % (sCNT, sCNT))
    E("s_cbranch_vccz L_ep_ok")
    E("s_cmp_gt_u32 s%d, %d" % (sCNT, SPIN))
    E("s_cbranch_scc0 L_ep")
    E.label("L_ep_ok")
    stamp()

    E(".p2align 3")
    for k in range(13, -1, -1):
        E("v_pk_fma_f32 %s, %s, %s, %s %s" % (vr(PK[k], 2), vr(vA128, 2), vr(PK[k + 1], 2), vr(PK[k], 2), BC_LO))
        E("v_pk_fma_f32 %s, %s, %s, %s %s neg_lo:[0,1,0]" % (vr(PK[k], 2), vr(vA128, 2), vr(PK[k + 1], 2), vr(PK[k], 2), BC_HI_SW))
    E("v_pk_mul_f32 v[2:3], %s, %s op_sel_hi:[0,1] neg_hi:[1,0]" % (vr(vCO, 2), vr(PK[0], 2)))
    E("v_pk_fma_f32 %s, %s, %s, v[2:3] %s %s" % (vr(ET, 2), vr(vCO, 2), vr(PK[0], 2), BC_HI_SW, NEG0))
    for j in range(15):
        t, r = ET + 2 * j, ET + 2 + 2 * j
        E("v_pk_fma_f32 %s, %s, %s, %s %s" % (vr(r, 2), vr(vA8, 2), vr(t, 2), vr(r, 2), BC_LO))
        E("v_pk_fma_f32 %s, %s, %s, %s %s neg_hi:[1,0,0]" % (vr(r, 2), vr(vA8, 2), vr(t, 2), vr(r, 2), BC_HI_SW))
        if j & 1 == 0:
            k = j >> 1
            E.lg("ttw", "ds_write_b128 v13, %s offset:%d" % (vr(ET + 4 * k, 4), (TTAB - ETAB) + 16 * k))
    E("s_mov_b64 exec, -1")
    c_dma(5, after=2)
    E.wait(lg="ttw")
    E("s_barrier")
    Q = 156
    for n in range(5):
        E.lg("ttr%d" % n, "ds_read_b64 %s, v12 offset:%d" % (vr(Q + 4 * n, 2), (TTAB - ETAB) + 2304 * n))
    E("v_and_b32 v2, 15, v%d" % vL)
    E("v_lshrrev_b32 v3, 4, v%d" % vL)
    E("v_bfe_u32 v4, v2, 1, 2")
    E("v_xor_b32 v4, v4, v3")
    E("v_bfe_u32 v5, v2, 3, 1")
    E("v_lshlrev_b32 v5, 1, v5")
    E("v_xor_b32 v4, v4, v5")
    E("v_lshlrev_b32 v4, 4, v4")
    E("s_lshl_b32 s%d, s%d, 11" % (sT0, sW))
    E("s_add_u32 s%d, s%d, %d" % (sT0, sT0, TRS))
    E("v_lshl_add_u32 v4, v2, 6, v4")
    E("v_add_u32 v9, s%d, v4" % sT0)
    E("v_lshrrev_b32 v4, 2, v2")
    E("v_lshl_add_u32 v5, v3, 3, v4")
    E("v_lshlrev_b32 v5, 6, v5")
    E("v_lshrrev_b32 v4, 1, v4")
    E("v_bfe_u32 v6, v2, 1, 1")
    E("v_xor_b32 v4, v4, v6")
    E("v_lshl_add_u32 v5, v4, 4, v5")
    E("v_and_b32 v4, 1, v2")
    E("v_lshl_add_u32 v5, v4, 3, v5")
    E("v_and_b32 v4, 1, v3")
    E("v_lshl_add_u32 v5, v4, 5, v5")
    E("v_add_u32 v11, s%d, v5" % sT0)
    E("v_xor_b32 v13, 32, v11")
    E("v_and_b32 v4, 31, v%d" % vL)
    E("v_lshlrev_b32 v4, 4, v4")
    E("v_lshrrev_b32 v5, 5, v%d" % vL)
    E("v_mul_u32_u24 v5, %d, v5" % MAT)
    E("v_add_u32 v8, v4, v5")
    E("s_lshr_b32 s%d, s%d, 3" % (sT0, sJ))
    E("s_mul_i32 s%d, s%d, %d" % (sHB0, sT0, 2 * MAT))
    E("s_lshl_b32 s%d, s%d, 3" % (sT0, sI))
    E("s_lshl_b32 s%d, s%d, 1" % (sT1, sW))
    E("s_add_u32 s%d, s%d, s%d" % (sT0, sT0, sT1))
    E("s_mul_i32 s%d, s%d, 20480" % (sT0, sT0))
    E("s_add_u32 s%d, s%d, s%d" % (sHB0, sHB0, sT0))
    E("s_and_b32 s%d, s%d, 7" % (sT0, sJ))
    E("s_mul_i32 s%d, s%d, 2560" % (sT0, sT0))
    E("s_add_u32 s%d, s%d, s%d" % (sHB0, sHB0, sT0))
    E("s_add_u32 s%d, s%d, 20480" % (sHB1, sHB0))
    DV = 96
    TRV = 112

    def h_store(n):
        E.wait(lg="tr%d" % n)
        for mp in range(2):
            E.vm("hst", "buffer_store_dwordx4 %s, v8, %s, s%d offen offset:%d sc1" % (vr(TRV + 8 * (n & 1) + 4 * mp, 4), srd(SWS), sHB0 + mp, 512 * n))

    E(".p2align 3")
    for n in range(5):
        a = PA + 4 * n
        q = Q + 4 * n
        E.wait(lg="ttr%d" % n)
        E("v_mov_b32 v%d, v%d" % (q + 2, q + 1))
        E("s_nop 0")
        E("v_fma_f32 v%d, v%d, v%d, v%d" % (q + 3, a + 2, q + 1, ELO + 2 * n + 1))
        E("v_fma_f32 v%d, v%d, v%d, v%d" % (q + 1, a + 2, q, ELO + 2 * n))
        E("v_fma_f32 v%d, -v%d, v%d, v%d" % (q + 3, a + 3, q, q + 3))
        E("v_fma_f32 v%d, v%d, v%d, v%d" % (q + 1, a + 3, q + 2, q + 1))
        pre, pim = q, q + 2
        for s in range(4):
            scan_step(U(0, n, s), U(1, n, s), pre, pim, U(0, n, s), U(1, n, s), a, conj=True)
            pre, pim = U(0, n, s), U(1, n, s)
        dv = DV + 8 * (n & 1)
        for kind in range(2):
            for h in range(2):
                E("v_cvt_pk_bf16_f32 v%d, v%d, v%d" % (dv + 4 * kind + 2 * h, U(kind, n, 0) + h, U(kind, n, 1) + h))
                E("v_cvt_pk_bf16_f32 v%d, v%d, v%d" % (dv + 4 * kind + 2 * h + 1, U(kind, n, 2) + h, U(kind, n, 3) + h))
            E.lg("trw", "ds_write_b128 v9, %s offset:%d" % (vr(dv + 4 * kind, 4), 1024 * kind))
        for mp in range(2):
            for half in range(2):
                E.lg("tr%d" % n, "ds_read_b64_tr_b16 %s, v%d offset:%d" % (vr(TRV + 8 * (n & 1) + 4 * mp + 2 * half, 2), 11 if (mp ^ half) == 0 else 13, 256 * half))
        if n:
            h_store(n - 1)
    h_store(4)
    stamp()

    XP, GP, DS = 16, 32, 48
    E("v_mul_u32_u24 v2, 52, v%d" % vL)
    E("v_lshrrev_b32 v2, 10, v2")
    E("v_mul_u32_u24 v3, 20, v2")
    E("v_sub_u32 v3, v%d, v3" % vL)
    E("s_lshl_b32 s%d, s%d, 2" % (sT0, sW))
    E("v_add_u32 v2, s%d, v2" % sT0)
    E("v_min_u32 v5, 15, v%d" % vL)
    E("v_add_u32 v5, 4, v5")
    E("s_add_u32 s%d, s%d, 3" % (sT1, sT0))
    E("v_mov_b32 v4, s%d" % sT1)
    E("s_mul_i32 s%d, s%d, 160" % (sT2, sDT))
    E("s_lshl_b32 s%d, s%d, 6" % (sT0, sTT))
    E("v_cmp_gt_u32 vcc, 16, v%d" % vL)
    for k in range(4):
        E("s_mov_b32 s%d, %d" % (sXS + k, 20480 * k))
        E("s_mov_b32 s%d, %d" % (sOS + k, 40960 * k))
    for pi, (row, pc) in enumerate(((2, 3), (4, 5))):
        E("v_lshl_add_u32 v6, v%d, 3, s%d" % (pc, sT2))
        E("v_add_u32 v7, s%d, v%d" % (sT0, row))
        E.vm("ds", "buffer_load_dwordx2 %s, v6, %s, 0 offen" % (vr(DS + 4 * pi, 2), srd(ST1)))
        E.vm("ds", "buffer_load_dwordx2 %s, v6, %s, 0 offen" % (vr(DS + 4 * pi + 2, 2), srd(ST2)))
        E("v_mul_u32_u24 v9, 1280, v7")
        E("v_add_u32 v9, v9, v6")
        for s in range(4):
            E.vm("xp", "buffer_load_dwordx2 %s, v9, %s, s%d offen" % (vr(XP + 4 * s + 2 * pi, 2), srd(SX), sXS + s))
        E("v_lshlrev_b32 v%d, 1, v9" % (vOA + pi))
        E("v_lshlrev_b32 v%d, 3, v7" % (10 + 2 * pi))
        E("v_add_u32 v%d, %d, v%d" % (10 + 2 * pi, G_OFF, 10 + 2 * pi))
        E("v_bfe_u32 v9, v%d, 1, 2" % row)
        E("v_xor_b32 v9, v9, v%d" % pc)
        E("v_lshlrev_b32 v9, 4, v9")
        E("v_mul_u32_u24 v7, 320, v%d" % row)
        E("v_add3_u32 v%d, v7, v9, s%d" % (vPRA + pi, sOS + 1))
    E("v_mov_b32 v6, 0x%x" % OOB)
    E("v_cndmask_b32 v%d, v6, v%d, vcc" % (vOB, vOB))
    E("v_and_b32 v2, 15, v%d" % vL)
    E("v_add_u32 v3, s%d, v2" % sT0)
    E("s_lshr_b32 s%d, s%d, 1" % (sT1, sW))
    E("s_lshl_b32 s%d, s%d, 2" % (sT1, sT1))
    E("s_add_u32 s%d, s%d, %d" % (sT1, sT1, G_OFF))
    E("v_lshl_add_u32 v13, v3, 3, s%d" % sT1)
    E("v_lshrrev_b32 v3, 4, v%d" % vL)
    E("v_bfe_u32 v4, v2, 1, 2")
    E("v_xor_b32 v3, v3, v4")
    E("v_lshlrev_b32 v3, 4, v3")
    E("v_mul_u32_u24 v2, 320, v2")
    E("s_add_u32 s%d, s%d, %d" % (sT1, sM0B, RED - 16384))
    E("v_add3_u32 v%d, v2, v3, s%d" % (vPW, sT1))
    E("s_mul_i32 s%d, s%d, %d" % (sT1, sW, MAT))
    E("s_mul_i32 s%d, s%d, %d" % (sT2, sTT, 4 * 20480))
    E("s_add_u32 s%d, s%d, s%d" % (sT1, sT1, sT2))
    E("v_lshl_add_u32 v%d, v%d, 4, s%d" % (vHL, vL, sT1))
    c_move(3)
    c_move(4)
    c_dma(6, after=3)
    c_move(5)
    c_dma(7, after=4)
    E("v_mov_b32 v6, 1")
    E.wait(vm=("hst", "gpub"))
    E("s_barrier")
    E.vm("flag", "buffer_store_dword v6, v%d, %s, 0 offen sc1" % (vF, srd(SWS)))
    stamp()

    def g_loads(raw=False):
        f = E if raw else (lambda t: E.vm("gl", t))
        for s in range(4):
            for pi in range(2):
                f("buffer_load_dwordx2 %s, v%d, %s, 0 offen offset:%d sc1" % (vr(GP + 4 * s + 2 * pi, 2), 10 + 2 * pi, srd(SWS), 128 * s))
            f("buffer_load_dword v%d, v13, %s, 0 offen offset:%d sc1" % (G4 + s, srd(SWS), 128 * s))
    g_loads()
    c_dma(8, after=5)
    c_move(6)
    if rot2:
        E("s_lshl_b32 s%d, s%d, 11" % (sH, sDT))
    else:
        E("s_mov_b32 s%d, 0" % sH)
    for k in range(1, 10):
        E("s_add_u32 s%d, s%d, 2048" % (sH + k, sH + k - 1))
        E("s_cmp_eq_u32 s%d, 20480" % (sH + k))
        E("s_cselect_b32 s%d, 0, s%d" % (sH + k, sH + k))
    c_dma(9, after=6)
    E("s_mov_b32 s%d, 0xffff0000" % sT0)
    E.wait(vm=("ds", "xp"))
    for k in range(8):
        E("v_lshlrev_b32 v%d, 16, v%d" % (56 + 2 * k, DS + k))
        E("v_and_b32 v%d, s%d, v%d" % (57 + 2 * k, sT0, DS + k))
    E("s_mov_b32 s%d, 0" % sCNT)
    E.wait(vm="gl")
    E.label("L_g")
    gr = list(range(GP, GP + 16, 2)) + list(range(G4, G4 + 4))
    E("v_max3_u32 v2, v%d, v%d, v%d" % tuple(gr[:3]))
    for k in range(3, 11, 2):
        E("v_max3_u32 v2, v2, v%d, v%d" % (gr[k], gr[k + 1]))
    E("v_max_u32 v2, v2, v%d" % gr[11])
    for k in range(0, 8, 2):
        E("v_max3_u32 v2, v2, v%d, v%d" % (gr[k] + 1, gr[k + 1] + 1))
    E("v_cmp_eq_u32 vcc, -1, v2")
    E("s_add_u32 s%d, s%d, 1" % (sCNT, sCNT))
    E("s_cbranch_vccz L_g_ok")
    E("s_cmp_gt_u32 s%d, %d" % (sCNT, SPIN))
    E("s_cbranch_scc1 L_g_ok")
    E("s_sleep 2")
    g_loads(raw=True)
    E("s_waitcnt vmcnt(0)")
    E("s_branch L_g")
    E.label("L_g_ok")
    for s in range(4):
        for pi in range(2):
            x = XP + 4 * s + 2 * pi
            g = GP + 4 * s + 2 * pi
            sk = SKIP + 8 * s + 4 * pi
            for h in range(2):
                E("v_lshlrev_b32 v2, 16, v%d" % (x + h))
                E("v_and_b32 v3, s%d, v%d" % (sT0, x + h))
                E("v_pk_mul_f32 v[4:5], v[2:3], %s" % vr(56 + 8 * pi + 2 * h, 2))
                E("v_pk_mul_f32 v[6:7], v[2:3], %s" % vr(56 + 8 * pi + 4 + 2 * h, 2))
                E("v_cvt_pk_bf16_f32 v4, v4, v5")
                E("v_cvt_pk_bf16_f32 v6, v6, v7")
                E("v_and_b32 v5, s%d, v4" % sT0)
                E("v_lshlrev_b32 v4, 16, v4")
                E("v_and_b32 v7, s%d, v6" % sT0)
                E("v_lshlrev_b32 v6, 16, v6")
                E("v_pk_mul_f32 %s, %s, v[4:5] op_sel_hi:[0,1]" % (vr(sk + 2 * h, 2), vr(g, 2)))
                E("v_pk_fma_f32 %s, %s, v[6:7], %s %s" % (vr(sk + 2 * h, 2), vr(g, 2), vr(sk + 2 * h, 2), BC_HI))

    regk = [(sg, ks) for sg in range(7) for ks in range(2)]
    ldsk = [(sg, ks) for sg in range(7, 10) for ks in range(2)]
    order = []
    for P in range(20):
        order.append(ldsk.pop(0) if P % 3 == 2 else regk.pop(0))
    jitpos = [P for P in range(20) if order[P][0] >= 7]

    def jit_read(P, n, tag):
        sg, ks = order[P]
        E.lg(tag, "ds_read_b128 %s, v%d offset:%d" % (vr(CJ + 4 * n, 4), vRC + 3 * ks + CSI[CSLOT[sg]], 2048 * n))

    def h_load(s, P):
        sg, ks = order[P]
        E.vm("h%d_%d" % (s, P), "buffer_load_dwordx4 %s, v%d, %s, s%d offen offset:%d sc1" % (vr(HBUF + 4 * P, 4), vHL, srd(SWS), sH + sg, 1024 * ks))

    E.wait(vm="c7", lg="cm6")
    for n in range(5):
        jit_read(jitpos[0], n, "j0_%d_%d" % (jitpos[0], n))
    stamp()
    E("s_cmp_lg_u32 s%d, 0" % sW)
    E("s_cbranch_scc1 L_f_done")
    E("s_lshr_b32 s%d, s%d, 1" % (sT0, sTT))
    E("s_lshl_b32 s%d, s%d, 7" % (sT0, sT0))
    E("s_add_u32 s%d, s%d, %d" % (sT0, sT0, F_OFF))
    E("v_lshlrev_b32 v2, 2, v%d" % vL)
    E("s_mov_b32 s%d, 0" % sCNT)
    E("s_mov_b64 exec, 0xffff")
    E.label("L_f")
    E("buffer_load_dword v3, v2, %s, s%d offen sc1" % (srd(SWS), sT0))
    E("s_waitcnt vmcnt(0)")
    E("v_cmp_ne_u32 vcc, 1, v3")
    E("s_add_u32 s%d, s%d, 1" % (sCNT, sCNT))
    E("s_cbranch_vccz L_f_ok")
    E("s_cmp_gt_u32 s%d, %d" % (sCNT, SPIN))
    E("s_cbranch_scc0 L_f")
    E.label("L_f_ok")
    E("s_mov_b64 exec, -1")
    E.label("L_f_done")
    E("s_barrier")
    stamp()

    for P in range(20):
        h_load(0, P)
    E("v_add_u32 v%d, 20480, v%d" % (vHL, vHL))
    E.wait(vm=("c8", "c9"))
    side = {}
    issueG.clear()

    def final_ops(s):
        A = ACC2 + 20 * (s & 1)
        ops = []
        for k in range(10):
            g = G4 + (s & ~1)
            sel = "op_sel_hi:[0,1]" if (s & 1) == 0 else "op_sel:[1,0] op_sel_hi:[1,1]"
            ops.append((4 + k, lambda k=k, g=g, sel=sel: E("v_pk_mul_f32 %s, %s, %s %s" % (vr(A + 2 * k, 2), vr(g, 2), vr(A + 2 * k, 2), sel))))
        for n in range(5):
            ops.append((7 + 2 * n, lambda n=n: E.lg("pw%d" % s, "ds_write_b128 v%d, %s offset:%d" % (vPW, vr(A + 4 * n, 4), 20480 * (s & 1) + 64 * n))))

        def bar():
            E.wait(lg="pw%d" % s)
            E("s_barrier")
        ops.append((24, bar))
        for pi in range(2):
            base = 25 + 22 * pi
            sk = SKIP + 8 * s + 4 * pi
            for w in range(4):
                ops.append((base + w, lambda w=w, pi=pi: E.lg("pr%d_%d" % (s, pi), "ds_read_b128 %s, v%d offset:%d" % (vr(PART + 4 * w, 4), vPRA + pi, 20480 * (s & 1) + 5120 * w))))
            ops.append((base + 11, lambda pi=pi: E.wait(lg="pr%d_%d" % (s, pi))))
            for w in range(4):
                for h in range(2):
                    ops.append((base + 11 + 2 * w + h, lambda w=w, h=h, sk=sk: E("v_pk_add_f32 %s, %s, %s" % (vr(sk + 2 * h, 2), vr(sk + 2 * h, 2), vr(PART + 4 * w + 2 * h, 2)))))
            fl = outflag if s < 3 else lastflag
            ops.append((base + 20, lambda pi=pi, sk=sk, fl=fl: E.vm("out", "buffer_store_dwordx4 %s, v%d, %s, s%d offen %s" % (vr(sk, 4), vOA + pi, srd(SOUT), sOS + s, fl))))
        return ops

    for s in range(4):
        for P in range(20):
            G = 100 * s + 5 * P
            if s < 3:
                at(G + 4, lambda s=s, P=P: h_load(s + 1, P))
                if P == 19:
                    at(G + 4, lambda: E("v_add_u32 v%d, 20480, v%d" % (vHL, vHL)))
            if P in jitpos:
                k = jitpos.index(P)
                s2, P2 = (s, jitpos[k + 1]) if k + 1 < len(jitpos) else (s + 1, jitpos[0])
                if s2 < 4:
                    for n in range(5):
                        at(G + n + 2, lambda n=n, s2=s2, P2=P2: jit_read(P2, n, "j%d_%d_%d" % (s2, P2, n)))
        if s:
            for o, fn in final_ops(s - 1):
                at(100 * s + o, fn)
    for s in range(4):
        A = ACC2 + 20 * (s & 1)
        for P in range(20):
            sg, ks = order[P]
            E.wait(vm="h%d_%d" % (s, P))
            if sg >= 7:
                E.wait(lg=["j%d_%d_%d" % (s, P, n) for n in range(5)])
            for n in range(5):
                G = 100 * s + 5 * P + n
                cf = cfrag(sg, ks, n) or vr(CJ + 4 * n, 4)
                d = vr(A + 4 * n, 4)
                E("v_mfma_f32_16x16x32_bf16 %s, %s, %s, %s" % (d, cf, vr(HBUF + 4 * P, 4), d if P else "0"))
                for fn in side.pop(G, []):
                    fn()
    assert not side, sorted(side)
    stamp()
    E("s_nop 4")
    for o, fn in sorted(final_ops(3), key=lambda t: t[0]):
        fn()
    if stamps:
        stamp()
        E.wait_all(vm=True)
        stamp()
        E("s_memrealtime s[100:101]")
        E("s_waitcnt lgkmcnt(0)")
        E("s_mov_b32 s%d, s100" % (sSTAMP + 18))
        E("s_lshl_b32 s%d, s2, 2" % sT0)
        E("s_add_u32 s%d, s%d, s%d" % (sT0, sT0, sW))
        E("s_lshl_b32 s%d, s%d, 7" % (sT0, sT0))
        E("s_add_u32 s%d, s%d, %d" % (sT0, sT0, ST_OFF))
        E("v_mov_b32 v2, 0")
        for k in range(20):
            E("v_mov_b32 v3, s%d" % (sSTAMP + k))
            E("buffer_store_dword v3, v2, %s, s%d offen offset:%d" % (srd(SWS), sT0, 4 * k))
        E("s_waitcnt vmcnt(0)")
    E.label("L_end")
    E.label("L_last")
    body = E.text()
    probs = check_hazards(body)
    assert not probs, "hazards"
    return body


HEADER = open("gated_mix__ssm_conv_s5__ssm_conv_s5__prompt.s.ref").read()


def full_file(**kw):
    body = generate(**kw)
    head = HEADER[:HEADER.index("; Override launch geometry")]
    out = head
    out += "; Generated by a hand-written scheduler script (fused two-phase kernel, one workgroup per CU).\n"
    out += "; @launch grid=(256,1,1) block=(256,1,1) lds=163840\n"
    out += '.amdgcn_target "amdgcn-amd-amdhsa--gfx950"\n.text\n.globl %s\n.p2align 8\n.type %s,@function\n%s:\n' % (KNAME, KNAME, KNAME)
    out += body + "\ns_endpgm\n"
    out += """.section .rodata,"a"
.p2align 6
.amdhsa_kernel %s
  .amdhsa_next_free_vgpr 512
  .amdhsa_next_free_sgpr 102
  .amdhsa_accum_offset 256
  .amdhsa_group_segment_fixed_size 0
  .amdhsa_kernarg_size 176
  .amdhsa_user_sgpr_count 2
  .amdhsa_user_sgpr_kernarg_segment_ptr 1
  .amdhsa_system_sgpr_workgroup_id_x 1
  .amdhsa_float_denorm_mode_32 3
.end_amdhsa_kernel
""" % KNAME
    return out


if __name__ == "__main__":
    import ast
    kw = {}
    path = sys.argv[1]
    for a in sys.argv[2:]:
        k, v = a.split("=", 1)
        try:
            kw[k] = ast.literal_eval(v)
        except Exception:
            kw[k] = v
    open(path, "w").write(full_file(**kw))
    print("wrote", path)
```

```python
import re


class Emitter:
    def __init__(self):
        self.lines = []
        self.vmq = []
        self.lgq = []
        self.nlabel = 0

    def __call__(self, text):
        self.lines.append(text)

    def c(self, text):
        self.lines.append("; " + text)

    def label(self, name):
        self.lines.append(name + ":")

    def vm(self, tag, text):
        self.lines.append(text)
        self.vmq.append(tag)

    def lg(self, tag, text):
        self.lines.append(text)
        self.lgq.append(tag)

    def _need(self, q, tags):
        last = -1
        for i, t in enumerate(q):
            if t in tags:
                last = i
        return last

    def wait(self, vm=(), lg=()):
        if isinstance(vm, str):
            vm = (vm,)
        if isinstance(lg, str):
            lg = (lg,)
        parts = []
        iv = self._need(self.vmq, set(vm)) if vm != "all" else len(self.vmq) - 1
        if iv >= 0:
            n = len(self.vmq) - 1 - iv
            assert n <= 63, "vmcnt overflow %d" % n
            parts.append("vmcnt(%d)" % n)
            self.vmq = self.vmq[iv + 1:]
        il = self._need(self.lgq, set(lg))
        if il >= 0:
            n = len(self.lgq) - 1 - il
            if n > 15:
                n = 15
                il = len(self.lgq) - 1 - n
            parts.append("lgkmcnt(%d)" % n)
            self.lgq = self.lgq[il + 1:]
        if parts:
            self.lines.append("s_waitcnt " + " ".join(parts))
            return True
        return False

    def wait_all(self, vm=False, lg=False):
        parts = []
        if vm:
            parts.append("vmcnt(0)")
            self.vmq = []
        if lg:
            parts.append("lgkmcnt(0)")
            self.lgq = []
        self.lines.append("s_waitcnt " + " ".join(parts))

    def outstanding_lg(self, tag):
        return tag in self.lgq

    def outstanding_vm(self, tag):
        return tag in self.vmq

    def text(self):
        return "\n".join(self.lines)

    def play(self, fg, bg=None, lead=0, tail=0):
        items = fg.items
        groups = bg.groups() if bg is not None else []
        n = len(items) - lead - tail
        pos = {}
        for k, g in enumerate(groups):
            p = lead + (k * n) // max(1, len(groups))
            pos.setdefault(p, []).append(g)
        for i, (m, a, kw) in enumerate(items):
            for g in pos.pop(i, []):
                for (m2, a2, kw2) in g:
                    getattr(self, m2)(*a2, **kw2)
            getattr(self, m)(*a, **kw)
        for p in sorted(pos):
            for g in pos[p]:
                for (m2, a2, kw2) in g:
                    getattr(self, m2)(*a2, **kw2)


class Rec:
    def __init__(self):
        self.items = []
        self.cuts = []

    def __call__(self, text):
        self.items.append(("__call__", (text,), {}))

    def vm(self, tag, text):
        self.items.append(("vm", (tag, text), {}))

    def lg(self, tag, text):
        self.items.append(("lg", (tag, text), {}))

    def wait(self, **kw):
        self.items.append(("wait", (), kw))

    def mark(self):
        self.cuts.append(len(self.items))

    def groups(self):
        out = []
        a = 0
        for c in self.cuts + [len(self.items)]:
            if c > a:
                out.append(self.items[a:c])
            a = c
        return out


_REG = re.compile(r"(-|abs\()?\b([vas])(\d+)\b|\b([vas])\[(\d+):(\d+)\]")


def _regs(op):
    out = []
    for m in _REG.finditer(op):
        if m.group(2):
            out.append((m.group(2), int(m.group(3))))
        else:
            for k in range(int(m.group(5)), int(m.group(6)) + 1):
                out.append((m.group(4), k))
    for nm in ("vcc", "exec", "m0"):
        if re.search(r"\b%s\b" % nm, op):
            out.append((nm, 0))
    return out


TRANS = ("v_exp_f32", "v_log_f32", "v_rcp_f32", "v_rsq_f32", "v_sqrt_f32", "v_sin_f32", "v_cos_f32")


def parse(line):
    line = line.split(";")[0].strip()
    if not line or line.endswith(":") or line.startswith("."):
        return None
    parts = line.split(None, 1)
    op = parts[0]
    rest = parts[1] if len(parts) > 1 else ""
    ops = [o.strip() for o in re.split(r",(?![^\[]*\])", rest)] if rest else []
    d = dict(op=op, ops=ops, line=line, w=[], r=[])
    is_valu = op.startswith("v_")
    d["valu"] = is_valu and not op.startswith("v_mfma")
    d["mfma"] = op.startswith("v_mfma")
    d["vmem"] = op.startswith("buffer_") or op.startswith("global_")
    d["ds"] = op.startswith("ds_")
    d["salu"] = op.startswith("s_")
    if op.startswith("v_mfma"):
        d["w"] = _regs(ops[0])
        d["ra"] = _regs(ops[1]) + _regs(ops[2])
        d["rc"] = _regs(ops[3])
        d["r"] = d["ra"] + d["rc"]
    elif op.startswith("v_cmp"):
        d["w"] = _regs(ops[0])
        d["r"] = sum((_regs(o) for o in ops[1:]), [])
    elif op.startswith("v_permlane") and "swap" in op:
        d["w"] = _regs(ops[0]) + _regs(ops[1])
        d["r"] = list(d["w"])
    elif is_valu:
        d["w"] = _regs(ops[0])
        d["r"] = sum((_regs(o) for o in ops[1:]), [])
        if op.startswith(("v_fmac", "v_dot2c")) or "dpp" in op or "row_" in line:
            d["r"] += d["w"]
        if op.startswith(("v_add_co", "v_addc_co", "v_sub_co")):
            d["w"] += _regs(ops[1])
    elif d["vmem"]:
        lds = re.search(r"\blds\b", line) is not None
        if "store" in op or ("atomic" in op):
            d["r"] = sum((_regs(o) for o in ops), [])
            d["store"] = True
            if op.startswith("buffer_"):
                d["sdata"] = _regs(ops[0])
            else:
                d["sdata"] = _regs(ops[1])
        elif lds:
            d["r"] = sum((_regs(o) for o in ops), []) + [("m0", 0)]
            d["ldsdma"] = True
        elif op in ("buffer_wbl2", "buffer_inv"):
            pass
        else:
            d["w"] = _regs(ops[0])
            d["r"] = sum((_regs(o) for o in ops[1:]), [])
    elif d["ds"]:
        if "read" in op or "permute" in op or "swizzle" in op:
            d["w"] = _regs(ops[0])
            d["r"] = sum((_regs(o) for o in ops[1:]), [])
        else:
            d["r"] = sum((_regs(o) for o in ops), [])
    elif d["salu"]:
        if op.startswith(("s_cmp", "s_cbranch", "s_branch", "s_waitcnt", "s_barrier", "s_nop", "s_sleep", "s_endpgm", "s_setprio")):
            d["r"] = sum((_regs(o) for o in ops), [])
        else:
            d["w"] = _regs(ops[0]) if ops else []
            d["r"] = sum((_regs(o) for o in ops[1:]), [])
            if "saveexec" in op:
                d["w"].append(("exec", 0))
    return d


def check_hazards(text, verbose=True):
    ins = [p for p in (parse(l) for l in text.splitlines()) if p]
    problems = []

    def states_between(i, j):
        n = 0
        for k in range(i + 1, j):
            if ins[k]["op"] == "s_nop":
                n += int(ins[k]["ops"][0], 0) + 1
            else:
                n += 1
        return n

    W = 24
    for j, b in enumerate(ins):
        for i in range(max(0, j - W), j):
            a = ins[i]
            need = 0
            why = ""
            aw = set(a["w"])
            br = set(b["r"])
            bw = set(b["w"])
            if a["mfma"]:
                passes = 4 if "16x16x32" in a["op"] else 8
                if b["mfma"]:
                    if aw & set(b["ra"]):
                        need, why = {4: 8, 8: 12}[passes], "mfma D -> mfma A/B"
                    elif aw & set(b["rc"]) and a["w"] != b["rc"]:
                        need, why = {4: 6, 8: 10}[passes], "mfma D -> mfma C partial"
                elif (b["valu"] or b["vmem"] or b["ds"]) and (aw & (br | bw)):
                    need, why = {4: 8, 8: 12}[passes], "mfma D -> valu/mem"
                if b["valu"] and set(a["rc"]) & bw and not need:
                    need, why = {4: 3, 8: 7}[passes], "mfma C read -> valu write"
            if a["valu"]:
                vw = {r for r in aw if r[0] in "va" and r[0] not in ("vcc",)}
                vw = {r for r in vw if r[0] in ("v", "a")}
                sw = {r for r in aw if r[0] in ("s", "vcc")}
                if b["mfma"] and vw & br:
                    need, why = max(need, 2), "valu -> mfma"
                if b["op"].startswith(("v_readlane", "v_readfirstlane")) and vw & br:
                    need, why = max(need, 1), "valu -> readlane"
                if b["op"].startswith("v_permlane") and vw & br:
                    need, why = max(need, 2), "valu -> permlane"
                if ("row_" in b["line"] or "dpp" in b["op"] or "quad_perm" in b["line"]) and vw & br:
                    need, why = max(need, 2), "valu -> dpp"
                if a["op"].startswith(TRANS) and b["valu"] and not b["op"].startswith(TRANS) and vw & br:
                    need, why = max(need, 1), "trans -> valu"
                if b["vmem"] and sw & br:
                    need, why = max(need, 5), "valu sgpr -> vmem"
                if b["valu"] and sw & br:
                    need, why = max(need, 2), "valu sgpr/vcc -> valu"
                if ("exec", 0) in aw and (b["mfma"]):
                    need, why = max(need, 4), "valu exec -> mfma"
            if a["salu"] and ("m0", 0) in aw and b.get("ldsdma"):
                need, why = max(need, 1), "m0 -> lds dma"
            if a.get("store") and len(a["sdata"]) >= 3 and set(a["sdata"]) & bw:
                need, why = max(need, 2 if b["valu"] else 1), "store data WAR"
            if need and states_between(i, j) < need:
                problems.append("%s: need %d have %d\n    %s\n    %s" % (why, need, states_between(i, j), a["line"], b["line"]))
    if verbose:
        for p in problems:
            print("HAZARD", p)
    return problems
```

```python
import sys
from asmlib import Emitter, Rec, check_hazards

KNAME = "gated_mix__ssm_conv_s5__ssm_conv_s5__prompt_kernel"

MAT = 128 * 40 * 512
E_OFF = 4 * MAT
G_OFF = E_OFF + 16 * 16 * 640
F_OFF = G_OFF + 2048 * 16
R_OFF = F_OFF + 256 * 128
N_OFF = R_OFF + 256 * 128
ST_OFF = N_OFF + 128
TAGK = 0x9E3779B9
OOB = 0x7FF00000
SLOT = 40960
ETAB = SLOT
TTAB = SLOT + 11520
TRS = SLOT + 23040
PTAB = SLOT + 36864
RED = SLOT
SPIN = 1 << 16

SX, SB, SC, SWS, SE, SDBG, SOUT, ST0, ST1, ST2 = 4, 8, 12, 16, 20, 24, 28, 32, 36, 40
sW = 3
sI, sJ, sTT, sDT = 88, 89, 90, 91
sM0X, sM0B, sM0C = 92, 93, 94
sK, sKC = 95, 96
sT0, sT1, sT2 = 97, 98, 99
sCNT = 100
sR2 = 101
sH = 44
sHB0, sHB1 = 54, 55
sE1, sE2 = 56, 57
sXS = 58
sOS = 62
sGS = 66
sSTAMP = 70


def srd(r):
    return "s[%d:%d]" % (r, r + 3)


def vr(r, n=1):
    return "v%d" % r if n == 1 else "v[%d:%d]" % (r, r + n - 1)


def ar(r, n=1):
    return "a%d" % r if n == 1 else "a[%d:%d]" % (r, r + n - 1)


vL = 1
ACC = 16
HBUF = 16
BF = 96
AF = 136
vRA, vRB, vDX = 156, 164, 172
vDB = 248
vPC = 238
vRC = 180
vN = 186
vTW, vTD = 176, 177
GQ = list(range(2, 14)) + list(range(248, 252))
vHL, vPW, vPRA, vPRB, vOA, vOB = 190, 191, 192, 193, 194, 195
vE, vG, vF, vHB = 196, 197, 198, 199
PA, PCF = 200, 220
SKIP = 200
vA8, vA128, vCO = 232, 234, 236
ACC2 = 96
CJ = 136
CV = 156
PART = 232


def acc(mt, nt):
    return ACC + (mt * 10 + nt) * 4


def U(kind, n, s):
    return acc(s >> 1, n + 5 * kind) + 2 * (s & 1)


def cfrag(sig, ks, n):
    f = ks * 5 + n
    if sig < 6:
        return ar(40 * sig + 4 * f, 4)
    if sig == 6:
        return ar(240 + 4 * f, 4) if f < 4 else vr(CV + 4 * (f - 4), 4)
    return None


CSLOT = {0: 2, 1: 3, 2: 0, 3: 2, 4: 3, 5: 0, 6: 2, 7: 3, 8: 0, 9: 2}
CSI = {0: (0, 0), 1: (0, SLOT), 2: (1, 0), 3: (2, 0)}

BC_LO = "op_sel_hi:[0,1,1]"
BC_HI = "op_sel:[1,0,0] op_sel_hi:[1,1,1]"
BC_HI_SW = "op_sel:[1,1,0] op_sel_hi:[1,0,1]"
NEG0 = "neg_lo:[1,0,0] neg_hi:[1,0,0]"
LOG2E = 0x3FB8AA3B
LOG2E_LO = 0x32A5705F
LN2 = 0x3F317218


def generate(mapmode=2, rot1=(1, 3), rot2=3, rots=0, stamps=False, outflag="sc1", lastflag="sc1", dmaflag="", cflag="",
             fine=(), npro=2, jit0=4, plan=((0,), (1,), (2, 3, 4), (5,), (6, 7), (8, 9)), probe=0, hflag='sc1', pf=1, xflag=None, touch=0):
    E = Emitter()
    names = []

    def stamp(name="", lvl=1):
        if stamps and (lvl == 1 or name in fine):
            k = len(names)
            names.append(name)
            assert k < 15
            E("s_memtime s[%d:%d]" % (sT1, sT1 + 1))
            E.wait_all(lg=True)
            E("s_mov_b32 s%d, s%d" % (sSTAMP + k, sT1))

    def estamp(k):
        if stamps:
            E("s_memtime s[%d:%d]" % (sT1, sT1 + 1))
            E("s_waitcnt lgkmcnt(0)")
            E("v_mov_b32 v%d, s%d" % (253 + k, sT1))

    def cmul(dst, x, y):
        E("v_pk_mul_f32 %s, %s, %s op_sel_hi:[0,1]" % (vr(dst, 2), vr(x, 2), vr(y, 2)))
        E("v_pk_fma_f32 %s, %s, %s, %s %s neg_lo:[0,1,0]" % (vr(dst, 2), vr(x, 2), vr(y, 2), vr(dst, 2), BC_HI_SW))

    def mod10(r, t):
        E("s_mul_i32 s%d, s%d, 6554" % (t, r))
        E("s_lshr_b32 s%d, s%d, 16" % (t, t))
        E("s_mul_i32 s%d, s%d, 10" % (t, t))
        E("s_sub_u32 s%d, s%d, s%d" % (r, r, t))

    E("s_cmp_ge_u32 s2, 256")
    E("s_cbranch_scc1 L_end")
    E("s_load_dwordx16 s[44:59], s[0:1], 0")
    E("s_load_dwordx16 s[60:75], s[0:1], 64")
    E("s_load_dwordx8 s[76:83], s[0:1], 128")
    E("s_load_dwordx4 s[84:87], s[0:1], 160")
    if stamps:
        E("s_memrealtime s[16:17]")
        E("s_memtime s[18:19]")
    E("s_getpc_b64 s[98:99]")
    E.label("L_pc")
    E.c("pull this kernel's own code into L2 while the first tiles are fetched (1 KB per workgroup)")
    E("s_lshr_b32 s%d, s2, 3" % sKC)
    E("v_min_u32 v2, 7, v0")
    E("v_lshl_add_u32 v2, s%d, 3, v2" % sKC)
    E("v_lshlrev_b32 v2, 7, v2")
    E("v_min_u32 v2, L_last-L_pc, v2")
    if pf:
        E.vm("pf", "global_load_dword v255, v2, s[98:99]")
    E("v_lshrrev_b32 v4, 6, v0")
    E("v_and_b32 v%d, 63, v0" % vL)
    E("v_readfirstlane_b32 s%d, v4" % sW)
    E("s_and_b32 s%d, s2, 7" % sR2)
    if mapmode in (0, 2):
        E("s_and_b32 s%d, s%d, 1" % (sI, sR2))
        E("s_lshl_b32 s%d, s%d, 3" % (sI, sI))
        E("s_and_b32 s%d, s%d, 7" % (sDT, sKC))
        E("s_add_u32 s%d, s%d, s%d" % (sI, sI, sDT))
        E("s_lshr_b32 s%d, s%d, 1" % (sJ, sR2))
        E("s_lshl_b32 s%d, s%d, 2" % (sJ, sJ))
        E("s_lshr_b32 s%d, s%d, 3" % (sK, sKC))
        E("s_add_u32 s%d, s%d, s%d" % (sJ, sJ, sK))
        E("s_lshl_b32 s%d, s%d, 2" % (sTT, sR2))
        E("s_add_u32 s%d, s%d, s%d" % (sTT, sTT, sK))
        if mapmode == 2:
            E("s_lshr_b32 s%d, s%d, 1" % (sTT, sR2))
            E("s_lshl_b32 s%d, s%d, 3" % (sTT, sTT))
            E("s_add_u32 s%d, s%d, s%d" % (sTT, sTT, sDT))
            E("s_and_b32 s%d, s%d, 1" % (sDT, sR2))
            E("s_lshl_b32 s%d, s%d, 2" % (sDT, sDT))
            E("s_add_u32 s%d, s%d, s%d" % (sDT, sDT, sK))
    else:
        E("s_lshl_b32 s%d, s%d, 1" % (sI, sR2))
        E("s_and_b32 s%d, s%d, 1" % (sJ, sKC))
        E("s_add_u32 s%d, s%d, s%d" % (sI, sI, sJ))
        E("s_lshr_b32 s%d, s%d, 1" % (sJ, sKC))
        E("s_lshl_b32 s%d, s%d, 1" % (sTT, sI))
        E("s_lshr_b32 s%d, s%d, 3" % (sK, sJ))
        E("s_add_u32 s%d, s%d, s%d" % (sTT, sTT, sK))
        E("s_and_b32 s%d, s%d, 7" % (sDT, sJ))
    if rot1 == (0, 0):
        E("s_mov_b32 s%d, 0" % sK)
    else:
        E("s_mul_i32 s%d, s%d, %d" % (sK, sI, rot1[0]))
        E("s_mul_i32 s%d, s%d, %d" % (sT0, sJ, rot1[1]))
        E("s_add_u32 s%d, s%d, s%d" % (sK, sK, sT0))
        mod10(sK, sT0)
        E("s_lshl_b32 s%d, s%d, 7" % (sK, sK))
    E("s_lshl_b32 s%d, s%d, 12" % (sM0X, sW))
    E("s_mul_i32 s%d, s%d, 5120" % (sM0B, sW))
    E("s_add_u32 s%d, s%d, 16384" % (sM0B, sM0B))
    E("s_mul_i32 s%d, s%d, 10240" % (sM0C, sW))
    E("v_lshrrev_b32 v4, 4, v%d" % vL)
    E("v_and_b32 v5, 7, v%d" % vL)
    E("v_xor_b32 v5, v5, v4")
    E("v_lshlrev_b32 v5, 4, v5")
    E("v_lshrrev_b32 v6, 5, v%d" % vL)
    E("v_lshlrev_b32 v6, 3, v6")
    E("v_bfe_u32 v8, v%d, 3, 1" % vL)
    E("v_lshl_add_u32 v6, v8, 2, v6")
    E("v_and_b32 v8, 1, v4")
    E("v_add_u32 v6, v6, v8")
    E("s_lshl_b32 s%d, s%d, 7" % (sT0, sI))
    E("s_lshl_b32 s%d, s%d, 5" % (sT1, sW))
    E("s_add_u32 s%d, s%d, s%d" % (sT0, sT0, sT1))
    E("v_add_u32 v6, s%d, v6" % sT0)
    E("v_mul_u32_u24 v6, 1280, v6")
    E("v_add_u32 v%d, v6, v5" % (vDX + 0))
    E("v_xor_b32 v6, 64, v%d" % (vDX + 0))
    E("v_add_u32 v%d, %d, v6" % (vDX + 1, 16 * 1280 - 1024))
    E("v_add_u32 v%d, %d, v%d" % (vDX + 2, 2 * 1280 - 2048, vDX + 0))
    E("v_add_u32 v%d, %d, v6" % (vDX + 3, 18 * 1280 - 3072))
    E("v_lshrrev_b32 v7, 3, v%d" % vL)
    E("v_mul_u32_u24 v7, 1280, v7")
    E("v_add_u32 v7, v7, v5")
    E("s_and_b32 s%d, s%d, 7" % (sT0, sJ))
    E("s_mul_i32 s%d, s%d, 80" % (sT0, sT0))
    E("s_and_b32 s%d, s%d, 1" % (sT1, sW))
    E("s_mul_i32 s%d, s%d, 40" % (sT2, sT1))
    E("s_add_u32 s%d, s%d, s%d" % (sT2, sT2, sT0))
    E("s_mul_i32 s%d, s%d, 1280" % (sT2, sT2))
    E("s_lshl_b32 s%d, s%d, 6" % (sT1, sT1))
    E("v_xor_b32 v8, s%d, v7" % sT1)
    E("v_add_u32 v%d, s%d, v8" % (vDB + 0, sT2))
    E("v_xor_b32 v8, 64, v%d" % (vDB + 0))
    E("v_add_u32 v%d, %d, v8" % (vDB + 1, 8 * 1280 - 1024))
    E("v_add_u32 v%d, %d, v%d" % (vDB + 2, 16 * 1280 - 2048, vDB + 0))
    E("v_add_u32 v%d, %d, v8" % (vDB + 3, 24 * 1280 - 3072))
    E("v_add_u32 v%d, %d, v%d" % (vDB + 4, 32 * 1280, vDB + 0))
    E("s_mul_i32 s%d, s%d, 20" % (sT1, sW))
    E("v_add_u32 v10, s%d, v%d" % (sT1, vL))
    E("v_add_u32 v9, s%d, v10" % sT0)
    E("v_lshlrev_b32 v9, 1, v9")
    E("s_waitcnt lgkmcnt(0)")
    estamp(0)
    if stamps:
        E("s_mov_b32 s62, s16")
        E("s_mov_b32 s63, s18")
    E("s_mov_b32 s%d, s44" % SX)
    E("s_mov_b32 s%d, s45" % (SX + 1))
    E("s_mov_b32 s%d, %d" % (SX + 2, 2048 * 1280))
    E("s_mov_b32 s%d, 0x20000" % (SX + 3))
    if touch:
        E("s_lshl_b32 s%d, s2, 2" % sT0)
        E("s_add_u32 s%d, s%d, s%d" % (sT0, sT0, sW))
        E("s_mul_i32 s%d, s%d, 2560" % (sT1, sT0))
        E("v_min_u32 v2, 19, v%d" % vL)
        E("v_lshlrev_b32 v2, 7, v2")
        E.vm("pf", "buffer_load_dword v255, v2, %s, s%d offen" % (srd(SX), sT1))
        E("s_bitcmp1_b32 s2, 6")
        E("s_cselect_b64 s[12:13], s[52:53], s[50:51]")
        E("s_cselect_b64 s[16:17], s[70:71], s[68:69]")
        E("s_bitcmp1_b32 s2, 7")
        E("s_cselect_b64 s[12:13], s[16:17], s[12:13]")
        E("s_mov_b32 s14, %d" % (640 * 1280))
        E("s_mov_b32 s15, 0x20000")
        E("s_and_b32 s%d, s%d, 255" % (sT0, sT0))
        E("s_mul_i32 s%d, s%d, 3200" % (sT1, sT0))
        E("v_min_u32 v2, 24, v%d" % vL)
        E("v_lshlrev_b32 v2, 7, v2")
        E.vm("pf", "buffer_load_dword v255, v2, s[12:15], s%d offen" % sT1)
    E("s_cmp_ge_u32 s%d, 8" % sJ)
    E("s_cselect_b64 s[50:51], s[68:69], s[50:51]")
    E("s_cselect_b64 s[52:53], s[70:71], s[52:53]")
    E("s_cselect_b64 s[%d:%d], s[64:65], s[46:47]" % (ST0, ST0 + 1))
    E("s_cselect_b64 s[%d:%d], s[66:67], s[48:49]" % (ST1, ST1 + 1))
    E("s_cselect_b64 s[%d:%d], s[76:77], s[58:59]" % (ST2, ST2 + 1))
    E("s_cmp_ge_u32 s%d, 2" % sW)
    E("s_cselect_b64 s[%d:%d], s[52:53], s[50:51]" % (SB, SB + 1))
    E("s_cselect_b64 s[54:55], s[72:73], s[54:55]")
    E("s_cselect_b64 s[56:57], s[74:75], s[56:57]")
    E("s_mov_b32 s%d, %d" % (SB + 2, 640 * 1280))
    E("s_mov_b32 s%d, 0x20000" % (SB + 3))

    def dma_stage_ops(n):
        slot = (n % 4) * SLOT
        ops = []
        for u in range(4):
            pre = ["s_add_u32 m0, s%d, %d" % (sM0X, slot)] if u == 0 else []
            ops.append((pre, "buffer_load_dwordx4 v%d, %s, s%d offen offset:%d %s lds" % (vDX + u, srd(SX), sK, 1024 * u, dmaflag if xflag is None else xflag), []))
        for v in range(5):
            pre = []
            if v == 0:
                pre = ["s_add_u32 m0, s%d, %d" % (sM0B, slot)]
            if v == 4:
                pre = ["s_add_u32 m0, s%d, %d" % (sM0B, slot + 4096)]
            post = []
            if v == 4:
                post = ["s_add_u32 s%d, s%d, 128" % (sK, sK)]
                if rot1 != (0, 0):
                    post += ["s_cmp_eq_u32 s%d, 1280" % sK, "s_cselect_b32 s%d, 0, s%d" % (sK, sK)]
            ops.append((pre, "buffer_load_dwordx4 v%d, %s, s%d offen offset:%d %s lds" % (vDB + v, srd(SB), sK, 1024 * (v & 3) if v < 4 else 0, dmaflag), post))
        return ops

    def dma_c_ops(sig):
        slot = CSLOT[sig] * SLOT
        ops = []
        for u in range(10):
            pre = ["s_add_u32 m0, s%d, %d" % (sM0C, slot + 4096 * (u >> 2))] if (u & 3) == 0 else []
            post = []
            if u == 9:
                post = ["s_add_u32 s%d, s%d, 128" % (sKC, sKC), "s_cmp_eq_u32 s%d, 1280" % sKC, "s_cselect_b32 s%d, 0, s%d" % (sKC, sKC)]
            ops.append((pre, "buffer_load_dwordx4 v%d, %s, s%d offen offset:%d %s lds" % (vPC + u, srd(SC), sKC, 1024 * (u & 3), cflag), post))
        return ops

    def emit_dma(R, tag, ops):
        for pre, d, post in ops:
            for p in pre:
                R(p)
                R("s_nop 0")
            R.vm(tag, d)
            for p in post:
                R(p)
            if isinstance(R, Rec):
                R.mark()

    for r in (ST0, ST1, ST2):
        E("s_mov_b32 s%d, 1280" % (r + 2))
        E("s_mov_b32 s%d, 0x20000" % (r + 3))
    E.vm("par0", "buffer_load_ushort v11, v9, %s, 0 offen" % srd(ST0))
    E.vm("par0", "buffer_load_ushort v12, v9, %s, 0 offen" % srd(ST1))
    E.vm("par0", "buffer_load_ushort v13, v9, %s, 0 offen" % srd(ST2))
    emit_dma(E, "st0", dma_stage_ops(0))
    estamp(1)
    E("s_and_b32 s%d, s%d, 1" % (sT0, sW))
    E("s_cmp_lg_u32 s%d, 0" % sT0)
    E("s_cselect_b64 s[%d:%d], s[56:57], s[54:55]" % (SC, SC + 1))
    E("s_mov_b32 s%d, %d" % (SC + 2, 640 * 1280))
    E("s_mov_b32 s%d, 0x20000" % (SC + 3))
    if stamps:
        E("s_mov_b32 s44, s62")
        E("s_mov_b32 s45, s63")
    E("s_mov_b32 s%d, s86" % SWS)
    E("s_mov_b32 s%d, s87" % (SWS + 1))
    E("s_mov_b32 s%d, %d" % (SWS + 2, ST_OFF + (256 * 4 * 128 if stamps else 0)))
    E("s_mov_b32 s%d, 0x20000" % (SWS + 3))
    E("s_mul_i32 s%d, s%d, 10240" % (sT0, sJ))
    E("s_add_u32 s%d, s%d, %d" % (sT0, sT0, E_OFF))
    E("s_add_u32 s%d, s86, s%d" % (SE, sT0))
    E("s_addc_u32 s%d, s87, 0" % (SE + 1))
    E("s_mov_b32 s%d, 10240" % (SE + 2))
    E("s_mov_b32 s%d, 0x20000" % (SE + 3))
    E("s_mov_b32 s%d, s84" % SDBG)
    E("s_mov_b32 s%d, s85" % (SDBG + 1))
    E("s_mov_b32 s%d, 256" % (SDBG + 2))
    E("s_mov_b32 s%d, 0x20000" % (SDBG + 3))
    E("s_mov_b32 s%d, s82" % SOUT)
    E("s_mov_b32 s%d, s83" % (SOUT + 1))
    E("s_mov_b32 s%d, %d" % (SOUT + 2, 2048 * 640 * 4))
    E("s_mov_b32 s%d, 0x20000" % (SOUT + 3))
    E("s_mov_b32 s%d, s80" % ST0)
    E("s_mov_b32 s%d, s81" % (ST0 + 1))
    E("s_mov_b32 s%d, s60" % ST1)
    E("s_mov_b32 s%d, s61" % (ST1 + 1))
    E("s_mov_b32 s%d, s78" % ST2)
    E("s_mov_b32 s%d, s79" % (ST2 + 1))
    if stamps:
        E("s_mov_b32 s%d, s44" % (sSTAMP + 17))
        E("s_mov_b32 s%d, s45" % (sSTAMP + 15))
    E("v_mov_b32 v4, 0x%x" % OOB)
    E("v_lshl_or_b32 v2, s2, 8, v0")
    E("v_cmp_eq_u32 vcc, 0, v2")
    E("v_mov_b32 v3, %d" % N_OFF)
    E("s_sub_u32 s%d, 15, s%d" % (sT0, sI))
    E("v_cndmask_b32 v%d, v4, v3, vcc" % vTW)
    E("v_cndmask_b32 v%d, v4, v2, vcc" % vTD)
    E.vm("tagw", "buffer_load_dword v%d, v%d, %s, 0 offen sc1" % (vN, vTW, srd(SWS)))
    E("s_mul_i32 s%d, s%d, 640" % (sT0, sT0))
    E("v_lshlrev_b32 v2, 3, v10")
    E("v_add_u32 v2, s%d, v2" % sT0)
    E("v_cmp_gt_u32 vcc, 20, v%d" % vL)
    E("s_lshl_b32 s%d, s%d, 7" % (sT0, sI))
    E("s_lshl_b32 s%d, s%d, 3" % (sT1, sJ))
    E("v_cndmask_b32 v%d, v4, v2, vcc" % vE)
    E("v_mov_b32 v14, -1")
    E("v_mov_b32 v15, -1")
    E.vm("clr", "buffer_store_dwordx2 v[14:15], v%d, %s, 0 offen sc1" % (vE, srd(SE)))
    E("s_add_u32 s%d, s%d, s%d" % (sT0, sT0, sT1))
    E("s_lshl_b32 s%d, s%d, 1" % (sT1, sW))
    E("s_add_u32 s%d, s%d, s%d" % (sT0, sT0, sT1))
    E("v_lshrrev_b32 v2, 5, v%d" % vL)
    E("v_add_u32 v8, s%d, v2" % sT0)
    E("v_lshlrev_b32 v2, 4, v8")
    E("v_add_u32 v2, %d, v2" % G_OFF)
    E("v_and_b32 v3, 31, v%d" % vL)
    E("v_cmp_eq_u32 vcc, 0, v3")
    E("s_lshl_b32 s%d, s%d, 4" % (sT0, sI))
    E("s_add_u32 s%d, s%d, s%d" % (sT0, sT0, sJ))
    E("v_cndmask_b32 v%d, v4, v2, vcc" % vG)
    E("s_lshl_b32 s%d, s%d, 7" % (sT0, sT0))
    E("s_add_u32 s%d, s%d, %d" % (sT0, sT0, F_OFF))
    E("v_mov_b32 v2, s%d" % sT0)
    E("v_cmp_eq_u32 vcc, 0, v0")
    E("s_mov_b32 s%d, %d" % (sE1, R_OFF - F_OFF))
    E("s_mov_b32 s%d, 0" % sCNT)
    E("v_cndmask_b32 v%d, v4, v2, vcc" % vF)
    E("v_and_b32 v2, 15, v%d" % vL)
    E("v_lshrrev_b32 v3, 1, v2")
    E("v_lshrrev_b32 v4, 4, v%d" % vL)
    E("v_xor_b32 v3, v3, v4")
    E("v_lshlrev_b32 v3, 4, v3")
    E("v_lshl_add_u32 v2, v2, 7, v3")
    E("v_xor_b32 v3, 64, v2")
    for ks in range(2):
        E("v_add_u32 v%d, s%d, v%d" % (vRA + 4 * ks, sM0X, 2 + ks))
        E("v_add_u32 v%d, 16384, v%d" % (vRB + 4 * ks, 2 + ks))
        E("v_add_u32 v%d, s%d, v%d" % (vRC + 3 * ks, sM0C, 2 + ks))
        for s in range(1, 4):
            E("v_add_u32 v%d, %d, v%d" % (vRA + 4 * ks + s, s * SLOT, vRA + 4 * ks))
            E("v_add_u32 v%d, %d, v%d" % (vRB + 4 * ks + s, s * SLOT, vRB + 4 * ks))
        E("v_add_u32 v%d, %d, v%d" % (vRC + 3 * ks + 1, 2 * SLOT, vRC + 3 * ks))
        E("v_add_u32 v%d, %d, v%d" % (vRC + 3 * ks + 2, 3 * SLOT, vRC + 3 * ks))
    E("s_mul_i32 s%d, s%d, %d" % (sT0, sDT, 80 * 1280))
    E("v_add_u32 v%d, s%d, v7" % (vPC, sT0))
    E("v_xor_b32 v7, 64, v%d" % vPC)
    for u in range(1, 10):
        E("v_add_u32 v%d, %d, v%d" % (vPC + u, 8 * u * 1280 - 1024 * (u & 3), 7 if (u & 1) else vPC))
    if rot2 == 1:
        E("s_and_b32 s%d, s%d, 1" % (sT0, sDT))
        E("s_mul_i32 s%d, s%d, 5" % (sT0, sT0))
        E("s_add_u32 s%d, s%d, s%d" % (sR2, sR2, sT0))
        E("s_and_b32 s%d, s%d, 3" % (sT0, sTT))
        E("s_mul_i32 s%d, s%d, 5" % (sT0, sT0))
        E("s_add_u32 s%d, s%d, 1" % (sT0, sT0))
        E("s_lshr_b32 s%d, s%d, 1" % (sT0, sT0))
        E("s_add_u32 s%d, s%d, s%d" % (sR2, sR2, sT0))
        mod10(sR2, sT0)
    elif rot2 == 3:
        E("s_lshr_b32 s%d, s%d, 1" % (sR2, sR2))
        E("s_and_b32 s%d, s%d, 7" % (sT0, sTT))
        E("s_add_u32 s%d, s%d, s%d" % (sR2, sR2, sT0))
        E("s_and_b32 s%d, s%d, 3" % (sT0, sDT))
        E("s_mul_i32 s%d, s%d, 5" % (sT0, sT0))
        E("s_add_u32 s%d, s%d, 1" % (sT0, sT0))
        E("s_lshr_b32 s%d, s%d, 1" % (sT0, sT0))
        E("s_add_u32 s%d, s%d, s%d" % (sR2, sR2, sT0))
        mod10(sR2, sT0)
    elif rot2 == 2:
        E("s_mov_b32 s%d, s%d" % (sR2, sDT))
    else:
        E("s_mov_b32 s%d, 0" % sR2)
    E("s_lshl_b32 s%d, s%d, 7" % (sKC, sR2))

    def exp_nat(dst, x, t0, t1):
        E("v_mul_f32 v%d, s%d, v%d" % (t0, sT0, x))
        E("v_fma_f32 v%d, v%d, s%d, -v%d" % (t1, x, sT0, t0))
        E("v_exp_f32 v%d, v%d" % (t0, t0))
        E("v_fma_f32 v%d, v%d, s%d, v%d" % (t1, x, sT1, t1))
        E("v_mul_f32 v%d, s%d, v%d" % (t1, sT2, t1))
        E("v_fma_f32 v%d, v%d, v%d, v%d" % (dst, t0, t1, t0))

    E("s_mov_b32 s%d, 0x%x" % (sT0, LOG2E))
    E("s_mov_b32 s%d, 0x%x" % (sT1, LOG2E_LO))
    E("s_mov_b32 s%d, 0x%x" % (sT2, LN2))
    T = 16
    E.wait(vm="par0")
    E("v_lshlrev_b32 v13, 16, v13")
    E("v_lshlrev_b32 v%d, 16, v11" % (T + 0))
    E("v_lshlrev_b32 v%d, 16, v12" % (T + 1))
    exp_nat(13, 13, 2, 3)
    E("v_cvt_pk_bf16_f32 v13, v13, v13")
    E("v_lshlrev_b32 v13, 16, v13")
    E("v_mul_f32 v11, v13, v%d" % (T + 0))
    E("v_mul_f32 v12, v13, v%d" % (T + 1))
    exp_nat(11, 11, 2, 3)
    E("v_mul_f32 v12, 0.15915494, v12")
    E("v_rndne_f32 v2, v12")
    E("v_sub_f32 v12, v12, v2")
    E("v_cos_f32 v2, v12")
    E("v_sin_f32 v3, v12")
    E("v_mul_f32 v4, v%d, v%d" % (T + 0, T + 0))
    E("v_fmac_f32 v4, v%d, v%d" % (T + 1, T + 1))
    E("v_mul_f32 v%d, v11, v2" % (T + 2))
    E("v_mul_f32 v%d, v11, v3" % (T + 3))
    E("v_rcp_f32 v4, v4")
    cmul(T + 6, T + 2, T + 2)
    cmul(T + 4, T + 6, T + 6)
    cmul(vA8, T + 4, T + 4)
    cmul(T + 6, vA8, vA8)
    cmul(T + 8, T + 6, T + 6)
    cmul(T + 6, T + 8, T + 8)
    cmul(vA128, T + 6, T + 6)
    E("v_add_f32 v4, v4, v4")
    E("v_add_f32 v2, -1.0, v%d" % (T + 2))
    E("v_mul_f32 v6, v2, v%d" % (T + 0))
    E("v_fmac_f32 v6, v%d, v%d" % (T + 3, T + 1))
    E("v_mul_f32 v7, v%d, v%d" % (T + 3, T + 0))
    E("v_fma_f32 v7, -v2, v%d, v7" % (T + 1))
    E("v_mul_f32 v%d, v4, v6" % (vCO + 0))
    E("v_mul_f32 v%d, v4, v7" % (vCO + 1))
    E("v_lshlrev_b32 v2, 5, v10")
    E("v_add_u32 v2, %d, v2" % PTAB)
    E("s_mov_b64 exec, 0xfffff")
    E.lg("ptw", "ds_write_b128 v2, %s" % vr(T + 2, 4))
    E.lg("ptw", "ds_write_b64 v2, %s offset:16" % vr(vCO, 2))
    E("s_mov_b64 exec, -1")
    E("v_and_b32 v9, 15, v%d" % vL)
    E("v_lshlrev_b32 v9, 5, v9")
    E("v_add_u32 v9, %d, v9" % PTAB)
    E("v_and_b32 v2, 15, v%d" % vL)
    E("v_mul_u32_u24 v2, 144, v2")
    E("v_lshrrev_b32 v3, 4, v%d" % vL)
    E("v_lshl_add_u32 v2, v3, 3, v2")
    E("s_lshl_b32 s%d, s%d, 5" % (sT0, sW))
    E("s_add_u32 s%d, s%d, %d" % (sT0, sT0, ETAB))
    E("v_add_u32 v12, s%d, v2" % sT0)
    E("v_mul_u32_u24 v13, 144, v10")
    E("v_add_u32 v13, %d, v13" % ETAB)
    for n in range(1, npro):
        emit_dma(E, "st%d" % n, dma_stage_ops(n))
    E.wait(vm=("tagw", "st0"), lg="ptw")
    E.c("thread 0 of workgroup 0 picks this launch's tag: the word an earlier launch left, plus one")
    E("v_add_u32 v%d, 1, v%d" % (vN, vN))
    E("v_mov_b32 v%d, 1" % (vN + 1))
    E("s_barrier")
    E.vm("ns", "buffer_store_dwordx2 %s, v%d, %s, 0 offen sc1" % (vr(vN, 2), vTD, srd(SDBG)))
    E.vm("ns", "buffer_store_dword v%d, v%d, %s, 0 offen sc1" % (vN, vTW, srd(SWS)))
    stamp("first")

    issueG = {}

    def rdA(kap, mt):
        n, ks = kap >> 1, kap & 1
        return ("A%d_%d" % (kap, mt), "ds_read_b128 %s, v%d offset:%d" % (vr(AF + 8 * (kap & 1) + 4 * mt, 4), vRA + 4 * ks + n % 4, 2048 * mt))

    def rdB(kap, nt):
        n, ks = kap >> 1, kap & 1
        return ("B%d_%d" % (kap, nt), "ds_read_b128 %s, v%d offset:%d" % (vr(BF + 4 * nt, 4), vRB + 4 * ks + n % 4, 2048 * nt))

    side = {}

    def at(G, fn):
        side.setdefault(G, []).append(fn)

    def lgop(G, rd):
        def f():
            E.lg(rd[0], rd[1])
            issueG[rd[0]] = G
        at(G, f)

    for kap in range(19):
        g0 = 20 * kap
        if kap & 1 == 0:
            lgop(g0 + 0, rdA(kap + 1, 0))
            lgop(g0 + 2, rdA(kap + 1, 1))
            for nt in range(10):
                lgop(g0 + 2 * nt + 1, rdB(kap + 1, nt))
        else:
            lgop(g0 + 6, rdA(kap + 1, 0))
            lgop(g0 + 8, rdA(kap + 1, 1))
            for nt, g in enumerate([7, 9, 10, 11, 12, 13, 14, 15, 17, 19]):
                lgop(g0 + g, rdB(kap + 1, nt))

    def place_dma(tag, ops, G0, offs):
        for (pre, d, post), o in zip(ops, offs):
            for p in pre:
                at(G0 + o - 1, (lambda p=p: E(p)))
            at(G0 + o, (lambda d=d: E.vm(tag, d)))
            for k, p in enumerate(post):
                at(G0 + o + 1, (lambda p=p: E(p)))

    batches = [("st%d" % n, dma_stage_ops(n), 1 if n < 4 else 20 * (2 * (n - 4) + 1) + 7) for n in range(npro, 10)]
    batches += [("c%d" % k, dma_c_ops(k), 20 * (2 * (k + 6) + 1) + 7) for k in plan[0]]
    nextG = 1
    for tag, ops, g_ok in batches:
        g = max(g_ok, nextG)
        late = g > g_ok or tag in ("st1", "st2", "st3")
        n = len(ops)
        offs = [2 * k for k in range(n)] if late else [(34 * k) // (n - 1) for k in range(n)]
        if tag[0] == "c":
            span = {1: 100, 2: 54, 3: 34}[len(plan[0])]
            offs = [(span * k) // (n - 1) for k in range(n)]
        place_dma(tag, ops, g, offs)
        nextG = g + offs[-1] + 3
    for n in range(10):
        G = 20 * (2 * n + 1) + 5

        def bar(n=n):
            E.wait(vm=("st%d" % (n + 1),), lg=list(E.lgq))
            E("s_barrier")
            stamp("b%d" % n, 2)
        at(G, bar)
    slow = []
    at(20 * 5 + 4, lambda: E.vm("tag", "buffer_load_dwordx2 v[14:15], off, %s, 0 sc1" % srd(SDBG)))

    def tagchk():
        E.wait(vm="tag")
        E.label("L_tag")
        E("v_cmp_eq_u32 vcc, 1, v15")
        E("v_mov_b32 v%d, v14" % vN)
        E("s_cbranch_vccz L_tag_slow")
        E.label("L_tag_ok")
    at(20 * 11 + 6, tagchk)
    at(20 * 11 + 8, lambda: E("v_xor_b32 v%d, 0x%x, v14" % (vN + 1, TAGK)))
    at(20 * 11 + 10, lambda: E.vm("rdy", "buffer_store_dwordx2 %s, v%d, %s, s%d offen sc1" % (vr(vN, 2), vF, srd(SWS), sE1)))
    slow += ["L_tag_slow:", "s_add_u32 s%d, s%d, 1" % (sCNT, sCNT), "s_cmp_gt_u32 s%d, %d" % (sCNT, SPIN), "s_cbranch_scc1 L_tag_ok",
             "s_sleep 2", "buffer_load_dwordx2 v[14:15], off, %s, 0 sc1" % srd(SDBG), "s_waitcnt vmcnt(0)", "s_branch L_tag"]
    for n in range(5):
        lgop(20 * 19 + 6 + 2 * n, ("pa%d" % n, "ds_read_b128 %s, v9 offset:%d" % (vr(PA + 4 * n, 4), 512 * n)))
        lgop(20 * 19 + 7 + 2 * n, ("pc%d" % n, "ds_read_b64 %s, v9 offset:%d" % (vr(PCF + 2 * n, 2), 512 * n + 16)))

    for rd in [rdA(0, 0), rdB(0, 0), rdA(0, 1)] + [rdB(0, nt) for nt in range(1, 10)]:
        E.lg(rd[0], rd[1])
        issueG[rd[0]] = -1

    def need_lg(tags, G):
        tags = [t for t in tags if E.outstanding_lg(t)]
        if not tags:
            return
        extra = [t for t in E.lgq if issueG.get(t, 1 << 30) <= G - 8]
        E.wait(lg=tags + extra)

    for kap in range(20):
        for nt in range(10):
            for mt in range(2):
                G = 20 * kap + 2 * nt + mt
                need_lg(["A%d_%d" % (kap, mt), "B%d_%d" % (kap, nt)], G)
                d = vr(acc(mt, nt), 4)
                E("v_mfma_f32_16x16x32_bf16 %s, %s, %s, %s" % (d, vr(AF + 8 * (kap & 1) + 4 * mt, 4), vr(BF + 4 * nt, 4), d if kap else "0"))
                for fn in side.pop(G, []):
                    fn()
    assert not side, sorted(side)
    stamp("gemm1")

    moved = set()

    def c_move(R, sig):
        if sig in moved or sig > 6 or sig < 0:
            return
        moved.add(sig)
        R.wait(vm="c%d" % sig)
        si, so = CSI[CSLOT[sig]]
        for ks in range(2):
            for n in range(5):
                R.lg("cm%d" % sig, "ds_read_b128 %s, v%d offset:%d" % (cfrag(sig, ks, n), vRC + 3 * ks + si, so + 2048 * n))
                if isinstance(R, Rec) and n in (1, 4):
                    R.mark()

    def c_dma(R, sig):
        if sig >= 3:
            c_move(R, sig - 3)
            R.wait(lg="cm%d" % (sig - 3))
        emit_dma(R, "c%d" % sig, dma_c_ops(sig))

    E1 = 96
    E2 = 116
    EL = 120
    ET = 130
    ELO = 164
    E.wait(lg=["pa0"])
    E(".p2align 3")

    def scan_step(R, dre, dim, pre, pim, ure, uim, a, conj=False):
        R("v_pk_fma_f32 %s, %s, %s, %s %s" % (vr(dre, 2), vr(a, 2), vr(pre, 2), vr(ure, 2), BC_LO))
        R("v_pk_fma_f32 %s, %s, %s, %s %s" % (vr(dim, 2), vr(a, 2), vr(pim, 2), vr(uim, 2), BC_LO))
        R("v_pk_fma_f32 %s, %s, %s, %s %s %s" % (vr(dre, 2), vr(a, 2), vr(pim, 2), vr(dre, 2), BC_HI, "" if conj else NEG0))
        R("v_pk_fma_f32 %s, %s, %s, %s %s %s" % (vr(dim, 2), vr(a, 2), vr(pre, 2), vr(dim, 2), BC_HI, NEG0 if conj else ""))

    F = Rec()
    for n in range(5):
        a = PA + 4 * n
        e = E1 + 4 * n
        if n == 1:
            F.wait(lg=["pc4"])
        scan_step(F, e, e + 2, U(0, n, 0), U(1, n, 0), U(0, n, 1), U(1, n, 1), a)
        scan_step(F, E2, E2 + 2, e, e + 2, U(0, n, 2), U(1, n, 2), a)
        scan_step(F, e, e + 2, E2, E2 + 2, U(0, n, 3), U(1, n, 3), a)
        F("v_fma_f32 v%d, v%d, v%d, v%d" % (EL + 2 * n, a + 2, e, e + 1))
        F("v_fma_f32 v%d, v%d, v%d, v%d" % (EL + 2 * n + 1, a + 2, e + 2, e + 3))
        F("v_fma_f32 v%d, -v%d, v%d, v%d" % (EL + 2 * n, a + 3, e + 2, EL + 2 * n))
        F("v_fma_f32 v%d, v%d, v%d, v%d" % (EL + 2 * n + 1, a + 3, e, EL + 2 * n + 1))
        F.lg("etw", "ds_write_b64 v12, %s offset:%d" % (vr(EL + 2 * n, 2), 2304 * n))
    B = Rec()
    for k in plan[1]:
        c_dma(B, k)
    E.play(F, B)

    def elo(n):
        e = E1 + 4 * n
        c = PCF + 2 * n
        E("v_mul_f32 v%d, v%d, v%d" % (ELO + 2 * n, c, e))
        E("v_mul_f32 v%d, v%d, v%d" % (ELO + 2 * n + 1, c + 1, e))
        E("v_fma_f32 v%d, -v%d, v%d, v%d" % (ELO + 2 * n, c + 1, e + 2, ELO + 2 * n))
        E("v_fma_f32 v%d, -v%d, v%d, -v%d" % (ELO + 2 * n + 1, c, e + 2, ELO + 2 * n + 1))
    elo(0)
    elo(1)
    E.wait(lg="etw")
    E("s_barrier")
    E("s_mov_b64 exec, 0xfffff")
    for k in range(8):
        E.lg("etr%d" % k, "ds_read_b128 %s, v13 offset:%d" % (vr(ET + 2 + 4 * k, 4), 16 * k))
    E("s_mov_b64 exec, -1")
    elo(2)
    elo(3)
    elo(4)
    S0, S1 = 2, 4
    cur = ET + 2
    for j in range(1, 16):
        if j in (1, 4, 8):
            E.wait(lg="etr%d" % {1: 1, 4: 3, 8: 7}[j])
            E("s_nop 0")
        nxt = S0 if cur != S0 else S1
        E("v_pk_fma_f32 %s, %s, %s, %s %s" % (vr(nxt, 2), vr(vA8, 2), vr(cur, 2), vr(ET + 2 + 2 * j, 2), BC_LO))
        E("v_pk_fma_f32 %s, %s, %s, %s %s neg_lo:[0,1,0]" % (vr(nxt, 2), vr(vA8, 2), vr(cur, 2), vr(nxt, 2), BC_HI_SW))
        cur = nxt
    E("v_min_u32 v%d, -2, v%d" % (cur, cur))
    E("v_min_u32 v%d, -2, v%d" % (cur + 1, cur + 1))
    E.vm("epub", "buffer_store_dwordx2 %s, v%d, %s, 0 offen sc1" % (vr(cur, 2), vE, srd(SE)))
    stamp("epub")

    GX, GW = 96, 108
    E("v_and_b32 v6, 31, v%d" % vL)
    E("v_lshlrev_b32 v7, 4, v6")
    E("v_mul_u32_u24 v8, 1280, v8")
    E("v_add_u32 v8, v8, v7")
    E("v_cmp_gt_u32 vcc, 16, v6")
    E("v_mov_b32 v14, 0x%x" % OOB)
    E.vm("gld", "buffer_load_dwordx4 %s, v8, %s, 0 offen" % (vr(GX, 4), srd(SX)))
    E("v_cndmask_b32 v6, v14, v8, vcc")
    E("v_cndmask_b32 v14, v14, v7, vcc")
    E.vm("gld", "buffer_load_dwordx4 %s, v8, %s, 0 offen offset:512" % (vr(GX + 4, 4), srd(SX)))
    E.vm("gld", "buffer_load_dwordx4 %s, v6, %s, 0 offen offset:1024" % (vr(GX + 8, 4), srd(SX)))
    E.vm("gld", "buffer_load_dwordx4 %s, v7, %s, 0 offen" % (vr(GW, 4), srd(ST0)))
    E.vm("gld", "buffer_load_dwordx4 %s, v7, %s, 0 offen offset:512" % (vr(GW + 4, 4), srd(ST0)))
    E.vm("gld", "buffer_load_dwordx4 %s, v14, %s, 0 offen offset:1024" % (vr(GW + 8, 4), srd(ST0)))
    E("v_min_u32 v9, 15, v%d" % vL)
    E("s_lshl_b32 s%d, s%d, 7" % (sT0, sJ))
    E("s_add_u32 s%d, s%d, %d" % (sT0, sT0, R_OFF))
    E("v_lshl_add_u32 v9, v9, 11, s%d" % sT0)
    E.vm("rchk", "buffer_load_dwordx2 v[120:121], v9, %s, 0 offen sc1" % srd(SWS))

    def scale_u(R, n):
        c = PCF + 2 * n
        for s in range(4):
            ur, ui = U(0, n, s), U(1, n, s)
            R("v_pk_mul_f32 v[2:3], %s, %s op_sel:[1,0] op_sel_hi:[1,1] neg_lo:[1,0] neg_hi:[1,0]" % (vr(c, 2), vr(ui, 2)))
            R("v_pk_mul_f32 %s, %s, %s op_sel_hi:[0,1] neg_lo:[1,0] neg_hi:[1,0]" % (vr(ui, 2), vr(c, 2), vr(ui, 2)))
            R("v_pk_fma_f32 %s, %s, %s, %s %s %s" % (vr(ui, 2), vr(c, 2), vr(ur, 2), vr(ui, 2), BC_HI, NEG0))
            R("v_pk_fma_f32 %s, %s, %s, v[2:3] %s" % (vr(ur, 2), vr(c, 2), vr(ur, 2), BC_LO))

    F = Rec()
    for n in range(5):
        scale_u(F, n)
    for j in range(15):
        r = ET + 2 + 2 * j
        F("v_pk_mul_f32 v[2:3], %s, %s op_sel_hi:[0,1] neg_hi:[1,0]" % (vr(vCO, 2), vr(r, 2)))
        F("v_pk_fma_f32 %s, %s, %s, v[2:3] %s %s" % (vr(r, 2), vr(vCO, 2), vr(r, 2), BC_HI_SW, NEG0))
    F("s_mov_b32 s%d, 0xffff0000" % sT0)
    F.wait(vm="gld")
    for k in range(12):
        F("v_lshlrev_b32 v2, 16, v%d" % (GX + k))
        F("v_and_b32 v3, s%d, v%d" % (sT0, GX + k))
        F("v_lshlrev_b32 v4, 16, v%d" % (GW + k))
        F("v_and_b32 v5, s%d, v%d" % (sT0, GW + k))
        F("v_pk_mul_f32 v[2:3], v[2:3], v[4:5]")
        F("v_cvt_pk_bf16_f32 v4, v2, v3")
        d = 6 if k == 0 else 2
        F("v_lshlrev_b32 v%d, 16, v4" % d)
        F("v_and_b32 v%d, s%d, v4" % (d + 1, sT0))
        if k:
            F("v_pk_add_f32 v[6:7], v[6:7], v[2:3]")
    B = Rec()
    for k in plan[2]:
        c_dma(B, k)
    E.play(F, B, lead=0, tail=20)
    E("v_add_f32 v14, v6, v7")
    for sh in (8, 4, 2, 1):
        E("s_nop 1")
        E("v_add_f32_dpp v14, v14, v14 row_ror:%d row_mask:0xf bank_mask:0xf" % sh)
    E("v_mov_b32 v15, v14")
    E("s_nop 1")
    E("v_permlane16_swap_b32 v14, v15")
    E("v_add_f32 v14, v14, v15")
    E("v_cvt_pk_bf16_f32 v14, v14, v14")
    E("v_lshlrev_b32 v14, 16, v14")
    E("v_mul_f32 v14, 0x%x, v14" % (LOG2E | 0x80000000))
    E("v_exp_f32 v14, v14")
    E("s_mov_b32 s%d, 0" % sCNT)
    E("v_add_f32 v14, 1.0, v14")
    E("v_rcp_f32 v14, v14")
    E("s_bfm_b64 s[%d:%d], s%d, 0" % (sT1, sT1 + 1, sI))
    E("v_cvt_pk_bf16_f32 v14, v14, v14")
    E("v_lshlrev_b32 v4, 16, v14")
    E("v_sub_f32 v5, 1.0, v4")
    E("v_cvt_pk_bf16_f32 v5, v5, v5")
    E("v_lshlrev_b32 v5, 16, v5")
    E("v_mov_b32 v6, v%d" % vN)
    E("v_mov_b32 v7, v%d" % (vN + 1))
    E.vm("gpub", "buffer_store_dwordx4 v[4:7], v%d, %s, 0 offen sc1" % (vG, srd(SWS)))
    E.wait(vm="rchk")
    E.label("L_clr")
    E("v_cmp_ne_u64 vcc, v[120:121], %s" % vr(vN, 2))
    E("s_add_u32 s%d, s%d, 1" % (sCNT, sCNT))
    E("s_nop 0")
    E("s_and_b64 vcc, vcc, s[%d:%d]" % (sT1, sT1 + 1))
    E("s_cbranch_scc1 L_clr_slow")
    E.label("L_clr_ok")
    slow += ["L_clr_slow:", "s_cmp_gt_u32 s%d, %d" % (sCNT, SPIN), "s_cbranch_scc1 L_clr_ok", "s_sleep 2",
             "buffer_load_dwordx2 v[120:121], v9, %s, 0 offen sc1" % srd(SWS), "s_waitcnt vmcnt(0)", "s_branch L_clr"]
    PK = [96 + 2 * k for k in range(15)]
    E("s_sub_u32 s%d, 16, s%d" % (sT0, sI))
    E("s_mul_i32 s%d, s%d, 640" % (sT0, sT0))
    E("v_lshlrev_b32 v14, 3, v10")
    E("v_add_u32 v14, s%d, v14" % sT0)
    E("s_mov_b32 s%d, 3840" % sE1)
    E("s_mov_b32 s%d, 7680" % sE2)
    E("s_mov_b32 s%d, 0" % sCNT)

    def e_loads():
        for k in range(15):
            so = ["0", "s%d" % sE1, "s%d" % sE2][k // 6]
            E.vm("ep", "buffer_load_dwordx2 %s, v14, %s, %s offen offset:%d sc1" % (vr(PK[k], 2), srd(SE), so, 640 * (k % 6)))
    stamp("winB")
    E("s_mov_b64 exec, 0xfffff")
    e_loads()
    E("s_mov_b64 exec, -1")
    E("v_and_b32 v2, 15, v%d" % vL)
    E("v_lshrrev_b32 v3, 4, v%d" % vL)
    E("v_bfe_u32 v4, v2, 1, 2")
    E("v_xor_b32 v4, v4, v3")
    E("v_bfe_u32 v5, v2, 3, 1")
    E("v_lshlrev_b32 v5, 1, v5")
    E("v_xor_b32 v4, v4, v5")
    E("v_lshlrev_b32 v4, 4, v4")
    E("s_lshl_b32 s%d, s%d, 11" % (sT0, sW))
    E("s_add_u32 s%d, s%d, %d" % (sT0, sT0, TRS))
    E("v_lshl_add_u32 v4, v2, 6, v4")
    E("v_add_u32 v9, s%d, v4" % sT0)
    E("v_lshrrev_b32 v4, 2, v2")
    E("v_lshl_add_u32 v5, v3, 3, v4")
    E("v_lshlrev_b32 v5, 6, v5")
    E("v_lshrrev_b32 v4, 1, v4")
    E("v_bfe_u32 v6, v2, 1, 1")
    E("v_xor_b32 v4, v4, v6")
    E("v_lshl_add_u32 v5, v4, 4, v5")
    E("v_and_b32 v4, 1, v2")
    E("v_lshl_add_u32 v5, v4, 3, v5")
    E("v_and_b32 v4, 1, v3")
    E("v_lshl_add_u32 v5, v4, 5, v5")
    E("v_add_u32 v11, s%d, v5" % sT0)
    E("v_xor_b32 v15, 32, v11")
    E("v_and_b32 v4, 31, v%d" % vL)
    E("v_lshlrev_b32 v4, 4, v4")
    E("v_lshrrev_b32 v5, 5, v%d" % vL)
    E("v_mul_u32_u24 v5, %d, v5" % MAT)
    E("v_add_u32 v8, v4, v5")
    E("s_lshr_b32 s%d, s%d, 3" % (sT0, sJ))
    E("s_mul_i32 s%d, s%d, %d" % (sHB0, sT0, 2 * MAT))
    E("s_lshl_b32 s%d, s%d, 3" % (sT0, sI))
    E("s_lshl_b32 s%d, s%d, 1" % (sT1, sW))
    E("s_add_u32 s%d, s%d, s%d" % (sT0, sT0, sT1))
    E("s_mul_i32 s%d, s%d, 20480" % (sT0, sT0))
    E("s_add_u32 s%d, s%d, s%d" % (sHB0, sHB0, sT0))
    E("s_and_b32 s%d, s%d, 7" % (sT0, sJ))
    E("s_mul_i32 s%d, s%d, 2560" % (sT0, sT0))
    E("s_add_u32 s%d, s%d, s%d" % (sHB0, sHB0, sT0))
    E("s_add_u32 s%d, s%d, 20480" % (sHB1, sHB0))
    for k in range(max(plan[2]) + 1):
        c_move(E, k)
    E("s_mov_b64 exec, 0xfffff")
    E("s_branch L_ep_chk")
    E.label("L_ep")
    e_loads()
    E.label("L_ep_chk")
    E.wait_all(vm=True)
    regs = [r for p in PK for r in (p, p + 1)]
    E("v_max3_u32 v2, v%d, v%d, v%d" % tuple(regs[:3]))
    for k in range(3, 29, 2):
        E("v_max3_u32 v2, v2, v%d, v%d" % (regs[k], regs[k + 1]))
    E("v_max_u32 v2, v2, v%d" % regs[29])
    E("v_cmp_eq_u32 vcc, -1, v2")
    E("s_add_u32 s%d, s%d, 1" % (sCNT, sCNT))
    E("s_cbranch_vccz L_ep_ok")
    E("s_cmp_gt_u32 s%d, %d" % (sCNT, SPIN))
    E("s_cbranch_scc0 L_ep")
    E.label("L_ep_ok")
    stamp("earr")

    E(".p2align 3")
    for k in range(13, -1, -1):
        E("v_pk_fma_f32 %s, %s, %s, %s %s" % (vr(PK[k], 2), vr(vA128, 2), vr(PK[k + 1], 2), vr(PK[k], 2), BC_LO))
        E("v_pk_fma_f32 %s, %s, %s, %s %s neg_lo:[0,1,0]" % (vr(PK[k], 2), vr(vA128, 2), vr(PK[k + 1], 2), vr(PK[k], 2), BC_HI_SW))
    E("v_pk_mul_f32 v[2:3], %s, %s op_sel_hi:[0,1] neg_hi:[1,0]" % (vr(vCO, 2), vr(PK[0], 2)))
    E("v_pk_fma_f32 %s, %s, %s, v[2:3] %s %s" % (vr(ET, 2), vr(vCO, 2), vr(PK[0], 2), BC_HI_SW, NEG0))
    for j in range(15):
        t, r = ET + 2 * j, ET + 2 + 2 * j
        E("v_pk_fma_f32 %s, %s, %s, %s %s" % (vr(r, 2), vr(vA8, 2), vr(t, 2), vr(r, 2), BC_LO))
        E("v_pk_fma_f32 %s, %s, %s, %s %s neg_hi:[1,0,0]" % (vr(r, 2), vr(vA8, 2), vr(t, 2), vr(r, 2), BC_HI_SW))
        if j & 1 == 0:
            k = j >> 1
            E.lg("ttw", "ds_write_b128 v13, %s offset:%d" % (vr(ET + 4 * k, 4), (TTAB - ETAB) + 16 * k))
    E("s_mov_b64 exec, -1")
    for k in plan[3]:
        c_dma(E, k)
    stamp("tchain", 2)
    E.wait(lg="ttw")
    E("s_barrier")
    stamp("tbar", 2)
    Q = 96
    DV = 116
    TRV = 132
    for n in range(5):
        E.lg("ttr%d" % n, "ds_read_b64 %s, v12 offset:%d" % (vr(Q + 4 * n, 2), (TTAB - ETAB) + 2304 * n))

    def h_store(n):
        E.wait(lg="tr%d" % n)
        E("s_nop 0")
        for mp in range(2):
            E.vm("hst", "buffer_store_dwordx4 %s, v8, %s, s%d offen offset:%d %s" % (vr(TRV + 8 * (n & 1) + 4 * mp, 4), srd(SWS), sHB0 + mp, 512 * n, hflag))

    E(".p2align 3")
    for n in range(5):
        a = PA + 4 * n
        q = Q + 4 * n
        if not E.wait(lg="ttr%d" % (0 if n == 0 else 4)):
            E("s_nop 0")
        E("v_mov_b32 v%d, v%d" % (q + 2, q + 1))
        E("v_fma_f32 v%d, v%d, v%d, v%d" % (q + 3, a + 2, q + 1, ELO + 2 * n + 1))
        E("v_fma_f32 v%d, v%d, v%d, v%d" % (q + 1, a + 2, q, ELO + 2 * n))
        E("v_fma_f32 v%d, -v%d, v%d, v%d" % (q + 3, a + 3, q, q + 3))
        E("v_fma_f32 v%d, v%d, v%d, v%d" % (q + 1, a + 3, q + 2, q + 1))
        pre, pim = q, q + 2
        for s in range(4):
            scan_step(E, U(0, n, s), U(1, n, s), pre, pim, U(0, n, s), U(1, n, s), a, conj=True)
            pre, pim = U(0, n, s), U(1, n, s)
            if s == 1 and n:
                h_store(n - 1)
        dv = DV + 8 * (n & 1)
        for kind in range(2):
            for h in range(2):
                E("v_cvt_pk_bf16_f32 v%d, v%d, v%d" % (dv + 4 * kind + 2 * h, U(kind, n, 0) + h, U(kind, n, 1) + h))
                E("v_cvt_pk_bf16_f32 v%d, v%d, v%d" % (dv + 4 * kind + 2 * h + 1, U(kind, n, 2) + h, U(kind, n, 3) + h))
            E.lg("trw", "ds_write_b128 v9, %s offset:%d" % (vr(dv + 4 * kind, 4), 1024 * kind))
        for mp in range(2):
            for half in range(2):
                E.lg("tr%d" % n, "ds_read_b64_tr_b16 %s, v%d offset:%d" % (vr(TRV + 8 * (n & 1) + 4 * mp + 2 * half, 2), 11 if (mp ^ half) == 0 else 15, 256 * half))
    h_store(4)
    stamp("hst")

    XP, GP, DS, DU, AD = 16, 32, 64, 72, 88
    F = Rec()
    L = Rec()
    F("v_mul_u32_u24 v2, 52, v%d" % vL)
    F("v_lshrrev_b32 v2, 10, v2")
    F("v_mul_u32_u24 v3, 20, v2")
    F("v_sub_u32 v3, v%d, v3" % vL)
    F("s_lshl_b32 s%d, s%d, 2" % (sT0, sW))
    F("v_add_u32 v2, s%d, v2" % sT0)
    F("v_min_u32 v5, 15, v%d" % vL)
    F("v_add_u32 v5, 4, v5")
    F("s_add_u32 s%d, s%d, 3" % (sT1, sT0))
    F("v_mov_b32 v4, s%d" % sT1)
    F("v_cmp_gt_u32 vcc, 16, v%d" % vL)
    if rots:
        F("s_lshr_b32 s%d, s%d, 1" % (sT0, sDT))
    else:
        F("s_mov_b32 s%d, 0" % sT0)
    for k in range(4):
        F("s_and_b32 s%d, s%d, 3" % (sT0, sT0))
        F("s_mul_i32 s%d, s%d, 20480" % (sXS + k, sT0))
        F("s_mul_i32 s%d, s%d, 40960" % (sOS + k, sT0))
        F("s_lshl_b32 s%d, s%d, 8" % (sGS + k, sT0))
        F("s_add_u32 s%d, s%d, 1" % (sT0, sT0))
    F("s_mul_i32 s%d, s%d, 160" % (sT2, sDT))
    F("s_lshl_b32 s%d, s%d, 6" % (sT0, sTT))
    F("s_mov_b32 s%d, %d" % (sT1, RED))
    for pi, (row, pc) in enumerate(((2, 3), (4, 5))):
        F("v_lshl_add_u32 v%d, v%d, 3, s%d" % (AD + pi, pc, sT2))
        F("v_add_u32 v7, s%d, v%d" % (sT0, row))
        L.vm("ds", "buffer_load_dwordx2 %s, v%d, %s, 0 offen" % (vr(DS + 4 * pi, 2), AD + pi, srd(ST1)))
        L.vm("ds", "buffer_load_dwordx2 %s, v%d, %s, 0 offen" % (vr(DS + 4 * pi + 2, 2), AD + pi, srd(ST2)))
        F("v_mul_u32_u24 v9, 1280, v7")
        F("v_add_u32 v%d, v9, v%d" % (AD + 2 + pi, AD + pi))
        for s in range(4):
            L.vm("xp", "buffer_load_dwordx2 %s, v%d, %s, s%d offen" % (vr(XP + 4 * s + 2 * pi, 2), AD + 2 + pi, srd(SX), sXS + s))
        F("v_lshlrev_b32 v%d, 1, v%d" % (vOA + pi, AD + 2 + pi))
        F("v_lshlrev_b32 v%d, 4, v7" % (AD + 4 + pi))
        F("v_add_u32 v%d, %d, v%d" % (AD + 4 + pi, G_OFF, AD + 4 + pi))
        F("v_bfe_u32 v9, v%d, 1, 2" % row)
        F("v_xor_b32 v9, v9, v%d" % pc)
        F("v_lshlrev_b32 v9, 4, v9")
        F("v_mul_u32_u24 v7, 320, v%d" % row)
        F("v_add3_u32 v%d, v7, v9, s%d" % (vPRA + pi, sT1))
    F("v_mov_b32 v6, 0x%x" % OOB)
    F("v_cndmask_b32 v%d, v6, v%d, vcc" % (vOB, vOB))
    F("v_and_b32 v2, 15, v%d" % vL)
    F("v_lshrrev_b32 v3, 4, v%d" % vL)
    F("v_bfe_u32 v4, v2, 1, 2")
    F("v_xor_b32 v3, v3, v4")
    F("v_lshlrev_b32 v3, 4, v3")
    F("v_mul_u32_u24 v2, 320, v2")
    F("s_add_u32 s%d, s%d, %d" % (sT1, sM0B, RED - 16384))
    F("v_add3_u32 v%d, v2, v3, s%d" % (vPW, sT1))
    F("s_mul_i32 s%d, s%d, %d" % (sT1, sW, MAT))
    F("s_mul_i32 s%d, s%d, %d" % (sT2, sTT, 4 * 20480))
    F("s_add_u32 s%d, s%d, s%d" % (sT1, sT1, sT2))
    F("v_lshl_add_u32 v%d, v%d, 4, s%d" % (vHB, vL, sT1))
    F("v_add_u32 v%d, s%d, v%d" % (vHL, sXS, vHB))
    F("s_lshl_b32 s%d, s%d, 11" % (sH, sR2))
    for k in range(1, 10):
        F("s_add_u32 s%d, s%d, 2048" % (sH + k, sH + k - 1))
        F("s_cmp_eq_u32 s%d, 20480" % (sH + k))
        F("s_cselect_b32 s%d, 0, s%d" % (sH + k, sH + k))
    E.play(F)
    for k in plan[4]:
        c_dma(E, k)
    stamp("dsetup", 2)
    E.wait(vm=("hst", "gpub"))
    E("s_barrier")
    E.vm("flag", "buffer_store_dwordx2 %s, v%d, %s, 0 offen sc1" % (vr(vN, 2), vF, srd(SWS)))
    stamp("flag")

    def g_loads():
        return ["buffer_load_dwordx4 %s, v%d, %s, s%d offen sc1" % (vr(GP + 8 * s + 4 * pi, 4), AD + 4 + pi, srd(SWS), sGS + s)
                for s in range(4) for pi in range(2)]
    E.play(L)
    for t in g_loads():
        E.vm("gl", t)
    for k in range(max(plan[4]) + 1):
        c_move(E, k)
    E("s_mov_b32 s%d, 0xffff0000" % sT0)
    E.wait(vm=("ds", "xp"))
    for k in range(8):
        E("v_lshlrev_b32 v%d, 16, v%d" % (DU + 2 * k, DS + k))
        E("v_and_b32 v%d, s%d, v%d" % (DU + 1 + 2 * k, sT0, DS + k))
    E("s_mov_b32 s%d, 0" % sCNT)
    stamp("xp", 2)
    E.wait(vm="gl")
    E.label("L_g")
    for k in range(8):
        E("v_xor_b32 v2, v%d, v%d" % (vN, GP + 4 * k + 2))
        E("v_xor_b32 v3, v%d, v%d" % (vN + 1, GP + 4 * k + 3))
        E("v_or3_b32 v4, v2, v3, %s" % ("v4" if k else "0"))
    E("v_cmp_ne_u32 vcc, 0, v4")
    E("s_add_u32 s%d, s%d, 1" % (sCNT, sCNT))
    E("s_cbranch_vccnz L_g_slow")
    E.label("L_g_ok")
    slow += ["L_g_slow:", "s_cmp_gt_u32 s%d, %d" % (sCNT, SPIN), "s_cbranch_scc1 L_g_ok", "s_sleep 2"] + g_loads() + ["s_waitcnt vmcnt(0)", "s_branch L_g"]
    stamp("gok", 2)
    F = Rec()
    for s in range(4):
        for pi in range(2):
            x = XP + 4 * s + 2 * pi
            g = GP + 8 * s + 4 * pi
            sk = SKIP + 8 * s + 4 * pi
            for h in range(2):
                F("v_lshlrev_b32 v2, 16, v%d" % (x + h))
                F("v_and_b32 v3, s%d, v%d" % (sT0, x + h))
                F("v_pk_mul_f32 v[4:5], v[2:3], %s" % vr(DU + 8 * pi + 2 * h, 2))
                F("v_pk_mul_f32 v[6:7], v[2:3], %s" % vr(DU + 8 * pi + 4 + 2 * h, 2))
                F("v_cvt_pk_bf16_f32 v4, v4, v5")
                F("v_cvt_pk_bf16_f32 v6, v6, v7")
                F("v_and_b32 v5, s%d, v4" % sT0)
                F("v_lshlrev_b32 v4, 16, v4")
                F("v_and_b32 v7, s%d, v6" % sT0)
                F("v_lshlrev_b32 v6, 16, v6")
                F("v_pk_mul_f32 %s, %s, v[4:5] op_sel_hi:[0,1]" % (vr(sk + 2 * h, 2), vr(g, 2)))
                F("v_pk_fma_f32 %s, %s, v[6:7], %s %s" % (vr(sk + 2 * h, 2), vr(g, 2), vr(sk + 2 * h, 2), BC_HI))
    B = Rec()
    for k in plan[5]:
        c_dma(B, k)
    for k in range(8):
        F("v_mov_b32 v%d, v%d" % (GQ[2 * k], GP + 4 * k))
        F("v_mov_b32 v%d, v%d" % (GQ[2 * k + 1], GP + 4 * k + 1))
    E.play(F, B, tail=16)
    for k in range(7):
        c_move(E, k)

    regk = [(sg, ks) for sg in range(7) for ks in range(2)]
    ldsk = [(sg, ks) for sg in range(7, 10) for ks in range(2)]
    order = []
    for P in range(20):
        order.append(ldsk.pop(0) if (P >= jit0 and (P - jit0) % 3 == 0 and ldsk) else regk.pop(0))
    jitpos = [P for P in range(20) if order[P][0] >= 7]

    def jit_read(P, n, tag):
        sg, ks = order[P]
        if n == 0:
            E.wait(vm="c%d" % sg)
        E.lg(tag, "ds_read_b128 %s, v%d offset:%d" % (vr(CJ + 4 * n, 4), vRC + 3 * ks + CSI[CSLOT[sg]][0], 2048 * n))

    def h_load(s, P):
        sg, ks = order[P]
        E.vm("h%d_%d" % (s, P), "buffer_load_dwordx4 %s, v%d, %s, s%d offen offset:%d sc1" % (vr(HBUF + 4 * P, 4), vHL, srd(SWS), sH + sg, 1024 * ks))

    stamp("winE")
    E("s_cmp_lg_u32 s%d, 0" % sW)
    E("s_cbranch_scc1 L_f_done")
    E("s_lshr_b32 s%d, s%d, 1" % (sT0, sTT))
    E("s_lshl_b32 s%d, s%d, 11" % (sT0, sT0))
    E("s_add_u32 s%d, s%d, %d" % (sT0, sT0, F_OFF))
    E("v_lshlrev_b32 v14, 7, v%d" % vL)
    E("s_mov_b32 s%d, 0" % sCNT)
    E("s_mov_b64 exec, 0xffff")
    E.label("L_f")
    E("buffer_load_dwordx2 v[16:17], v14, %s, s%d offen sc1" % (srd(SWS), sT0))
    E("s_waitcnt vmcnt(0)")
    E("v_cmp_ne_u64 vcc, v[16:17], %s" % vr(vN, 2))
    E("s_add_u32 s%d, s%d, 1" % (sCNT, sCNT))
    E("s_cbranch_vccz L_f_ok")
    E("s_cmp_gt_u32 s%d, %d" % (sCNT, SPIN))
    E("s_cbranch_scc0 L_f")
    E.label("L_f_ok")
    E("s_mov_b64 exec, -1")
    E.label("L_f_done")
    E("s_barrier")
    stamp("prod")
    if probe:
        E.wait_all(vm=True)
        E("s_barrier")
        stamp("p0")
        for rep in range(3):
            if rep == 2:
                E("s_add_u32 s%d, s%d, 128" % (sT0, sKC))
                E("s_cmp_eq_u32 s%d, 1280" % sT0)
                E("s_cselect_b32 s%d, 0, s%d" % (sT0, sT0))
            else:
                E("s_mov_b32 s%d, s%d" % (sT0, sKC))
            for u in range(10):
                E("buffer_load_dwordx4 %s, v%d, %s, s%d offen offset:%d" % (vr(16 + 4 * u, 4), vPC + u, srd(SC), sT0, 1024 * (u & 3)))
            E.wait_all(vm=True)
            E("s_barrier")
            stamp("p%d" % (rep + 1))

    for P in range(20):
        h_load(0, P)
    E("v_add_u32 v%d, s%d, v%d" % (vHL, sXS + 1, vHB))
    side = {}
    E.wait(lg=["cm%d" % k for k in range(7)])
    cap = {}

    def fits(G, kind):
        u = cap.setdefault(G, [0, 0])
        if kind == "dsw":
            return u[0] == 0
        return u[0] < 2 and not (kind == "valu" and u[1])

    def put(G, kind, fn):
        while not fits(G, kind):
            G += 1
        u = cap[G]
        u[0] += 2 if kind == "dsw" else 1
        u[1] += kind == "valu"
        if fn is not None:
            at(G, fn)
        return G

    def hwait(s, P):
        return s == 0 or P % 2 == 0 or order[P][0] >= 7

    for s in range(4):
        for P in range(20):
            if hwait(s, P) and (s or P):
                put(100 * s + 5 * P - 1, "wait", None)
    for s in range(3):
        for P in range(20):
            G = put(100 * s + 5 * P + 4, "vm", lambda s=s, P=P: h_load(s + 1, P))
        if s < 2:
            put(G, "valu", lambda s=s: E("v_add_u32 v%d, s%d, v%d" % (vHL, sXS + s + 2, vHB)))
    for n in range(5):
        put(5 * jitpos[0] - 12 + n, "ds", lambda n=n: jit_read(jitpos[0], n, "j0_%d_%d" % (jitpos[0], n)))
    for s in range(4):
        for k, P in enumerate(jitpos):
            s2, P2 = (s, jitpos[k + 1]) if k + 1 < len(jitpos) else (s + 1, jitpos[0])
            if s2 < 4:
                G = 100 * s + 5 * P
                for n in range(5):
                    G = put(max(G, 100 * s + 5 * P + n), "ds", lambda n=n, s2=s2, P2=P2: jit_read(P2, n, "j%d_%d_%d" % (s2, P2, n)))
                assert G < 100 * s2 + 5 * P2 - 5

    def final_ops(s):
        A = ACC2 + 20 * (s & 1)
        G = 100 * (s + 1) + 3
        for n in range(5):
            G = 1 + put(G, "dsw", lambda n=n: E.lg("pw%d" % s, "ds_write_b128 v%d, %s offset:%d" % (vPW, vr(A + 4 * n, 4), 20480 * (s & 1) + 64 * n)))

        def bar():
            E.wait(lg="pw%d" % s)
            E("s_barrier")
        G = put(G + 6, "dsw", bar)
        for pi in range(2):
            sk = SKIP + 8 * s + 4 * pi
            g = GQ[4 * s + 2 * pi]
            for w in range(4):
                G = put(G, "ds", lambda w=w, pi=pi: E.lg("pr%d_%d" % (s, pi), "ds_read_b128 %s, v%d offset:%d" % (vr(PART + 4 * w, 4), vPRA + pi, 20480 * (s & 1) + 5120 * w))) + 1
            G = put(G + 6, "wait", lambda pi=pi: E.wait(lg="pr%d_%d" % (s, pi)))
            for h in range(4):
                G = put(G, "valu", lambda h=h: E("v_add_f32 v%d, v%d, v%d" % (PART + h, PART + h, PART + 4 + h)))
            for h in range(4):
                G = put(G, "valu", lambda h=h: E("v_add_f32 v%d, v%d, v%d" % (PART + 8 + h, PART + 8 + h, PART + 12 + h)))
            for h in range(4):
                G = put(G, "valu", lambda h=h, sk=sk, g=g: E("v_fmac_f32 v%d, v%d, v%d" % (sk + h, g, PART + h)))
            for h in range(4):
                G = put(G, "valu", lambda h=h, sk=sk, g=g: E("v_fmac_f32 v%d, v%d, v%d" % (sk + h, g + 1, PART + 8 + h)))
            G = put(G, "vm", lambda pi=pi, sk=sk: E.vm("out", "buffer_store_dwordx4 %s, v%d, %s, s%d offen %s" % (vr(sk, 4), vOA + pi, srd(SOUT), sOS + s, outflag)))
        assert G < 100 * (s + 2), G
    for s in range(3):
        final_ops(s)
    for s in range(4):
        A = ACC2 + 20 * (s & 1)
        for P in range(20):
            sg, ks = order[P]
            if hwait(s, P):
                last = P if (s == 0 or P == 19 or hwait(s, P + 1)) else P + 1
                E.wait(vm=["h%d_%d" % (s, P), "h%d_%d" % (s, last)], lg=["j%d_%d_%d" % (s, P, n) for n in range(5)] if sg >= 7 else ())
            if P == 0:
                stamp("step%d" % s, 2)
            for n in range(5):
                G = 100 * s + 5 * P + n
                cf = cfrag(sg, ks, n) or vr(CJ + 4 * n, 4)
                d = vr(A + 4 * n, 4)
                E("v_mfma_f32_16x16x32_bf16 %s, %s, %s, %s" % (d, cf, vr(HBUF + 4 * P, 4), d if P else "0"))
                for fn in side.pop(G, []):
                    fn()
    assert not side, sorted(side)
    stamp("gemm2")
    A = ACC2 + 20
    E("s_nop 3")
    for n in range(5):
        if n == 4:
            E("s_nop 3")
        E.lg("pw3", "ds_write_b128 v%d, %s offset:%d" % (vPW, vr(A + 4 * n, 4), 20480 + 64 * n))
    E.wait(lg="pw3")
    E("s_barrier")
    for pi in range(2):
        for w in range(4):
            E.lg("pr3_%d" % pi, "ds_read_b128 %s, v%d offset:%d" % (vr(HBUF + 16 * pi + 4 * w, 4), vPRA + pi, 20480 + 5120 * w))
    for pi in range(2):
        sk = SKIP + 24 + 4 * pi
        p = HBUF + 16 * pi
        g = GQ[12 + 2 * pi]
        E.wait(lg="pr3_%d" % pi)
        for h in range(2):
            E("v_pk_add_f32 %s, %s, %s" % (vr(p + 2 * h, 2), vr(p + 2 * h, 2), vr(p + 4 + 2 * h, 2)))
            E("v_pk_add_f32 %s, %s, %s" % (vr(p + 8 + 2 * h, 2), vr(p + 8 + 2 * h, 2), vr(p + 12 + 2 * h, 2)))
        for h in range(2):
            E("v_pk_fma_f32 %s, %s, %s, %s %s" % (vr(sk + 2 * h, 2), vr(g, 2), vr(p + 2 * h, 2), vr(sk + 2 * h, 2), BC_LO))
        for h in range(2):
            E("v_pk_fma_f32 %s, %s, %s, %s %s" % (vr(sk + 2 * h, 2), vr(g, 2), vr(p + 8 + 2 * h, 2), vr(sk + 2 * h, 2), BC_HI))
        E.vm("out", "buffer_store_dwordx4 %s, v%d, %s, s%d offen %s" % (vr(sk, 4), vOA + pi, srd(SOUT), sOS + 3, lastflag))
    if stamps:
        stamp("fin", 1 if not probe else 2)
        E.wait_all(vm=True)
        stamp("drain")
        E("s_memrealtime s[100:101]")
        E("s_waitcnt lgkmcnt(0)")
        E("s_mov_b32 s%d, s100" % (sSTAMP + 16))
        E("s_lshl_b32 s%d, s2, 2" % sT0)
        E("s_add_u32 s%d, s%d, s%d" % (sT0, sT0, sW))
        E("s_lshl_b32 s%d, s%d, 7" % (sT0, sT0))
        E("s_add_u32 s%d, s%d, %d" % (sT0, sT0, ST_OFF))
        E("v_mov_b32 v2, 0")
        for k in range(18):
            E("v_mov_b32 v3, s%d" % (sSTAMP + k))
            E("buffer_store_dword v3, v2, %s, s%d offen offset:%d sc1" % (srd(SWS), sT0, 4 * k))
        E("buffer_store_dword v253, v2, %s, s%d offen offset:72 sc1" % (srd(SWS), sT0))
        E("buffer_store_dword v254, v2, %s, s%d offen offset:76 sc1" % (srd(SWS), sT0))
        E("s_waitcnt vmcnt(0)")
    E.label("L_end")
    E("s_endpgm")
    for t in slow:
        E(t)
    E.label("L_last")
    body = E.text()
    if stamps:
        body = "; STAMPS " + " ".join(names) + "\n" + body
    probs = check_hazards(body)
    assert not probs, "hazards"
    return body


HEADER = open("gated_mix__ssm_conv_s5__ssm_conv_s5__prompt.s.ref").read()


def full_file(**kw):
    body = generate(**kw)
    head = HEADER[:HEADER.index("; Override launch geometry")]
    out = head
    out += "; Generated by a hand-written scheduler script (fused two-phase kernel, one workgroup per CU).\n"
    out += "; @launch grid=(256,1,1) block=(256,1,1) lds=163840\n"
    out += '.amdgcn_target "amdgcn-amd-amdhsa--gfx950"\n.text\n.globl %s\n.p2align 8\n.type %s,@function\n%s:\n' % (KNAME, KNAME, KNAME)
    out += body + "\ns_endpgm\n"
    out += """.section .rodata,"a"
.p2align 6
.amdhsa_kernel %s
  .amdhsa_next_free_vgpr 512
  .amdhsa_next_free_sgpr 102
  .amdhsa_accum_offset 256
  .amdhsa_group_segment_fixed_size 0
  .amdhsa_kernarg_size 176
  .amdhsa_user_sgpr_count 2
  .amdhsa_user_sgpr_kernarg_segment_ptr 1
  .amdhsa_system_sgpr_workgroup_id_x 1
  .amdhsa_float_denorm_mode_32 3
.end_amdhsa_kernel
""" % KNAME
    return out


if __name__ == "__main__":
    import ast
    kw = {}
    path = sys.argv[1]
    for a in sys.argv[2:]:
        k, v = a.split("=", 1)
        try:
            kw[k] = ast.literal_eval(v)
        except Exception:
            kw[k] = v
    open(path, "w").write(full_file(**kw))
    print("wrote", path)
```

```python
import sys
from asmlib import Emitter, Rec, check_hazards

KNAME = "gated_mix__ssm_conv_s5__ssm_conv_s5__prompt_kernel"

MAT = 128 * 40 * 512
E_OFF = 4 * MAT
G_OFF = E_OFF + 16 * 16 * 640
F_OFF = G_OFF + 2048 * 16
R_OFF = F_OFF + 256 * 128
N_OFF = R_OFF + 256 * 128
X_OFF = N_OFF + 128
ST_OFF = X_OFF + 256 * 24576
TAGK = 0x9E3779B9
OOB = 0x7FF00000
SLOT = 40960
ETAB = SLOT
TTAB = SLOT + 11520
TRS = SLOT + 23040
PTAB = SLOT + 36864
RED = SLOT
SPIN = 1 << 16

SX, SB, SC, SWS, SE, SDBG, SOUT, ST0, ST1, ST2 = 4, 8, 12, 16, 20, 24, 28, 32, 36, 40
sW = 3
sI, sJ, sDT = 88, 89, 91
sM0X, sM0B, sM0C = 92, 93, 94
sK, sKC = 95, 96
sT0, sT1, sT2 = 97, 98, 99
sCNT = 100
sR2 = 101
sH = 44
sXW, sXR = 49, 51
sRD = 53
sSEL = 54
sHB0, sHB1 = 54, 55
sE1, sE2 = 56, 57
sTO = 58
sO = 66
sSTAMP = 70


def srd(r):
    return "s[%d:%d]" % (r, r + 3)


def vr(r, n=1):
    return "v%d" % r if n == 1 else "v[%d:%d]" % (r, r + n - 1)


def ar(r, n=1):
    return "a%d" % r if n == 1 else "a[%d:%d]" % (r, r + n - 1)


vL = 1
ACC = 16
HBUF = 16
BF = 96
AF = 136
vRA, vRB, vDX = 156, 164, 172
vDB = 248
vPC = 238
vRC = 180
vN = 186
vTW, vTD = 176, 177
vXA = (178, 178, 179)
vXL = (178, 178, 152)
vHL, vPW = 190, 191
vPR = ((192, 193, 189), (148, 149, 150))
vO = (194, 195, 188)
vFA = 255
PARK = 200
vE, vG, vF, vHB = 196, 197, 198, 199
PA, PCF = 200, 220
SKIP = 200
GS = 180
GO = (136, 138, 140, 142, 144, 146)
vA8, vA128, vCO = 232, 234, 236
ACC2 = 96
PART = (232, 156, 32)
XD = (2, 16)


def acc(mt, nt):
    return ACC + (mt * 10 + nt) * 4


def U(kind, n, s):
    return acc(s >> 1, n + 5 * kind) + 2 * (s & 1)


def cfrag(sig, ks, n):
    return ar(40 * sig + 4 * (ks * 5 + n), 4)


CSLOT = {0: 2, 1: 3, 2: 0, 3: 2, 4: 3}
CSI = {0: 0, 2: 1, 3: 2}

BC_LO = "op_sel_hi:[0,1,1]"
BC_HI = "op_sel:[1,0,0] op_sel_hi:[1,1,1]"
BC_HI_SW = "op_sel:[1,1,0] op_sel_hi:[1,0,1]"
NEG0 = "neg_lo:[1,0,0] neg_hi:[1,0,0]"
LOG2E = 0x3FB8AA3B
LOG2E_LO = 0x32A5705F
LN2 = 0x3F317218


def generate(rot1=(1, 3), rot2=(1, 1, 1), stamps=False, outflag="sc1", lastflag="sc1", dmaflag="", cflag="",
             fine=(), npro=2, plan=((0,), (), (1,), (2,), (3, 4), ()), hflag="sc1", pf=1, xflag=None, gxd=(270, 370), early=0, lpos=0, v2=(), xflag2='sc1', nox=0):
    E = Emitter()
    names = []

    def stamp(name="", lvl=1):
        if stamps and (lvl == 1 or name in fine):
            k = len(names)
            names.append(name)
            assert k < 15
            E("s_memtime s[%d:%d]" % (sT1, sT1 + 1))
            E.wait_all(lg=True)
            E("s_mov_b32 s%d, s%d" % (sSTAMP + k, sT1))

    def estamp(k):
        if stamps:
            E("s_memtime s[%d:%d]" % (sT1, sT1 + 1))
            E("s_waitcnt lgkmcnt(0)")
            E("v_mov_b32 v%d, s%d" % (253 + k, sT1))

    def cmul(dst, x, y):
        E("v_pk_mul_f32 %s, %s, %s op_sel_hi:[0,1]" % (vr(dst, 2), vr(x, 2), vr(y, 2)))
        E("v_pk_fma_f32 %s, %s, %s, %s %s neg_lo:[0,1,0]" % (vr(dst, 2), vr(x, 2), vr(y, 2), vr(dst, 2), BC_HI_SW))

    def mod10(r, t):
        E("s_mul_i32 s%d, s%d, 6554" % (t, r))
        E("s_lshr_b32 s%d, s%d, 16" % (t, t))
        E("s_mul_i32 s%d, s%d, 10" % (t, t))
        E("s_sub_u32 s%d, s%d, s%d" % (r, r, t))

    E("s_cmp_ge_u32 s2, 256")
    E("s_cbranch_scc1 L_end")
    E("s_load_dwordx16 s[44:59], s[0:1], 0")
    E("s_load_dwordx16 s[60:75], s[0:1], 64")
    E("s_load_dwordx8 s[76:83], s[0:1], 128")
    E("s_load_dwordx4 s[84:87], s[0:1], 160")
    if stamps:
        E("s_memrealtime s[16:17]")
        E("s_memtime s[18:19]")
    E("s_getpc_b64 s[98:99]")
    E.label("L_pc")
    E.c("pull this kernel's own code into L2 while the first tiles are fetched (1 KB per workgroup)")
    E("s_lshr_b32 s%d, s2, 3" % sKC)
    E("v_min_u32 v2, 7, v0")
    E("v_lshl_add_u32 v2, s%d, 3, v2" % sKC)
    E("v_lshlrev_b32 v2, 7, v2")
    E("v_min_u32 v2, L_last-L_pc, v2")
    if pf:
        E.vm("pf", "global_load_dword v255, v2, s[98:99]")
    E("v_lshrrev_b32 v4, 6, v0")
    E("v_and_b32 v%d, 63, v0" % vL)
    E("v_readfirstlane_b32 s%d, v4" % sW)
    E("s_and_b32 s%d, s2, 7" % sR2)
    E("s_and_b32 s%d, s%d, 1" % (sI, sR2))
    E("s_lshl_b32 s%d, s%d, 3" % (sI, sI))
    E("s_and_b32 s%d, s%d, 7" % (sDT, sKC))
    E("s_add_u32 s%d, s%d, s%d" % (sI, sI, sDT))
    E("s_lshr_b32 s%d, s%d, 1" % (sJ, sR2))
    E("s_lshl_b32 s%d, s%d, 2" % (sJ, sJ))
    E("s_lshr_b32 s%d, s%d, 3" % (sK, sKC))
    E("s_add_u32 s%d, s%d, s%d" % (sJ, sJ, sK))
    if rot1 == (0, 0):
        E("s_mov_b32 s%d, 0" % sK)
    else:
        E("s_mul_i32 s%d, s%d, %d" % (sK, sI, rot1[0]))
        E("s_mul_i32 s%d, s%d, %d" % (sT0, sJ, rot1[1]))
        E("s_add_u32 s%d, s%d, s%d" % (sK, sK, sT0))
        mod10(sK, sT0)
        E("s_lshl_b32 s%d, s%d, 7" % (sK, sK))
    E("s_lshl_b32 s%d, s%d, 12" % (sM0X, sW))
    E("s_mul_i32 s%d, s%d, 5120" % (sM0B, sW))
    E("s_add_u32 s%d, s%d, 16384" % (sM0B, sM0B))
    E("s_mul_i32 s%d, s%d, 10240" % (sM0C, sW))
    E("v_lshrrev_b32 v4, 4, v%d" % vL)
    E("v_and_b32 v5, 7, v%d" % vL)
    E("v_xor_b32 v5, v5, v4")
    E("v_lshlrev_b32 v5, 4, v5")
    E("v_lshrrev_b32 v6, 5, v%d" % vL)
    E("v_lshlrev_b32 v6, 3, v6")
    E("v_bfe_u32 v8, v%d, 3, 1" % vL)
    E("v_lshl_add_u32 v6, v8, 2, v6")
    E("v_and_b32 v8, 1, v4")
    E("v_add_u32 v6, v6, v8")
    E("s_lshl_b32 s%d, s%d, 7" % (sT0, sI))
    E("s_lshl_b32 s%d, s%d, 5" % (sT1, sW))
    E("s_add_u32 s%d, s%d, s%d" % (sT0, sT0, sT1))
    E("v_add_u32 v6, s%d, v6" % sT0)
    E("v_mul_u32_u24 v6, 1280, v6")
    E("v_add_u32 v%d, v6, v5" % (vDX + 0))
    E("v_xor_b32 v6, 64, v%d" % (vDX + 0))
    E("v_add_u32 v%d, %d, v6" % (vDX + 1, 16 * 1280 - 1024))
    E("v_add_u32 v%d, %d, v%d" % (vDX + 2, 2 * 1280 - 2048, vDX + 0))
    E("v_add_u32 v%d, %d, v6" % (vDX + 3, 18 * 1280 - 3072))
    E("v_lshrrev_b32 v7, 3, v%d" % vL)
    E("v_mul_u32_u24 v7, 1280, v7")
    E("v_add_u32 v7, v7, v5")
    E("s_and_b32 s%d, s%d, 7" % (sT0, sJ))
    E("s_mul_i32 s%d, s%d, 80" % (sT0, sT0))
    E("s_and_b32 s%d, s%d, 1" % (sT1, sW))
    E("s_mul_i32 s%d, s%d, 40" % (sT2, sT1))
    E("s_add_u32 s%d, s%d, s%d" % (sT2, sT2, sT0))
    E("s_mul_i32 s%d, s%d, 1280" % (sT2, sT2))
    E("s_lshl_b32 s%d, s%d, 6" % (sT1, sT1))
    E("v_xor_b32 v8, s%d, v7" % sT1)
    E("v_add_u32 v%d, s%d, v8" % (vDB + 0, sT2))
    E("v_xor_b32 v8, 64, v%d" % (vDB + 0))
    E("v_add_u32 v%d, %d, v8" % (vDB + 1, 8 * 1280 - 1024))
    E("v_add_u32 v%d, %d, v%d" % (vDB + 2, 16 * 1280 - 2048, vDB + 0))
    E("v_add_u32 v%d, %d, v8" % (vDB + 3, 24 * 1280 - 3072))
    E("v_add_u32 v%d, %d, v%d" % (vDB + 4, 32 * 1280, vDB + 0))
    E("s_mul_i32 s%d, s%d, 20" % (sT1, sW))
    E("v_add_u32 v10, s%d, v%d" % (sT1, vL))
    E("v_add_u32 v9, s%d, v10" % sT0)
    E("v_lshlrev_b32 v9, 1, v9")
    E("s_waitcnt lgkmcnt(0)")
    estamp(0)
    if stamps:
        E("s_mov_b32 s62, s16")
        E("s_mov_b32 s63, s18")
    E("s_mov_b32 s%d, s44" % SX)
    E("s_mov_b32 s%d, s45" % (SX + 1))
    E("s_mov_b32 s%d, %d" % (SX + 2, 2048 * 1280))
    E("s_mov_b32 s%d, 0x20000" % (SX + 3))
    E("s_cmp_ge_u32 s%d, 8" % sJ)
    E("s_cselect_b64 s[50:51], s[68:69], s[50:51]")
    E("s_cselect_b64 s[52:53], s[70:71], s[52:53]")
    E("s_cselect_b64 s[%d:%d], s[64:65], s[46:47]" % (ST0, ST0 + 1))
    E("s_cselect_b64 s[%d:%d], s[66:67], s[48:49]" % (ST1, ST1 + 1))
    E("s_cselect_b64 s[%d:%d], s[76:77], s[58:59]" % (ST2, ST2 + 1))
    E("s_cmp_ge_u32 s%d, 2" % sW)
    E("s_cselect_b64 s[%d:%d], s[52:53], s[50:51]" % (SB, SB + 1))
    E("s_mov_b32 s%d, %d" % (SB + 2, 640 * 1280))
    E("s_mov_b32 s%d, 0x20000" % (SB + 3))

    def dma_stage_ops(n):
        slot = (n % 4) * SLOT
        ops = []
        for u in range(4):
            pre = ["s_add_u32 m0, s%d, %d" % (sM0X, slot)] if u == 0 else []
            ops.append((pre, "buffer_load_dwordx4 v%d, %s, s%d offen offset:%d %s lds" % (vDX + u, srd(SX), sK, 1024 * u, dmaflag if xflag is None else xflag), []))
        for v in range(5):
            pre = []
            if v == 0:
                pre = ["s_add_u32 m0, s%d, %d" % (sM0B, slot)]
            if v == 4:
                pre = ["s_add_u32 m0, s%d, %d" % (sM0B, slot + 4096)]
            post = []
            if v == 4:
                post = ["s_add_u32 s%d, s%d, 128" % (sK, sK)]
                if rot1 != (0, 0):
                    post += ["s_cmp_eq_u32 s%d, 1280" % sK, "s_cselect_b32 s%d, 0, s%d" % (sK, sK)]
            ops.append((pre, "buffer_load_dwordx4 v%d, %s, s%d offen offset:%d %s lds" % (vDB + v, srd(SB), sK, 1024 * (v & 3) if v < 4 else 0, dmaflag), post))
        return ops

    def dma_c_ops(sig):
        slot = CSLOT[sig] * SLOT
        ops = []
        for u in range(10):
            pre = ["s_add_u32 m0, s%d, %d" % (sM0C, slot + 4096 * (u >> 2))] if (u & 3) == 0 else []
            post = []
            if u == 9:
                post = ["s_add_u32 s%d, s%d, 128" % (sKC, sKC), "s_cmp_eq_u32 s%d, 640" % sKC, "s_cselect_b32 s%d, 0, s%d" % (sKC, sKC)]
            ops.append((pre, "buffer_load_dwordx4 v%d, %s, s%d offen offset:%d %s lds" % (vPC + u, srd(SC), sKC, 1024 * (u & 3), cflag), post))
        return ops

    def emit_dma(R, tag, ops):
        for pre, d, post in ops:
            for p in pre:
                R(p)
                R("s_nop 0")
            R.vm(tag, d)
            for p in post:
                R(p)
            if isinstance(R, Rec):
                R.mark()

    for r in (ST0, ST1, ST2):
        E("s_mov_b32 s%d, 1280" % (r + 2))
        E("s_mov_b32 s%d, 0x20000" % (r + 3))
    E.vm("par0", "buffer_load_ushort v11, v9, %s, 0 offen" % srd(ST0))
    E.vm("par0", "buffer_load_ushort v12, v9, %s, 0 offen" % srd(ST1))
    E.vm("par0", "buffer_load_ushort v13, v9, %s, 0 offen" % srd(ST2))
    emit_dma(E, "st0", dma_stage_ops(0))
    estamp(1)
    E("s_bitcmp1_b32 s2, 0")
    E("s_cselect_b64 s[54:55], s[72:73], s[54:55]")
    E("s_cselect_b64 s[56:57], s[74:75], s[56:57]")
    E("s_cselect_b64 s[%d:%d], s[78:79], s[60:61]" % (ST1, ST1 + 1))
    E("s_cselect_b64 s[%d:%d], s[60:61], s[78:79]" % (ST2, ST2 + 1))
    E("s_cmp_ge_u32 s%d, 2" % sW)
    E("s_cselect_b64 s[%d:%d], s[56:57], s[54:55]" % (SC, SC + 1))
    E("s_mov_b32 s%d, %d" % (SC + 2, 640 * 1280))
    E("s_mov_b32 s%d, 0x20000" % (SC + 3))
    if stamps:
        E("s_mov_b32 s44, s62")
        E("s_mov_b32 s45, s63")
    E("s_mov_b32 s%d, s86" % SWS)
    E("s_mov_b32 s%d, s87" % (SWS + 1))
    E("s_mov_b32 s%d, %d" % (SWS + 2, ST_OFF + (256 * 4 * 128 if stamps else 0)))
    E("s_mov_b32 s%d, 0x20000" % (SWS + 3))
    E("s_mul_i32 s%d, s%d, 10240" % (sT0, sJ))
    E("s_add_u32 s%d, s%d, %d" % (sT0, sT0, E_OFF))
    E("s_add_u32 s%d, s86, s%d" % (SE, sT0))
    E("s_addc_u32 s%d, s87, 0" % (SE + 1))
    E("s_mov_b32 s%d, 10240" % (SE + 2))
    E("s_mov_b32 s%d, 0x20000" % (SE + 3))
    E("s_mov_b32 s%d, s84" % SDBG)
    E("s_mov_b32 s%d, s85" % (SDBG + 1))
    E("s_mov_b32 s%d, 256" % (SDBG + 2))
    E("s_mov_b32 s%d, 0x20000" % (SDBG + 3))
    E("s_mov_b32 s%d, s82" % SOUT)
    E("s_mov_b32 s%d, s83" % (SOUT + 1))
    E("s_mov_b32 s%d, %d" % (SOUT + 2, 2048 * 640 * 4))
    E("s_mov_b32 s%d, 0x20000" % (SOUT + 3))
    E("s_mov_b32 s%d, s80" % ST0)
    E("s_mov_b32 s%d, s81" % (ST0 + 1))
    if stamps:
        E("s_mov_b32 s%d, s44" % (sSTAMP + 17))
        E("s_mov_b32 s%d, s45" % (sSTAMP + 15))
    E("v_mov_b32 v4, 0x%x" % OOB)
    E("v_lshl_or_b32 v2, s2, 8, v0")
    E("v_cmp_eq_u32 vcc, 0, v2")
    E("v_mov_b32 v3, %d" % N_OFF)
    E("s_sub_u32 s%d, 15, s%d" % (sT0, sI))
    E("v_cndmask_b32 v%d, v4, v3, vcc" % vTW)
    E("v_cndmask_b32 v%d, v4, v2, vcc" % vTD)
    E.vm("tagw", "buffer_load_dword v%d, v%d, %s, 0 offen sc1" % (vN, vTW, srd(SWS)))
    E("s_mul_i32 s%d, s%d, 640" % (sT0, sT0))
    E("v_lshlrev_b32 v2, 3, v10")
    E("v_add_u32 v2, s%d, v2" % sT0)
    E("v_cmp_gt_u32 vcc, 20, v%d" % vL)
    E("s_lshl_b32 s%d, s%d, 7" % (sT0, sI))
    E("s_lshl_b32 s%d, s%d, 3" % (sT1, sJ))
    E("v_cndmask_b32 v%d, v4, v2, vcc" % vE)
    E("v_mov_b32 v14, -1")
    E("v_mov_b32 v15, -1")
    E.vm("clr", "buffer_store_dwordx2 v[14:15], v%d, %s, 0 offen sc1" % (vE, srd(SE)))
    E("s_add_u32 s%d, s%d, s%d" % (sT0, sT0, sT1))
    E("s_lshl_b32 s%d, s%d, 1" % (sT1, sW))
    E("s_add_u32 s%d, s%d, s%d" % (sT0, sT0, sT1))
    E("v_lshrrev_b32 v2, 5, v%d" % vL)
    E("v_add_u32 v8, s%d, v2" % sT0)
    E("v_lshlrev_b32 v2, 4, v8")
    E("v_add_u32 v2, %d, v2" % G_OFF)
    E("v_and_b32 v3, 31, v%d" % vL)
    E("v_cmp_eq_u32 vcc, 0, v3")
    E("s_lshl_b32 s%d, s%d, 4" % (sT0, sI))
    E("s_add_u32 s%d, s%d, s%d" % (sT0, sT0, sJ))
    E("v_cndmask_b32 v%d, v4, v2, vcc" % vG)
    E("s_lshl_b32 s%d, s%d, 7" % (sT0, sT0))
    E("s_add_u32 s%d, s%d, %d" % (sT0, sT0, F_OFF))
    E("v_mov_b32 v2, s%d" % sT0)
    E("v_cmp_eq_u32 vcc, 0, v0")
    E("s_mov_b32 s%d, %d" % (sRD, R_OFF - F_OFF))
    E("s_mov_b32 s%d, 0" % sCNT)
    E("v_cndmask_b32 v%d, v4, v2, vcc" % vF)
    E("v_and_b32 v2, 15, v%d" % vL)
    E("v_lshrrev_b32 v3, 1, v2")
    E("v_lshrrev_b32 v4, 4, v%d" % vL)
    E("v_xor_b32 v3, v3, v4")
    E("v_lshlrev_b32 v3, 4, v3")
    E("v_lshl_add_u32 v2, v2, 7, v3")
    E("v_xor_b32 v3, 64, v2")
    for ks in range(2):
        E("v_add_u32 v%d, s%d, v%d" % (vRA + 4 * ks, sM0X, 2 + ks))
        E("v_add_u32 v%d, 16384, v%d" % (vRB + 4 * ks, 2 + ks))
        E("v_add_u32 v%d, s%d, v%d" % (vRC + 3 * ks, sM0C, 2 + ks))
        for s in range(1, 4):
            E("v_add_u32 v%d, %d, v%d" % (vRA + 4 * ks + s, s * SLOT, vRA + 4 * ks))
            E("v_add_u32 v%d, %d, v%d" % (vRB + 4 * ks + s, s * SLOT, vRB + 4 * ks))
        E("v_add_u32 v%d, %d, v%d" % (vRC + 3 * ks + 1, 2 * SLOT, vRC + 3 * ks))
        E("v_add_u32 v%d, %d, v%d" % (vRC + 3 * ks + 2, 3 * SLOT, vRC + 3 * ks))
    E("s_mul_i32 s%d, s%d, %d" % (sT0, sDT, 80 * 1280))
    E("s_and_b32 s%d, s%d, 1" % (sT1, sW))
    E("s_mul_i32 s%d, s%d, 640" % (sT1, sT1))
    E("s_add_u32 s%d, s%d, s%d" % (sT0, sT0, sT1))
    E("v_add_u32 v%d, s%d, v7" % (vPC, sT0))
    E("v_xor_b32 v7, 64, v%d" % vPC)
    for u in range(1, 10):
        E("v_add_u32 v%d, %d, v%d" % (vPC + u, 8 * u * 1280 - 1024 * (u & 3), 7 if (u & 1) else vPC))
    E("s_lshr_b32 s%d, s%d, 1" % (sR2, sR2))
    E("s_mul_i32 s%d, s%d, %d" % (sR2, sR2, rot2[2]))
    E("s_and_b32 s%d, s%d, 3" % (sT0, sJ))
    E("s_mul_i32 s%d, s%d, %d" % (sT0, sT0, rot2[0]))
    E("s_add_u32 s%d, s%d, s%d" % (sR2, sR2, sT0))
    E("s_mul_i32 s%d, s%d, %d" % (sT0, sDT, rot2[1]))
    E("s_add_u32 s%d, s%d, s%d" % (sR2, sR2, sT0))
    E("s_mul_i32 s%d, s%d, 13108" % (sT0, sR2))
    E("s_lshr_b32 s%d, s%d, 16" % (sT0, sT0))
    E("s_mul_i32 s%d, s%d, 5" % (sT0, sT0))
    E("s_sub_u32 s%d, s%d, s%d" % (sR2, sR2, sT0))
    E("s_mul_i32 s%d, s%d, 3072" % (sT0, sW))
    E("s_add_u32 s%d, s%d, %d" % (sT0, sT0, X_OFF))
    E("s_mul_i32 s%d, s2, 24576" % sXW)
    E("s_add_u32 s%d, s%d, s%d" % (sXW, sXW, sT0))
    E("s_add_u32 s%d, s%d, 12288" % (sXW + 1, sXW))
    E("s_xor_b32 s%d, s2, 1" % sXR)
    E("s_mul_i32 s%d, s%d, 24576" % (sXR, sXR))
    E("s_add_u32 s%d, s%d, s%d" % (sXR, sXR, sT0))
    E("s_add_u32 s%d, s%d, 12288" % (sXR + 1, sXR))
    E("v_cmp_gt_u32 vcc, 32, v%d" % vL)
    E("v_lshlrev_b32 v%d, 4, v%d" % (vXA[0], vL))
    E("v_mov_b32 v4, 0x%x" % OOB)
    E("s_nop 0")
    E("v_cndmask_b32 v%d, v4, v%d, vcc" % (vXA[2], vXA[0]))
    E("s_lshl_b32 s%d, s%d, 7" % (sKC, sR2))

    def park(k, v):
        E("v_accvgpr_write_b32 a%d, v%d" % (PARK + k, v))

    def unpark(R, k, v):
        R("v_accvgpr_read_b32 v%d, a%d" % (v, PARK + k))

    E("v_and_b32 v2, 15, v%d" % vL)
    E("v_lshrrev_b32 v3, 4, v%d" % vL)
    E("v_bfe_u32 v4, v2, 1, 2")
    E("v_xor_b32 v4, v4, v3")
    E("v_bfe_u32 v5, v2, 3, 1")
    E("v_lshlrev_b32 v5, 1, v5")
    E("v_xor_b32 v4, v4, v5")
    E("v_lshlrev_b32 v4, 4, v4")
    E("s_lshl_b32 s%d, s%d, 11" % (sT0, sW))
    E("s_add_u32 s%d, s%d, %d" % (sT0, sT0, TRS))
    E("v_lshl_add_u32 v4, v2, 6, v4")
    E("v_add_u32 v7, s%d, v4" % sT0)
    park(0, 7)
    E("v_lshrrev_b32 v4, 2, v2")
    E("v_lshl_add_u32 v5, v3, 3, v4")
    E("v_lshlrev_b32 v5, 6, v5")
    E("v_lshrrev_b32 v4, 1, v4")
    E("v_bfe_u32 v6, v2, 1, 1")
    E("v_xor_b32 v4, v4, v6")
    E("v_lshl_add_u32 v5, v4, 4, v5")
    E("v_and_b32 v4, 1, v2")
    E("v_lshl_add_u32 v5, v4, 3, v5")
    E("v_and_b32 v4, 1, v3")
    E("v_lshl_add_u32 v5, v4, 5, v5")
    E("v_add_u32 v7, s%d, v5" % sT0)
    park(1, 7)
    E("v_xor_b32 v7, 32, v7")
    park(2, 7)
    E("v_and_b32 v4, 31, v%d" % vL)
    E("v_lshlrev_b32 v4, 4, v4")
    E("v_lshrrev_b32 v5, 5, v%d" % vL)
    E("v_mul_u32_u24 v5, %d, v5" % MAT)
    E("v_add_u32 v7, v4, v5")
    park(3, 7)
    E("s_lshr_b32 s%d, s%d, 3" % (sT0, sJ))
    E("s_mul_i32 s%d, s%d, %d" % (sHB0, sT0, 2 * MAT))
    E("s_lshl_b32 s%d, s%d, 3" % (sT0, sI))
    E("s_lshl_b32 s%d, s%d, 1" % (sT1, sW))
    E("s_add_u32 s%d, s%d, s%d" % (sT0, sT0, sT1))
    E("s_mul_i32 s%d, s%d, 20480" % (sT0, sT0))
    E("s_add_u32 s%d, s%d, s%d" % (sHB0, sHB0, sT0))
    E("s_and_b32 s%d, s%d, 7" % (sT0, sJ))
    E("s_mul_i32 s%d, s%d, 2560" % (sT0, sT0))
    E("s_add_u32 s%d, s%d, s%d" % (sHB0, sHB0, sT0))
    E("s_add_u32 s%d, s%d, 20480" % (sHB1, sHB0))
    E("s_and_b32 s%d, s2, 1" % sT0)
    E("s_lshl_b32 s%d, s%d, 1" % (sT0, sT0))
    E("s_sub_u32 s%d, 2, s%d" % (sT0, sT0))
    E("v_bfe_u32 v15, v%d, 3, 2" % vL)
    E("v_add_u32 v15, s%d, v15" % sT0)
    E("v_and_b32 v15, 3, v15")
    for k in range(4):
        E("s_and_b32 s%d, s%d, 3" % (sT0, sT0))
        E("s_mul_i32 s%d, s%d, 40960" % (sTO + 2 * k, sT0))
        E("s_add_u32 s%d, s%d, 20480" % (sTO + 2 * k + 1, sTO + 2 * k))
        if k >= 2:
            E("s_lshl_b32 s%d, s%d, 1" % (sO + k - 2, sTO + 2 * k))
        E("s_add_u32 s%d, s%d, 1" % (sT0, sT0))
    E("s_lshl_b32 s%d, s%d, 3" % (sT1, sW))
    E("s_lshl_b32 s%d, s%d, 7" % (sT0, sJ))
    E("s_add_u32 s%d, s%d, s%d" % (sT0, sT0, sT1))
    E("v_and_b32 v2, 7, v%d" % vL)
    E("v_lshl_add_u32 v2, v15, 5, v2")
    E("v_add_u32 v2, s%d, v2" % sT0)
    E("v_lshlrev_b32 v2, 4, v2")
    E("v_add_u32 v2, %d, v2" % G_OFF)
    park(10, 2)
    E("s_mul_i32 s%d, s%d, 160" % (sT2, sDT))
    E("v_cmp_gt_u32 vcc, 32, v%d" % vL)
    for pi in range(3):
        if pi == 0:
            E("v_mov_b32 v2, v%d" % vL)
        elif pi == 1:
            E("v_add_u32 v2, 64, v%d" % vL)
        else:
            E("v_min_u32 v2, 31, v%d" % vL)
            E("v_add_u32 v2, 128, v2")
        E("v_mul_u32_u24 v3, 205, v2")
        E("v_lshrrev_b32 v3, 12, v3")
        E("v_mul_u32_u24 v4, 20, v3")
        E("v_sub_u32 v4, v2, v4")
        E("v_lshlrev_b32 v6, 2, v3")
        park(11 + pi, 6)
        E("v_lshl_add_u32 v6, v4, 3, s%d" % sT2)
        park(4 + pi, 6)
        E("v_add_u32 v5, s%d, v3" % sT0)
        E("v_mul_u32_u24 v5, 1280, v5")
        E("v_add_u32 v5, v5, v6")
        park(7 + pi, 5)
        E("v_lshlrev_b32 v%d, 1, v5" % vO[pi])
        E("v_add_u32 v3, s%d, v3" % sT1)
        E("v_bfe_u32 v5, v3, 1, 2")
        E("v_xor_b32 v5, v5, v4")
        E("v_lshlrev_b32 v5, 4, v5")
        E("v_mul_u32_u24 v3, 320, v3")
        E("v_add_u32 v%d, v3, v5" % vPR[0][pi])
    E("v_mov_b32 v6, 0x%x" % OOB)
    E("v_cndmask_b32 v%d, v6, v%d, vcc" % (vO[2], vO[2]))
    E("v_and_b32 v2, 15, v%d" % vL)
    E("v_lshrrev_b32 v3, 4, v%d" % vL)
    E("v_bfe_u32 v4, v2, 1, 2")
    E("v_xor_b32 v3, v3, v4")
    E("v_lshlrev_b32 v3, 4, v3")
    E("v_mul_u32_u24 v2, 320, v2")
    E("v_add3_u32 v%d, v2, v3, s%d" % (vPW, sM0C))
    E("s_and_b32 s%d, s2, 1" % sT1)
    E("s_lshl_b32 s%d, s%d, 1" % (sT1, sT1))
    E("s_lshr_b32 s%d, s%d, 1" % (sT2, sW))
    E("s_add_u32 s%d, s%d, s%d" % (sT1, sT1, sT2))
    E("s_mul_i32 s%d, s%d, %d" % (sT1, sT1, MAT))
    E("s_mul_i32 s%d, s%d, %d" % (sT2, sJ, 8 * 20480))
    E("s_add_u32 s%d, s%d, s%d" % (sT1, sT1, sT2))
    E("s_and_b32 s%d, s%d, 1" % (sT2, sW))
    E("s_mul_i32 s%d, s%d, 10240" % (sT2, sT2))
    E("s_add_u32 s%d, s%d, s%d" % (sT1, sT1, sT2))
    E("v_lshl_add_u32 v%d, v%d, 4, s%d" % (vHB, vL, sT1))
    E("v_add_u32 v%d, s%d, v%d" % (vHL, sTO, vHB))
    E("s_lshl_b32 s%d, s%d, 11" % (sH, sR2))
    for k in range(1, 5):
        E("s_add_u32 s%d, s%d, 2048" % (sH + k, sH + k - 1))
        E("s_cmp_eq_u32 s%d, 10240" % (sH + k))
        E("s_cselect_b32 s%d, 0, s%d" % (sH + k, sH + k))
    E("s_lshl_b32 s%d, s%d, 4" % (sT0, sJ))
    E("v_add_u32 v2, s%d, v%d" % (sT0, vL))
    E("s_xor_b32 s%d, s%d, 8" % (sT0, sI))
    E("s_lshl_b32 s%d, s%d, 4" % (sT0, sT0))
    E("s_add_u32 s%d, s%d, s%d" % (sT0, sT0, sJ))
    E("v_cmp_gt_u32 vcc, 16, v%d" % vL)
    E("v_mov_b32 v3, s%d" % sT0)
    E("s_nop 0")
    E("v_cndmask_b32 v2, v3, v2, vcc")
    E("v_lshlrev_b32 v2, 7, v2")
    E("v_add_u32 v2, %d, v2" % F_OFF)
    park(16, 2)
    E("v_min_u32 v2, 15, v%d" % vL)
    E("s_lshl_b32 s%d, s%d, 7" % (sT0, sJ))
    E("s_add_u32 s%d, s%d, %d" % (sT0, sT0, R_OFF))
    E("v_lshl_add_u32 v2, v2, 11, s%d" % sT0)
    park(14, 2)
    E("s_sub_u32 s%d, 16, s%d" % (sT0, sI))
    E("s_mul_i32 s%d, s%d, 640" % (sT0, sT0))
    E("v_lshl_add_u32 v2, v10, 3, s%d" % sT0)
    park(15, 2)
    E("s_mov_b32 s%d, 3840" % sE1)
    E("s_mov_b32 s%d, 7680" % sE2)

    def exp_nat(dst, x, t0, t1):
        E("v_mul_f32 v%d, s%d, v%d" % (t0, sT0, x))
        E("v_fma_f32 v%d, v%d, s%d, -v%d" % (t1, x, sT0, t0))
        E("v_exp_f32 v%d, v%d" % (t0, t0))
        E("v_fma_f32 v%d, v%d, s%d, v%d" % (t1, x, sT1, t1))
        E("v_mul_f32 v%d, s%d, v%d" % (t1, sT2, t1))
        E("v_fma_f32 v%d, v%d, v%d, v%d" % (dst, t0, t1, t0))

    E("s_mov_b32 s%d, 0x%x" % (sT0, LOG2E))
    E("s_mov_b32 s%d, 0x%x" % (sT1, LOG2E_LO))
    E("s_mov_b32 s%d, 0x%x" % (sT2, LN2))
    T = 16
    E.wait(vm="par0")
    E("v_lshlrev_b32 v13, 16, v13")
    E("v_lshlrev_b32 v%d, 16, v11" % (T + 0))
    E("v_lshlrev_b32 v%d, 16, v12" % (T + 1))
    exp_nat(13, 13, 2, 3)
    E("v_cvt_pk_bf16_f32 v13, v13, v13")
    E("v_lshlrev_b32 v13, 16, v13")
    E("v_mul_f32 v11, v13, v%d" % (T + 0))
    E("v_mul_f32 v12, v13, v%d" % (T + 1))
    exp_nat(11, 11, 2, 3)
    E("v_mul_f32 v12, 0.15915494, v12")
    E("v_rndne_f32 v2, v12")
    E("v_sub_f32 v12, v12, v2")
    E("v_cos_f32 v2, v12")
    E("v_sin_f32 v3, v12")
    E("v_mul_f32 v4, v%d, v%d" % (T + 0, T + 0))
    E("v_fmac_f32 v4, v%d, v%d" % (T + 1, T + 1))
    E("v_mul_f32 v%d, v11, v2" % (T + 2))
    E("v_mul_f32 v%d, v11, v3" % (T + 3))
    E("v_rcp_f32 v4, v4")
    cmul(T + 6, T + 2, T + 2)
    cmul(T + 4, T + 6, T + 6)
    cmul(vA8, T + 4, T + 4)
    cmul(T + 6, vA8, vA8)
    cmul(T + 8, T + 6, T + 6)
    cmul(T + 6, T + 8, T + 8)
    cmul(vA128, T + 6, T + 6)
    E("v_add_f32 v4, v4, v4")
    E("v_add_f32 v2, -1.0, v%d" % (T + 2))
    E("v_mul_f32 v6, v2, v%d" % (T + 0))
    E("v_fmac_f32 v6, v%d, v%d" % (T + 3, T + 1))
    E("v_mul_f32 v7, v%d, v%d" % (T + 3, T + 0))
    E("v_fma_f32 v7, -v2, v%d, v7" % (T + 1))
    E("v_mul_f32 v%d, v4, v6" % (vCO + 0))
    E("v_mul_f32 v%d, v4, v7" % (vCO + 1))
    E("v_lshlrev_b32 v2, 5, v10")
    E("v_add_u32 v2, %d, v2" % PTAB)
    E("s_mov_b64 exec, 0xfffff")
    E.lg("ptw", "ds_write_b128 v2, %s" % vr(T + 2, 4))
    E.lg("ptw", "ds_write_b64 v2, %s offset:16" % vr(vCO, 2))
    E("s_mov_b64 exec, -1")
    E("v_and_b32 v9, 15, v%d" % vL)
    E("v_lshlrev_b32 v9, 5, v9")
    E("v_add_u32 v9, %d, v9" % PTAB)
    E("v_and_b32 v2, 15, v%d" % vL)
    E("v_mul_u32_u24 v2, 144, v2")
    E("v_lshrrev_b32 v3, 4, v%d" % vL)
    E("v_lshl_add_u32 v2, v3, 3, v2")
    E("s_lshl_b32 s%d, s%d, 5" % (sT0, sW))
    E("s_add_u32 s%d, s%d, %d" % (sT0, sT0, ETAB))
    E("v_add_u32 v12, s%d, v2" % sT0)
    E("v_mul_u32_u24 v13, 144, v10")
    E("v_add_u32 v13, %d, v13" % ETAB)
    E("v_and_b32 v2, 31, v%d" % vL)
    E("v_lshlrev_b32 v6, 4, v2")
    E("v_mul_u32_u24 v4, 1280, v8")
    E("v_cmp_gt_u32 vcc, 16, v2")
    E("v_add_u32 v4, v4, v6")
    E("v_mov_b32 v3, 0x%x" % OOB)
    E("s_mov_b32 s%d, 0xffff0000" % sT0)
    E("v_cndmask_b32 v5, v3, v4, vcc")
    E("v_cndmask_b32 v7, v3, v6, vcc")
    for n in range(1, npro):
        emit_dma(E, "st%d" % n, dma_stage_ops(n))
    E.wait(vm=("tagw", "st0"), lg="ptw")
    E.c("thread 0 of workgroup 0 picks this launch's tag: the word an earlier launch left, plus one")
    E("v_add_u32 v%d, 1, v%d" % (vN, vN))
    E("v_mov_b32 v%d, 1" % (vN + 1))
    E("s_barrier")
    E.vm("ns", "buffer_store_dwordx2 %s, v%d, %s, 0 offen sc1" % (vr(vN, 2), vTD, srd(SDBG)))
    E.vm("ns", "buffer_store_dword v%d, v%d, %s, 0 offen sc1" % (vN, vTW, srd(SWS)))
    stamp("first")

    issueG = {}

    def rdA(kap, mt):
        n, ks = kap >> 1, kap & 1
        return ("A%d_%d" % (kap, mt), "ds_read_b128 %s, v%d offset:%d" % (vr(AF + 8 * (kap & 1) + 4 * mt, 4), vRA + 4 * ks + n % 4, 2048 * mt))

    def rdB(kap, nt):
        n, ks = kap >> 1, kap & 1
        return ("B%d_%d" % (kap, nt), "ds_read_b128 %s, v%d offset:%d" % (vr(BF + 4 * nt, 4), vRB + 4 * ks + n % 4, 2048 * nt))

    side = {}

    def at(G, fn):
        side.setdefault(G, []).append(fn)

    lgsched = {}

    def lgop(G, rd):
        lgsched.setdefault(G, []).append(rd[0])

        def f():
            E.lg(rd[0], rd[1])
            issueG[rd[0]] = G
        at(G, f)

    for kap in range(19):
        g0 = 20 * kap
        if kap & 1 == 0:
            lgop(g0 + 0, rdA(kap + 1, 0))
            lgop(g0 + 2, rdA(kap + 1, 1))
            for nt in range(10):
                lgop(g0 + 2 * nt + 1, rdB(kap + 1, nt))
        else:
            lgop(g0 + 6, rdA(kap + 1, 0))
            lgop(g0 + 8, rdA(kap + 1, 1))
            for nt, g in enumerate([7, 9, 10, 11, 12, 13, 14, 15, 17, 19]):
                lgop(g0 + g, rdB(kap + 1, nt))

    def place_dma(tag, ops, G0, offs):
        for (pre, d, post), o in zip(ops, offs):
            for p in pre:
                at(G0 + o - 1, (lambda p=p: E(p)))
            at(G0 + o, (lambda d=d: E.vm(tag, d)))
            for k, p in enumerate(post):
                at(G0 + o + 1, (lambda p=p: E(p)))

    batches = [("st%d" % n, dma_stage_ops(n), 1 if n < 4 else 20 * (2 * (n - 4) + 1) + 7) for n in range(npro, 10)]
    batches += [("c%d" % k, dma_c_ops(k), 20 * (2 * (k + 6) + 1) + 7) for k in plan[0]]
    nextG = 1
    for tag, ops, g_ok in batches:
        g = max(g_ok, nextG)
        late = g > g_ok or tag in ("st1", "st2", "st3")
        n = len(ops)
        offs = [2 * k for k in range(n)] if late else [(34 * k) // (n - 1) for k in range(n)]
        if tag[0] == "c":
            span = {1: 100, 2: 54, 3: 34}[len(plan[0])]
            offs = [(span * k) // (n - 1) for k in range(n)]
        place_dma(tag, ops, g, offs)
        nextG = g + offs[-1] + 3
    for n in range(10):
        G = 20 * (2 * n + 1) + 5

        def bar(n=n):
            E.wait(vm=("st%d" % (n + 1),), lg=list(E.lgq))
            E("s_barrier")
            stamp("b%d" % n, 2)
        at(G, bar)
    slow = []
    at(20 * 5 + 4, lambda: E.vm("tag", "buffer_load_dwordx2 v[14:15], off, %s, 0 sc1" % srd(SDBG)))

    def tagchk():
        E.wait(vm="tag")
        E.label("L_tag")
        E("v_cmp_eq_u32 vcc, 1, v15")
        E("v_mov_b32 v%d, v14" % vN)
        E("s_cbranch_vccz L_tag_slow")
        E.label("L_tag_ok")
    at(20 * 11 + 6, tagchk)
    at(20 * 11 + 8, lambda: E("v_xor_b32 v%d, 0x%x, v14" % (vN + 1, TAGK)))
    at(20 * 11 + 10, lambda: E.vm("rdy", "buffer_store_dwordx2 %s, v%d, %s, s%d offen sc1" % (vr(vN, 2), vF, srd(SWS), sRD)))
    slow += ["L_tag_slow:", "s_add_u32 s%d, s%d, 1" % (sCNT, sCNT), "s_cmp_gt_u32 s%d, %d" % (sCNT, SPIN), "s_cbranch_scc1 L_tag_ok",
             "s_sleep 2", "buffer_load_dwordx2 v[14:15], off, %s, 0 sc1" % srd(SDBG), "s_waitcnt vmcnt(0)", "s_branch L_tag"]
    for n in range(5):
        lgop(20 * 19 + 6 + 2 * n, ("pa%d" % n, "ds_read_b128 %s, v9 offset:%d" % (vr(PA + 4 * n, 4), 512 * n)))
        lgop(20 * 19 + 7 + 2 * n, ("pc%d" % n, "ds_read_b64 %s, v9 offset:%d" % (vr(PCF + 2 * n, 2), 512 * n + 16)))

    first_reads = [rdA(0, 0), rdB(0, 0), rdA(0, 1)] + [rdB(0, nt) for nt in range(1, 10)]
    for rd in first_reads:
        E.lg(rd[0], rd[1])
        issueG[rd[0]] = -1
    cap = {G: [len(v), 0] for G, v in side.items()}
    q = [(rd[0], -1) for rd in first_reads]
    for G in range(400):
        kap, g = divmod(G, 20)
        need = {"A%d_%d" % (kap, g & 1), "B%d_%d" % (kap, g >> 1)}
        if any(t in need for t, _ in q):
            last = max(i for i, (t, gi) in enumerate(q) if t in need or gi <= G - 8)
            q = q[last + 1:]
            cap.setdefault(G - 1, [0, 0])[0] += 1
        q += [(t, G) for t in lgsched.get(G, [])]
        if G % 40 == 25:
            q = []
            cap[G][0] += 2
    cap[226][0] += 2

    def fits(G, kind):
        u = cap.setdefault(G, [0, 0])
        if kind == "dsw":
            return u[0] == 0
        return u[0] < 2 and not (kind == "valu" and u[1])

    def put(G, kind, fn):
        while not fits(G, kind):
            G += 1
        u = cap[G]
        u[0] += 2 if kind == "dsw" else 1
        u[1] += kind == "valu"
        if fn is not None:
            at(G, fn)
        return G

    GX, GW, GT = 200, 212, 224
    for k in range(3):
        put(70 + 40 * k, "vm", lambda k=k: E.vm("gw%d" % k, "buffer_load_dwordx4 %s, v%d, %s, 0 offen offset:%d" % (vr(GW + 4 * k, 4), 7 if k == 2 else 6, srd(ST0), 512 * k)))
        put(90 + 40 * k, "vm", lambda k=k: E.vm("gx%d" % k, "buffer_load_dwordx4 %s, v%d, %s, 0 offen offset:%d" % (vr(GX + 4 * k, 4), 5 if k == 2 else 4, srd(SX), 512 * k)))
    G = 0
    for k in range(12):
        if k % 4 == 0:
            G = put(max(G, 186 + 40 * (k // 4) - (40 if k == 0 else 0)), "wait", lambda k=k: E.wait(vm=("gw%d" % (k // 4), "gx%d" % (k // 4))))
        d = GT + 5 if k == 0 else GT
        seq = ["v_lshlrev_b32 v%d, 16, v%d" % (GT, GX + k), "v_and_b32 v%d, s%d, v%d" % (GT + 1, sT0, GX + k),
               "v_lshlrev_b32 v%d, 16, v%d" % (GT + 2, GW + k), "v_and_b32 v%d, s%d, v%d" % (GT + 3, sT0, GW + k),
               "v_mul_f32 v%d, v%d, v%d" % (GT, GT, GT + 2), "v_mul_f32 v%d, v%d, v%d" % (GT + 1, GT + 1, GT + 3),
               "v_cvt_pk_bf16_f32 v%d, v%d, v%d" % (GT + 2, GT, GT + 1),
               "v_lshlrev_b32 v%d, 16, v%d" % (d, GT + 2), "v_and_b32 v%d, s%d, v%d" % (d + 1, sT0, GT + 2)]
        if k:
            seq += ["v_add_f32 v%d, v%d, v%d" % (GT + 5, GT + 5, GT), "v_add_f32 v%d, v%d, v%d" % (GT + 6, GT + 6, GT + 1)]
        for t in seq:
            G = put(G, "valu", lambda t=t: E(t))
    a, b = GT, GT + 1
    seq = [(0, "v_add_f32 v%d, v%d, v%d" % (a, GT + 5, GT + 6))]
    seq += [(2, "v_add_f32_dpp v%d, v%d, v%d row_ror:%d row_mask:0xf bank_mask:0xf" % (a, a, a, sh)) for sh in (8, 4, 2, 1)]
    seq += [(0, "v_mov_b32 v%d, v%d" % (b, a)), (2, "v_permlane16_swap_b32 v%d, v%d" % (a, b)), (0, "v_add_f32 v%d, v%d, v%d" % (a, a, b)),
            (0, "v_cvt_pk_bf16_f32 v%d, v%d, v%d" % (a, a, a)), (0, "v_lshlrev_b32 v%d, 16, v%d" % (a, a)),
            (0, "v_mul_f32 v%d, 0x%x, v%d" % (a, LOG2E | 0x80000000, a)), (0, "v_exp_f32 v%d, v%d" % (a, a)),
            (0, "v_add_f32 v%d, 1.0, v%d" % (a, a)), (0, "v_rcp_f32 v%d, v%d" % (a, a)),
            (0, "v_cvt_pk_bf16_f32 v%d, v%d, v%d" % (a, a, a)), (0, "v_lshlrev_b32 v%d, 16, v%d" % (GT + 4, a)),
            (0, "v_sub_f32 v%d, 1.0, v%d" % (a, GT + 4)), (0, "v_cvt_pk_bf16_f32 v%d, v%d, v%d" % (a, a, a)),
            (0, "v_lshlrev_b32 v%d, 16, v%d" % (GT + 5, a)), (0, "v_mov_b32 v%d, v%d" % (GT + 6, vN)), (0, "v_mov_b32 v%d, v%d" % (GT + 7, vN + 1))]
    for dG, t in seq:
        G = put(G + dG, "valu", lambda t=t: E(t))
    G = put(G, "vm", lambda: E.vm("gpub", "buffer_store_dwordx4 %s, v%d, %s, 0 offen sc1" % (vr(GT + 4, 4), vG, srd(SWS))))
    assert 232 < G < 384, G

    def need_lg(tags, G):
        tags = [t for t in tags if E.outstanding_lg(t)]
        if not tags:
            return
        extra = [t for t in E.lgq if issueG.get(t, 1 << 30) <= G - 8]
        E.wait(lg=tags + extra)

    for kap in range(20):
        for nt in range(10):
            for mt in range(2):
                G = 20 * kap + 2 * nt + mt
                need_lg(["A%d_%d" % (kap, mt), "B%d_%d" % (kap, nt)], G)
                d = vr(acc(mt, nt), 4)
                E("v_mfma_f32_16x16x32_bf16 %s, %s, %s, %s" % (d, vr(AF + 8 * (kap & 1) + 4 * mt, 4), vr(BF + 4 * nt, 4), d if kap else "0"))
                for fn in side.pop(G, []):
                    fn()
    assert not side, sorted(side)
    stamp("gemm1")

    moved = set()

    def c_move(R, sig):
        if sig in moved:
            return
        moved.add(sig)
        R.wait(vm="c%d" % sig)
        si = CSI[CSLOT[sig]]
        for ks in range(2):
            for n in range(5):
                R.lg("cm%d" % sig, "ds_read_b128 %s, v%d offset:%d" % (cfrag(sig, ks, n), vRC + 3 * ks + si, 2048 * n))
                if isinstance(R, Rec) and n in (1, 4):
                    R.mark()

    def c_dma(R, sig):
        if sig >= 3:
            c_move(R, sig - 3)
            R.wait(lg="cm%d" % (sig - 3))
        emit_dma(R, "c%d" % sig, dma_c_ops(sig))

    E1 = 96
    E2 = 116
    EL = 120
    ET = 130
    ELO = 164
    E.wait(lg=["pa0"])
    E(".p2align 3")

    def scan_step(R, dre, dim, pre, pim, ure, uim, a, conj=False):
        R("v_pk_fma_f32 %s, %s, %s, %s %s" % (vr(dre, 2), vr(a, 2), vr(pre, 2), vr(ure, 2), BC_LO))
        R("v_pk_fma_f32 %s, %s, %s, %s %s" % (vr(dim, 2), vr(a, 2), vr(pim, 2), vr(uim, 2), BC_LO))
        R("v_pk_fma_f32 %s, %s, %s, %s %s %s" % (vr(dre, 2), vr(a, 2), vr(pim, 2), vr(dre, 2), BC_HI, "" if conj else NEG0))
        R("v_pk_fma_f32 %s, %s, %s, %s %s %s" % (vr(dim, 2), vr(a, 2), vr(pre, 2), vr(dim, 2), BC_HI, NEG0 if conj else ""))

    F = Rec()
    for n in range(5):
        a = PA + 4 * n
        e = E1 + 4 * n
        if n == 1:
            F.wait(lg=["pc4"])
        scan_step(F, e, e + 2, U(0, n, 0), U(1, n, 0), U(0, n, 1), U(1, n, 1), a)
        scan_step(F, E2, E2 + 2, e, e + 2, U(0, n, 2), U(1, n, 2), a)
        scan_step(F, e, e + 2, E2, E2 + 2, U(0, n, 3), U(1, n, 3), a)
        F("v_fma_f32 v%d, v%d, v%d, v%d" % (EL + 2 * n, a + 2, e, e + 1))
        F("v_fma_f32 v%d, v%d, v%d, v%d" % (EL + 2 * n + 1, a + 2, e + 2, e + 3))
        F("v_fma_f32 v%d, -v%d, v%d, v%d" % (EL + 2 * n, a + 3, e + 2, EL + 2 * n))
        F("v_fma_f32 v%d, v%d, v%d, v%d" % (EL + 2 * n + 1, a + 3, e, EL + 2 * n + 1))
        F.lg("etw", "ds_write_b64 v12, %s offset:%d" % (vr(EL + 2 * n, 2), 2304 * n))
    B = Rec()
    for k in plan[1]:
        c_dma(B, k)
    E.play(F, B)

    def elo(n):
        e = E1 + 4 * n
        c = PCF + 2 * n
        E("v_mul_f32 v%d, v%d, v%d" % (ELO + 2 * n, c, e))
        E("v_mul_f32 v%d, v%d, v%d" % (ELO + 2 * n + 1, c + 1, e))
        E("v_fma_f32 v%d, -v%d, v%d, v%d" % (ELO + 2 * n, c + 1, e + 2, ELO + 2 * n))
        E("v_fma_f32 v%d, -v%d, v%d, -v%d" % (ELO + 2 * n + 1, c, e + 2, ELO + 2 * n + 1))
    elo(0)
    elo(1)
    E.wait(lg="etw")
    E("s_barrier")
    E("s_mov_b64 exec, 0xfffff")
    for k in range(8):
        E.lg("etr%d" % k, "ds_read_b128 %s, v13 offset:%d" % (vr(ET + 2 + 4 * k, 4), 16 * k))
    E("s_mov_b64 exec, -1")
    elo(2)
    elo(3)
    elo(4)
    S0, S1 = 2, 4
    cur = ET + 2
    for j in range(1, 16):
        if j in (1, 4, 8):
            E.wait(lg="etr%d" % {1: 1, 4: 3, 8: 7}[j])
            E("s_nop 0")
        nxt = S0 if cur != S0 else S1
        E("v_pk_fma_f32 %s, %s, %s, %s %s" % (vr(nxt, 2), vr(vA8, 2), vr(cur, 2), vr(ET + 2 + 2 * j, 2), BC_LO))
        E("v_pk_fma_f32 %s, %s, %s, %s %s neg_lo:[0,1,0]" % (vr(nxt, 2), vr(vA8, 2), vr(cur, 2), vr(nxt, 2), BC_HI_SW))
        cur = nxt
    E("v_min_u32 v%d, -2, v%d" % (cur, cur))
    E("v_min_u32 v%d, -2, v%d" % (cur + 1, cur + 1))
    E.vm("epub", "buffer_store_dwordx2 %s, v%d, %s, 0 offen sc1" % (vr(cur, 2), vE, srd(SE)))
    stamp("epub")

    unpark(E, 14, 9)
    unpark(E, 15, 14)
    E("s_bfm_b64 s[%d:%d], s%d, 0" % (sT1, sT1 + 1, sI))
    E.vm("rchk", "buffer_load_dwordx2 v[126:127], v9, %s, 0 offen sc1" % srd(SWS))

    def scale_u(R, n):
        c = PCF + 2 * n
        for s in range(4):
            ur, ui = U(0, n, s), U(1, n, s)
            R("v_pk_mul_f32 v[2:3], %s, %s op_sel:[1,0] op_sel_hi:[1,1] neg_lo:[1,0] neg_hi:[1,0]" % (vr(c, 2), vr(ui, 2)))
            R("v_pk_mul_f32 %s, %s, %s op_sel_hi:[0,1] neg_lo:[1,0] neg_hi:[1,0]" % (vr(ui, 2), vr(c, 2), vr(ui, 2)))
            R("v_pk_fma_f32 %s, %s, %s, %s %s %s" % (vr(ui, 2), vr(c, 2), vr(ur, 2), vr(ui, 2), BC_HI, NEG0))
            R("v_pk_fma_f32 %s, %s, %s, v[2:3] %s" % (vr(ur, 2), vr(c, 2), vr(ur, 2), BC_LO))

    F = Rec()
    for n in range(5):
        scale_u(F, n)
    for j in range(15):
        r = ET + 2 + 2 * j
        F("v_pk_mul_f32 v[2:3], %s, %s op_sel_hi:[0,1] neg_hi:[1,0]" % (vr(vCO, 2), vr(r, 2)))
        F("v_pk_fma_f32 %s, %s, %s, v[2:3] %s %s" % (vr(r, 2), vr(vCO, 2), vr(r, 2), BC_HI_SW, NEG0))
    AD = 220
    LS = 174
    U2 = Rec()
    for k, v in ((0, 9), (1, 11), (2, 15), (3, 8), (16, vFA)):
        unpark(U2, k, v)
    for k in range(6):
        unpark(U2, 4 + k, AD + k)
    for k in range(3):
        unpark(U2, 11 + k, LS + k)
    unpark(U2, 10, LS + 3)
    B = Rec()
    for k in plan[2]:
        c_dma(B, k)
    E.play(F, B, lead=0, tail=early)
    E("s_mov_b32 s%d, 0" % sCNT)
    E.wait(vm="rchk")
    E.label("L_clr")
    E("v_cmp_ne_u64 vcc, v[126:127], %s" % vr(vN, 2))
    E("s_add_u32 s%d, s%d, 1" % (sCNT, sCNT))
    E("s_nop 0")
    E("s_and_b64 vcc, vcc, s[%d:%d]" % (sT1, sT1 + 1))
    E("s_cbranch_scc1 L_clr_slow")
    E.label("L_clr_ok")
    slow += ["L_clr_slow:", "s_cmp_gt_u32 s%d, %d" % (sCNT, SPIN), "s_cbranch_scc1 L_clr_ok", "s_sleep 2",
             "buffer_load_dwordx2 v[126:127], v9, %s, 0 offen sc1" % srd(SWS), "s_waitcnt vmcnt(0)", "s_branch L_clr"]
    PK = [96 + 2 * k for k in range(15)]
    E("s_mov_b32 s%d, 0" % sCNT)

    def e_loads():
        for k in range(15):
            so = ["0", "s%d" % sE1, "s%d" % sE2][k // 6]
            E.vm("ep", "buffer_load_dwordx2 %s, v14, %s, %s offen offset:%d sc1" % (vr(PK[k], 2), srd(SE), so, 640 * (k % 6)))
    stamp("winB")
    E("s_mov_b64 exec, 0xfffff")
    e_loads()
    E("s_mov_b64 exec, -1")
    E.play(U2)
    for k in range(max(plan[2]) + 1):
        c_move(E, k)
    E("s_mov_b64 exec, 0xfffff")
    E("s_branch L_ep_chk")
    E.label("L_ep")
    e_loads()
    E.label("L_ep_chk")
    E.wait_all(vm=True)
    regs = [r for p in PK for r in (p, p + 1)]
    E("v_max3_u32 v2, v%d, v%d, v%d" % tuple(regs[:3]))
    for k in range(3, 29, 2):
        E("v_max3_u32 v2, v2, v%d, v%d" % (regs[k], regs[k + 1]))
    E("v_max_u32 v2, v2, v%d" % regs[29])
    E("v_cmp_eq_u32 vcc, -1, v2")
    E("s_add_u32 s%d, s%d, 1" % (sCNT, sCNT))
    E("s_cbranch_vccz L_ep_ok")
    E("s_cmp_gt_u32 s%d, %d" % (sCNT, SPIN))
    E("s_cbranch_scc0 L_ep")
    E.label("L_ep_ok")
    stamp("earr")

    XP, GR, DS, DU = 226, 160, 148, 44
    gload = "buffer_load_dwordx4 %s, v%d, %s, 0 offen sc1" % (vr(GR, 4), LS + 3, srd(SWS))

    def small_loads():
        E.vm("gl", gload)
        L = E
        for pi in range(3):
            L.vm("ds", "buffer_load_dwordx2 %s, v%d, %s, 0 offen" % (vr(DS + 4 * pi, 2), AD + pi, srd(ST1)))
            L.vm("ds", "buffer_load_dwordx2 %s, v%d, %s, 0 offen" % (vr(DS + 4 * pi + 2, 2), AD + pi, srd(ST2)))
            for s in range(2):
                L.vm("xp", "buffer_load_dwordx2 %s, v%d, %s, s%d offen" % (vr(XP + 6 * s + 2 * pi, 2), AD + 3 + pi, srd(SX), sTO + 4 + 2 * s))

    E(".p2align 3")
    for k in range(13, -1, -1):
        E("v_pk_fma_f32 %s, %s, %s, %s %s" % (vr(PK[k], 2), vr(vA128, 2), vr(PK[k + 1], 2), vr(PK[k], 2), BC_LO))
        E("v_pk_fma_f32 %s, %s, %s, %s %s neg_lo:[0,1,0]" % (vr(PK[k], 2), vr(vA128, 2), vr(PK[k + 1], 2), vr(PK[k], 2), BC_HI_SW))
    E("v_pk_mul_f32 v[2:3], %s, %s op_sel_hi:[0,1] neg_hi:[1,0]" % (vr(vCO, 2), vr(PK[0], 2)))
    E("v_pk_fma_f32 %s, %s, %s, v[2:3] %s %s" % (vr(ET, 2), vr(vCO, 2), vr(PK[0], 2), BC_HI_SW, NEG0))
    for j in range(15):
        t, r = ET + 2 * j, ET + 2 + 2 * j
        E("v_pk_fma_f32 %s, %s, %s, %s %s" % (vr(r, 2), vr(vA8, 2), vr(t, 2), vr(r, 2), BC_LO))
        E("v_pk_fma_f32 %s, %s, %s, %s %s neg_hi:[1,0,0]" % (vr(r, 2), vr(vA8, 2), vr(t, 2), vr(r, 2), BC_HI_SW))
        if j & 1 == 0:
            k = j >> 1
            E.lg("ttw", "ds_write_b128 v13, %s offset:%d" % (vr(ET + 4 * k, 4), (TTAB - ETAB) + 16 * k))
    E("s_mov_b64 exec, -1")
    if lpos == 0:
        small_loads()
    for k in plan[3]:
        c_dma(E, k)
    stamp("tchain", 2)
    E.wait(lg="ttw")
    E("s_barrier")
    stamp("tbar", 2)
    Q = 96
    DV = 116
    TRV = 132
    for n in range(5):
        E.lg("ttr%d" % n, "ds_read_b64 %s, v12 offset:%d" % (vr(Q + 4 * n, 2), (TTAB - ETAB) + 2304 * n))

    def h_store(n):
        E.wait(lg="tr%d" % n)
        E("s_nop 0")
        for mp in range(2):
            E.vm("hst", "buffer_store_dwordx4 %s, v8, %s, s%d offen offset:%d %s" % (vr(TRV + 8 * (n & 1) + 4 * mp, 4), srd(SWS), sHB0 + mp, 512 * n, hflag))

    E(".p2align 3")
    for n in range(5):
        a = PA + 4 * n
        q = Q + 4 * n
        if not E.wait(lg="ttr%d" % (0 if n == 0 else 4)):
            E("s_nop 0")
        E("v_mov_b32 v%d, v%d" % (q + 2, q + 1))
        E("v_fma_f32 v%d, v%d, v%d, v%d" % (q + 3, a + 2, q + 1, ELO + 2 * n + 1))
        E("v_fma_f32 v%d, v%d, v%d, v%d" % (q + 1, a + 2, q, ELO + 2 * n))
        E("v_fma_f32 v%d, -v%d, v%d, v%d" % (q + 3, a + 3, q, q + 3))
        E("v_fma_f32 v%d, v%d, v%d, v%d" % (q + 1, a + 3, q + 2, q + 1))
        pre, pim = q, q + 2
        for s in range(4):
            scan_step(E, U(0, n, s), U(1, n, s), pre, pim, U(0, n, s), U(1, n, s), a, conj=True)
            pre, pim = U(0, n, s), U(1, n, s)
            if s == 1 and n:
                h_store(n - 1)
        dv = DV + 8 * (n & 1)
        for kind in range(2):
            for h in range(2):
                E("v_cvt_pk_bf16_f32 v%d, v%d, v%d" % (dv + 4 * kind + 2 * h, U(kind, n, 0) + h, U(kind, n, 1) + h))
                E("v_cvt_pk_bf16_f32 v%d, v%d, v%d" % (dv + 4 * kind + 2 * h + 1, U(kind, n, 2) + h, U(kind, n, 3) + h))
            E.lg("trw", "ds_write_b128 v9, %s offset:%d" % (vr(dv + 4 * kind, 4), 1024 * kind))
        for mp in range(2):
            for half in range(2):
                E.lg("tr%d" % n, "ds_read_b64_tr_b16 %s, v%d offset:%d" % (vr(TRV + 8 * (n & 1) + 4 * mp + 2 * half, 2), 11 if (mp ^ half) == 0 else 15, 256 * half))
    h_store(4)
    stamp("hst")

    for k in plan[4]:
        c_dma(E, k)
    stamp("dsetup", 2)
    E.wait(vm="hst")
    E("s_barrier")
    E.vm("flag", "buffer_store_dwordx2 %s, v%d, %s, 0 offen sc1" % (vr(vN, 2), vF, srd(SWS)))
    stamp("flag")

    if lpos == 1:
        small_loads()
    for k in plan[5]:
        c_dma(E, k)
    for k in range(5):
        c_move(E, k)
    E("s_mov_b32 s%d, 0" % sCNT)
    E.wait(vm="gl")
    E.label("L_g")
    E("v_cmp_ne_u64 vcc, %s, %s" % (vr(GR + 2, 2), vr(vN, 2)))
    E("s_add_u32 s%d, s%d, 1" % (sCNT, sCNT))
    E("s_cbranch_vccnz L_g_slow")
    E.label("L_g_ok")
    slow += ["L_g_slow:", "s_cmp_gt_u32 s%d, %d" % (sCNT, SPIN), "s_cbranch_scc1 L_g_ok", "s_sleep 2", gload, "s_waitcnt vmcnt(0)", "s_branch L_g"]
    E("s_bitcmp1_b32 s2, 0")
    E("s_cselect_b64 vcc, -1, 0")
    E("s_mov_b32 s%d, 0xffff0000" % sT0)
    E("v_cndmask_b32 v8, v%d, v%d, vcc" % (GR, GR + 1))
    E("v_cndmask_b32 v9, v%d, v%d, vcc" % (GR + 1, GR))
    for s in range(4):
        for pi in range(3):
            d = GS + 3 * s + pi if s < 2 else GO[3 * (s - 2) + pi]
            E.lg("gp", "ds_bpermute_b32 v%d, v%d, v8 offset:%d" % (d, LS + pi, 32 * s))
            if s >= 2:
                E.lg("gp", "ds_bpermute_b32 v%d, v%d, v9 offset:%d" % (d + 1, LS + pi, 32 * s))
    E.wait(vm=("ds", "xp"))
    stamp("xp", 2)
    for k in range(12):
        E("v_lshlrev_b32 v%d, 16, v%d" % (DU + 2 * k, DS + k))
        E("v_and_b32 v%d, s%d, v%d" % (DU + 1 + 2 * k, sT0, DS + k))
    for pi in range(3):
        E("v_add_u32 v%d, 40960, v%d" % (vPR[1][pi], vPR[0][pi]))
    E("v_and_b32 v2, 31, v%d" % vL)
    E("v_lshlrev_b32 v%d, 4, v2" % vXL[2])
    for k in range(4):
        E("s_mov_b32 s%d, 0x%x" % (sSEL + k, 0x07060500 + k))
    E("s_mov_b32 s68, 0x0c0c0400")
    E("s_mov_b32 s69, 0x04000c0c")
    E.wait(lg="gp")
    for s in range(2):
        for pi in range(3):
            x = XP + 6 * s + 2 * pi
            g = GO[3 * s + pi]
            sk = SKIP + 12 * s + 4 * pi
            for h in range(2):
                E("v_lshlrev_b32 v2, 16, v%d" % (x + h))
                E("v_and_b32 v3, s%d, v%d" % (sT0, x + h))
                E("v_pk_mul_f32 v[4:5], v[2:3], %s" % vr(DU + 8 * pi + 2 * h, 2))
                E("v_pk_mul_f32 v[6:7], v[2:3], %s" % vr(DU + 8 * pi + 4 + 2 * h, 2))
                E("v_cvt_pk_bf16_f32 v4, v4, v5")
                E("v_cvt_pk_bf16_f32 v6, v6, v7")
                E("v_and_b32 v5, s%d, v4" % sT0)
                E("v_lshlrev_b32 v4, 16, v4")
                E("v_and_b32 v7, s%d, v6" % sT0)
                E("v_lshlrev_b32 v6, 16, v6")
                E("v_pk_mul_f32 %s, %s, v[4:5] op_sel_hi:[0,1]" % (vr(sk + 2 * h, 2), vr(g, 2)))
                E("v_pk_fma_f32 %s, %s, v[6:7], %s %s" % (vr(sk + 2 * h, 2), vr(g, 2), vr(sk + 2 * h, 2), BC_HI))

    def h_load(u, k):
        E.vm("h%d_%d" % (u, k), "buffer_load_dwordx4 %s, v%d, %s, s%d offen offset:%d sc1" % (vr(HBUF + 4 * (10 * (u & 1) + k), 4), vHL, srd(SWS), sH + (k >> 1), 1024 * (k & 1)))

    stamp("winE")
    E("s_cmp_lg_u32 s%d, 0" % sW)
    E("s_cbranch_scc1 L_f_done")
    E("s_mov_b32 s%d, 0" % sCNT)
    E("s_mov_b64 exec, 0x1ffff")
    E.label("L_f")
    E("buffer_load_dwordx2 v[16:17], v%d, %s, 0 offen sc1" % (vFA, srd(SWS)))
    E("s_waitcnt vmcnt(0)")
    E("v_cmp_ne_u64 vcc, v[16:17], %s" % vr(vN, 2))
    E("s_add_u32 s%d, s%d, 1" % (sCNT, sCNT))
    E("s_cbranch_vccz L_f_ok")
    E("s_cmp_gt_u32 s%d, %d" % (sCNT, SPIN))
    E("s_cbranch_scc0 L_f")
    E.label("L_f_ok")
    E("s_mov_b64 exec, -1")
    E.label("L_f_done")
    E("s_barrier")
    stamp("prod")

    for k in range(10):
        h_load(0, k)
    E("v_add_u32 v%d, s%d, v%d" % (vHL, sTO + 1, vHB))
    for k in range(10):
        h_load(1, k)
    E("v_add_u32 v%d, s%d, v%d" % (vHL, sTO + 2, vHB))
    E("s_mov_b32 s%d, 0" % sCNT)
    side = {}
    cap.clear()

    def hwait(u, k):
        return u < 2 or k % 2 == 0

    for u in range(8):
        for k in range(10):
            if hwait(u, k) and (u or k):
                put(50 * u + 5 * k - 1, "wait", None)
    for u in range(6):
        for k in range(10):
            G = put(50 * u + 5 * k + 4, "vm", lambda u=u, k=k: h_load(u + 2, k))
        if u < 5:
            put(G, "valu", lambda u=u: E("v_add_u32 v%d, s%d, v%d" % (vHL, sTO + u + 3, vHB)))

    def red_write(u, n):
        E.lg("pw%d" % u, "ds_write_b128 v%d, %s offset:%d" % (vPW, vr(ACC2 + 20 * (u & 1) + 4 * n, 4), 40960 * ((u >> 1) & 1) + 5120 * (u & 1) + 64 * n))

    def red_read(s, pi, w):
        E.lg("pr%d_%d" % (s, pi), "ds_read_b128 %s, v%d offset:%d" % (vr(PART[pi if s == 3 else pi & 1] + 4 * w, 4), vPR[s & 1][pi], 10240 * w))

    def x_loads(s):
        return ["buffer_load_dwordx4 %s, v%d, %s, s%d offen offset:%d sc1" % (vr(XD[s] + 4 * pi, 4), vXL[pi], srd(SWS), sXR + s, 1024 * pi) for pi in range(3)]

    def x_check(s):
        ins = []
        for pi in range(3):
            r = XD[s] + 4 * pi
            ins += ["v_perm_b32 v14, v%d, v%d, s68" % (r + 1, r), "v_perm_b32 v15, v%d, v%d, s69" % (r + 3, r + 2),
                    "v_bitop3_b32 v%d, v14, v15, v%d bitop3:0x56" % (153 + pi, vN)]
        ins += ["v_or3_b32 v15, v153, v154, v155", "v_cmp_ne_u32 vcc, 0, v15"]
        slow.extend(["L_x%d_slow:" % s, "s_add_u32 s%d, s%d, 1" % (sCNT, sCNT), "s_cmp_gt_u32 s%d, %d" % (sCNT, SPIN), "s_cbranch_scc1 L_x%d_ok" % s]
                    + x_loads(s) + ["s_waitcnt vmcnt(0)"] + ins + ["s_nop 0", "s_cbranch_vccnz L_x%d_slow" % s, "s_branch L_x%d_ok" % s])
        return ins

    def x_branch(s):
        E("s_cbranch_vccnz L_x%d_slow" % s)
        E.label("L_x%d_ok" % s)

    lastw = {}
    for u in range(7):
        G = 50 * (u + 1) + 3
        for n in range(5):
            G = put(G, "dsw", lambda u=u, n=n: red_write(u, n))
            lastw[u] = G
            G += 4
    for s in range(2):
        G = gxd[s]
        for t in x_loads(s):
            G = put(G, "vm", lambda t=t, s=s: E.vm("xd%d" % s, t)) + 1
    G = put(gxd[0] + 45, "wait", lambda: E.wait(vm="xd0"))
    for t in x_check(0):
        G = put(G, "valu", lambda t=t: E(t))
    G = put(G + 1, "wait", lambda: x_branch(0))
    xok = G
    prev_end = 0
    for s in range(3):
        def bar(s=s):
            E.wait(lg="pw%d" % (2 * s + 1))
            E("s_barrier")
        G = put(max(lastw[2 * s + 1] + 6, prev_end), "dsw", bar)
        for pi in range(2):
            for w in range(4):
                G = put(G + 1, "ds", lambda w=w, pi=pi, s=s: red_read(s, pi, w))
        G -= 0
        for pi in range(3):
            p = PART[pi & 1]
            G = put(G + (2 if pi == 0 else 0), "wait", lambda pi=pi, s=s: E.wait(lg="pr%d_%d" % (s, pi)))
            seq = ["v_add_f32 v%d, v%d, v%d" % (p + h, p + h, p + 4 + h) for h in range(4)]
            seq += ["v_add_f32 v%d, v%d, v%d" % (p + 8 + h, p + 8 + h, p + 12 + h) for h in range(4)]
            seq += ["v_add_f32 v%d, v%d, v%d" % (p + h, p + h, p + 8 + h) for h in range(4)]
            if s < 2:
                seq += ["v_mul_f32 v%d, v%d, v%d" % (p + 4 + h, GS + 3 * s + pi, p + h) for h in range(4)]
                seq += ["v_perm_b32 v%d, v%d, v%d, s%d" % (p + 4 + h, p + 4 + h, vN, sSEL + h) for h in range(4)]
                st = "buffer_store_dwordx4 %s, v%d, %s, s%d offen offset:%d %s" % (vr(p + 4, 4), vXA[pi], srd(SWS), sXW + s, 1024 * pi, xflag2)
            else:
                sk = SKIP + 4 * pi
                seq += ["v_fmac_f32 v%d, v%d, v%d" % (sk + h, GO[pi], p + h) for h in range(4)]
                seq += ["v_add_f32 v%d, v%d, v%d" % (sk + h, sk + h, XD[0] + 4 * pi + h) for h in range(4)]
                st = "buffer_store_dwordx4 %s, v%d, %s, s%d offen %s" % (vr(sk, 4), vO[pi], srd(SOUT), sO, outflag)
                G = max(G, xok)
            for t in seq:
                G = put(G, "valu2" if s in v2 else "valu", lambda t=t: E(t))
            if not (nox and s < 2):
                G = put(G, "vm", lambda st=st: E.vm("out", st))
            if pi == 0:
                G2 = G
                for w in range(4):
                    G2 = put(G2 + 1, "ds", lambda w=w, s=s: red_read(s, 2, w))
        prev_end = G
    for u in range(8):
        A = ACC2 + 20 * (u & 1)
        for k in range(10):
            if hwait(u, k):
                last = k if (k == 9 or hwait(u, k + 1)) else k + 1
                E.wait(vm=["h%d_%d" % (u, k), "h%d_%d" % (u, last)], lg=["cm%d" % j for j in range(5)])
            if k == 0:
                stamp("t%d" % u, 2)
            for n in range(5):
                G = 50 * u + 5 * k + n
                d = vr(A + 4 * n, 4)
                E("v_mfma_f32_16x16x32_bf16 %s, %s, %s, %s" % (d, cfrag(k >> 1, k & 1, n), vr(HBUF + 4 * (10 * (u & 1) + k), 4), d if k else "0"))
                for fn in side.pop(G, []):
                    fn()
    stamp("gemm2")
    left = [fn for G in sorted(side) for fn in side[G]]
    if len(left) < 4:
        E("s_nop 3")
    for n in range(5):
        for fn in left[:4]:
            fn()
        del left[:4]
        if n == 4 and not left:
            E("s_nop 3")
        red_write(7, n)
    for fn in left:
        fn()
    E.wait(vm="xd1")
    for t in x_check(1):
        E(t)
    E.wait(lg="pw7")
    E("s_barrier")
    for pi in range(3):
        for w in range(4):
            red_read(3, pi, w)
    x_branch(1)
    for pi in range(3):
        sk = SKIP + 12 + 4 * pi
        p = PART[pi]
        g = GO[3 + pi]
        for h in range(2):
            E("v_pk_add_f32 %s, %s, %s" % (vr(sk + 2 * h, 2), vr(sk + 2 * h, 2), vr(XD[1] + 4 * pi + 2 * h, 2)))
        E.wait(lg="pr3_%d" % pi)
        for h in range(2):
            E("v_pk_add_f32 %s, %s, %s" % (vr(p + 2 * h, 2), vr(p + 2 * h, 2), vr(p + 4 + 2 * h, 2)))
            E("v_pk_add_f32 %s, %s, %s" % (vr(p + 8 + 2 * h, 2), vr(p + 8 + 2 * h, 2), vr(p + 12 + 2 * h, 2)))
        for h in range(2):
            E("v_pk_add_f32 %s, %s, %s" % (vr(p + 2 * h, 2), vr(p + 2 * h, 2), vr(p + 8 + 2 * h, 2)))
        for h in range(2):
            E("v_pk_fma_f32 %s, %s, %s, %s %s" % (vr(sk + 2 * h, 2), vr(g, 2), vr(p + 2 * h, 2), vr(sk + 2 * h, 2), BC_LO))
        E.vm("out", "buffer_store_dwordx4 %s, v%d, %s, s%d offen %s" % (vr(sk, 4), vO[pi], srd(SOUT), sO + 1, lastflag))
    if stamps:
        stamp("fin")
        E.wait_all(vm=True)
        stamp("drain")
        E("s_memrealtime s[100:101]")
        E("s_waitcnt lgkmcnt(0)")
        E("s_mov_b32 s%d, s100" % (sSTAMP + 16))
        E("s_lshl_b32 s%d, s2, 2" % sT0)
        E("s_add_u32 s%d, s%d, s%d" % (sT0, sT0, sW))
        E("s_lshl_b32 s%d, s%d, 7" % (sT0, sT0))
        E("s_add_u32 s%d, s%d, %d" % (sT0, sT0, ST_OFF))
        E("v_mov_b32 v2, 0")
        for k in range(18):
            E("v_mov_b32 v3, s%d" % (sSTAMP + k))
            E("buffer_store_dword v3, v2, %s, s%d offen offset:%d sc1" % (srd(SWS), sT0, 4 * k))
        E("buffer_store_dword v253, v2, %s, s%d offen offset:72 sc1" % (srd(SWS), sT0))
        E("buffer_store_dword v254, v2, %s, s%d offen offset:76 sc1" % (srd(SWS), sT0))
        E("s_waitcnt vmcnt(0)")
    E.label("L_end")
    E("s_endpgm")
    for t in slow:
        E(t)
    E.label("L_last")
    body = E.text()
    if stamps:
        body = "; STAMPS " + " ".join(names) + "\n" + body
    probs = check_hazards(body)
    assert not probs, "hazards"
    return body


HEADER = open("gated_mix__ssm_conv_s5__ssm_conv_s5__prompt.s.ref").read()


def full_file(**kw):
    body = generate(**kw)
    head = HEADER[:HEADER.index("; Override launch geometry")]
    out = head
    out += "; Generated by a hand-written scheduler script (fused two-phase kernel, one workgroup per CU).\n"
    out += "; @launch grid=(256,1,1) block=(256,1,1) lds=163840\n"
    out += '.amdgcn_target "amdgcn-amd-amdhsa--gfx950"\n.text\n.globl %s\n.p2align 8\n.type %s,@function\n%s:\n' % (KNAME, KNAME, KNAME)
    out += body + "\ns_endpgm\n"
    out += """.section .rodata,"a"
.p2align 6
.amdhsa_kernel %s
  .amdhsa_next_free_vgpr 512
  .amdhsa_next_free_sgpr 102
  .amdhsa_accum_offset 256
  .amdhsa_group_segment_fixed_size 0
  .amdhsa_kernarg_size 176
  .amdhsa_user_sgpr_count 2
  .amdhsa_user_sgpr_kernarg_segment_ptr 1
  .amdhsa_system_sgpr_workgroup_id_x 1
  .amdhsa_float_denorm_mode_32 3
.end_amdhsa_kernel
""" % KNAME
    return out


if __name__ == "__main__":
    import ast
    kw = {}
    path = sys.argv[1]
    for a in sys.argv[2:]:
        k, v = a.split("=", 1)
        try:
            kw[k] = ast.literal_eval(v)
        except Exception:
            kw[k] = v
    open(path, "w").write(full_file(**kw))
    print("wrote", path)
```

```python
import sys
from asmlib import Emitter, Rec, check_hazards

KNAME = "gated_mix__ssm_conv_s5__ssm_conv_s5__prompt_kernel"

MAT = 128 * 40 * 512
E_OFF = 4 * MAT
G_OFF = E_OFF + 16 * 16 * 640
F_OFF = G_OFF + 2048 * 16
R_OFF = F_OFF + 256 * 128
N_OFF = R_OFF + 256 * 128
X_OFF = N_OFF + 128
ST_OFF = X_OFF + 256 * 24576
TAGK = 0x9E3779B9
OOB = 0x7FF00000
SLOT = 40960
ETAB = SLOT
TTAB = SLOT + 11520
TRS = SLOT + 23040
PTAB = SLOT + 36864
RED = SLOT
SPIN = 1 << 16

SX, SB, SC, SWS, SE, SDBG, SOUT, ST0, ST1, ST2 = 4, 8, 12, 16, 20, 24, 28, 32, 36, 40
sW = 3
sI, sJ, sDT = 88, 89, 91
sM0X, sM0B, sM0C = 92, 93, 94
sK, sKC = 95, 96
sT0, sT1, sT2 = 97, 98, 99
sCNT = 100
sR2 = 101
sH = 44
sXW, sXR = 49, 51
sRD = 53
sSEL = 54
sHB0, sHB1 = 54, 55
sE1, sE2 = 56, 57
sTO = 58
sO = 66
sSTAMP = 70


def srd(r):
    return "s[%d:%d]" % (r, r + 3)


def vr(r, n=1):
    return "v%d" % r if n == 1 else "v[%d:%d]" % (r, r + n - 1)


def ar(r, n=1):
    return "a%d" % r if n == 1 else "a[%d:%d]" % (r, r + n - 1)


vL = 1
ACC = 16
HBUF = 16
BF = 96
AF = 136
vRA, vRB, vDX = 156, 164, 172
vDB = 248
vPC = 238
vRC = 180
vN = 186
vTW, vTD = 176, 177
vXA = (178, 178, 179)
vXL = (178, 178, 152)
vHL, vPW = 190, 191
vPR = ((192, 193, 189), (148, 149, 150))
vO = (194, 195, 188)
vFA = 255
PARK = 200
vE, vG, vF, vHB = 196, 197, 198, 199
PA, PCF = 200, 220
SKIP = 200
GS = (224, 225, 248, 249, 250, 251)
GO = (136, 138, 140, 142, 144, 146)
vA8, vA128, vCO = 232, 234, 236
ACC2 = 96
PART = (232, 156, 32)
XD = (2, 16)


def acc(mt, nt):
    return ACC + (mt * 10 + nt) * 4


def U(kind, n, s):
    return acc(s >> 1, n + 5 * kind) + 2 * (s & 1)


def cfrag(sig, ks, n):
    return ar(40 * sig + 4 * (ks * 5 + n), 4)


CSLOT = {0: 2, 1: 3, 2: 0, 3: 2, 4: 3}
CSI = {0: 0, 2: 1, 3: 2}

BC_LO = "op_sel_hi:[0,1,1]"
BC_HI = "op_sel:[1,0,0] op_sel_hi:[1,1,1]"
BC_HI_SW = "op_sel:[1,1,0] op_sel_hi:[1,0,1]"
NEG0 = "neg_lo:[1,0,0] neg_hi:[1,0,0]"
LOG2E = 0x3FB8AA3B
LOG2E_LO = 0x32A5705F
LN2 = 0x3F317218


def generate(rot1=(1, 3), rot2=(1, 1, 1), stamps=False, outflag="sc1", lastflag="sc1", dmaflag="", cflag="",
             fine=(), npro=2, plan=((0,), (), (1,), (), (2,), (3, 4)), hflag="sc1", pf=1, xflag=None, gxd=(270, 370), early=0, lpos=0, v2=(), xflag2='sc1', nox=0, dlead=0, wsbase=0):
    E = Emitter()
    names = []

    def stamp(name="", lvl=1):
        if stamps and (lvl == 1 or name in fine):
            k = len(names)
            names.append(name)
            assert k < 15
            E("s_memtime s[%d:%d]" % (sT1, sT1 + 1))
            E.wait_all(lg=True)
            E("s_mov_b32 s%d, s%d" % (sSTAMP + k, sT1))

    def estamp(k):
        if stamps:
            E("s_memtime s[%d:%d]" % (sT1, sT1 + 1))
            E("s_waitcnt lgkmcnt(0)")
            E("v_mov_b32 v%d, s%d" % (253 + k, sT1))

    def cmul(dst, x, y):
        E("v_pk_mul_f32 %s, %s, %s op_sel_hi:[0,1]" % (vr(dst, 2), vr(x, 2), vr(y, 2)))
        E("v_pk_fma_f32 %s, %s, %s, %s %s neg_lo:[0,1,0]" % (vr(dst, 2), vr(x, 2), vr(y, 2), vr(dst, 2), BC_HI_SW))

    def mod10(r, t):
        E("s_mul_i32 s%d, s%d, 6554" % (t, r))
        E("s_lshr_b32 s%d, s%d, 16" % (t, t))
        E("s_mul_i32 s%d, s%d, 10" % (t, t))
        E("s_sub_u32 s%d, s%d, s%d" % (r, r, t))

    E("s_cmp_ge_u32 s2, 256")
    E("s_cbranch_scc1 L_end")
    E("s_load_dwordx16 s[44:59], s[0:1], 0")
    E("s_load_dwordx16 s[60:75], s[0:1], 64")
    E("s_load_dwordx8 s[76:83], s[0:1], 128")
    E("s_load_dwordx4 s[84:87], s[0:1], 160")
    if stamps:
        E("s_memrealtime s[16:17]")
        E("s_memtime s[18:19]")
    E("s_getpc_b64 s[98:99]")
    E.label("L_pc")
    E.c("pull this kernel's own code into L2 while the first tiles are fetched (1 KB per workgroup)")
    E("s_lshr_b32 s%d, s2, 3" % sKC)
    E("v_min_u32 v2, 7, v0")
    E("v_lshl_add_u32 v2, s%d, 3, v2" % sKC)
    E("v_lshlrev_b32 v2, 7, v2")
    E("v_min_u32 v2, L_last-L_pc, v2")
    if pf:
        E.vm("pf", "global_load_dword v255, v2, s[98:99]")
    E("v_lshrrev_b32 v4, 6, v0")
    E("v_and_b32 v%d, 63, v0" % vL)
    E("v_readfirstlane_b32 s%d, v4" % sW)
    E("s_and_b32 s%d, s2, 7" % sR2)
    E("s_and_b32 s%d, s%d, 1" % (sI, sR2))
    E("s_lshl_b32 s%d, s%d, 3" % (sI, sI))
    E("s_and_b32 s%d, s%d, 7" % (sDT, sKC))
    E("s_add_u32 s%d, s%d, s%d" % (sI, sI, sDT))
    E("s_lshr_b32 s%d, s%d, 1" % (sJ, sR2))
    E("s_lshl_b32 s%d, s%d, 2" % (sJ, sJ))
    E("s_lshr_b32 s%d, s%d, 3" % (sK, sKC))
    E("s_add_u32 s%d, s%d, s%d" % (sJ, sJ, sK))
    if rot1 == (0, 0):
        E("s_mov_b32 s%d, 0" % sK)
    else:
        E("s_mul_i32 s%d, s%d, %d" % (sK, sI, rot1[0]))
        E("s_mul_i32 s%d, s%d, %d" % (sT0, sJ, rot1[1]))
        E("s_add_u32 s%d, s%d, s%d" % (sK, sK, sT0))
        mod10(sK, sT0)
        E("s_lshl_b32 s%d, s%d, 7" % (sK, sK))
    E("s_lshl_b32 s%d, s%d, 12" % (sM0X, sW))
    E("s_mul_i32 s%d, s%d, 5120" % (sM0B, sW))
    E("s_add_u32 s%d, s%d, 16384" % (sM0B, sM0B))
    E("s_mul_i32 s%d, s%d, 10240" % (sM0C, sW))
    E("v_lshrrev_b32 v4, 4, v%d" % vL)
    E("v_and_b32 v5, 7, v%d" % vL)
    E("v_xor_b32 v5, v5, v4")
    E("v_lshlrev_b32 v5, 4, v5")
    E("v_lshrrev_b32 v6, 5, v%d" % vL)
    E("v_lshlrev_b32 v6, 3, v6")
    E("v_bfe_u32 v8, v%d, 3, 1" % vL)
    E("v_lshl_add_u32 v6, v8, 2, v6")
    E("v_and_b32 v8, 1, v4")
    E("v_add_u32 v6, v6, v8")
    E("s_lshl_b32 s%d, s%d, 7" % (sT0, sI))
    E("s_lshl_b32 s%d, s%d, 5" % (sT1, sW))
    E("s_add_u32 s%d, s%d, s%d" % (sT0, sT0, sT1))
    E("v_add_u32 v6, s%d, v6" % sT0)
    E("v_mul_u32_u24 v6, 1280, v6")
    E("v_add_u32 v%d, v6, v5" % (vDX + 0))
    E("v_xor_b32 v6, 64, v%d" % (vDX + 0))
    E("v_add_u32 v%d, %d, v6" % (vDX + 1, 16 * 1280 - 1024))
    E("v_add_u32 v%d, %d, v%d" % (vDX + 2, 2 * 1280 - 2048, vDX + 0))
    E("v_add_u32 v%d, %d, v6" % (vDX + 3, 18 * 1280 - 3072))
    E("v_lshrrev_b32 v7, 3, v%d" % vL)
    E("v_mul_u32_u24 v7, 1280, v7")
    E("v_add_u32 v7, v7, v5")
    E("s_and_b32 s%d, s%d, 7" % (sT0, sJ))
    E("s_mul_i32 s%d, s%d, 80" % (sT0, sT0))
    E("s_and_b32 s%d, s%d, 1" % (sT1, sW))
    E("s_mul_i32 s%d, s%d, 40" % (sT2, sT1))
    E("s_add_u32 s%d, s%d, s%d" % (sT2, sT2, sT0))
    E("s_mul_i32 s%d, s%d, 1280" % (sT2, sT2))
    E("s_lshl_b32 s%d, s%d, 6" % (sT1, sT1))
    E("v_xor_b32 v8, s%d, v7" % sT1)
    E("v_add_u32 v%d, s%d, v8" % (vDB + 0, sT2))
    E("v_xor_b32 v8, 64, v%d" % (vDB + 0))
    E("v_add_u32 v%d, %d, v8" % (vDB + 1, 8 * 1280 - 1024))
    E("v_add_u32 v%d, %d, v%d" % (vDB + 2, 16 * 1280 - 2048, vDB + 0))
    E("v_add_u32 v%d, %d, v8" % (vDB + 3, 24 * 1280 - 3072))
    E("v_add_u32 v%d, %d, v%d" % (vDB + 4, 32 * 1280, vDB + 0))
    E("s_mul_i32 s%d, s%d, 20" % (sT1, sW))
    E("v_add_u32 v10, s%d, v%d" % (sT1, vL))
    E("v_add_u32 v9, s%d, v10" % sT0)
    E("v_lshlrev_b32 v9, 1, v9")
    E("s_waitcnt lgkmcnt(0)")
    estamp(0)
    if stamps:
        E("s_mov_b32 s62, s16")
        E("s_mov_b32 s63, s18")
    E("s_mov_b32 s%d, s44" % SX)
    E("s_mov_b32 s%d, s45" % (SX + 1))
    E("s_mov_b32 s%d, %d" % (SX + 2, 2048 * 1280))
    E("s_mov_b32 s%d, 0x20000" % (SX + 3))
    E("s_cmp_ge_u32 s%d, 8" % sJ)
    E("s_cselect_b64 s[50:51], s[68:69], s[50:51]")
    E("s_cselect_b64 s[52:53], s[70:71], s[52:53]")
    E("s_cselect_b64 s[%d:%d], s[64:65], s[46:47]" % (ST0, ST0 + 1))
    E("s_cselect_b64 s[%d:%d], s[66:67], s[48:49]" % (ST1, ST1 + 1))
    E("s_cselect_b64 s[%d:%d], s[76:77], s[58:59]" % (ST2, ST2 + 1))
    E("s_cmp_ge_u32 s%d, 2" % sW)
    E("s_cselect_b64 s[%d:%d], s[52:53], s[50:51]" % (SB, SB + 1))
    E("s_mov_b32 s%d, %d" % (SB + 2, 640 * 1280))
    E("s_mov_b32 s%d, 0x20000" % (SB + 3))

    def dma_stage_ops(n):
        slot = (n % 4) * SLOT
        ops = []
        for u in range(4):
            pre = ["s_add_u32 m0, s%d, %d" % (sM0X, slot)] if u == 0 else []
            ops.append((pre, "buffer_load_dwordx4 v%d, %s, s%d offen offset:%d %s lds" % (vDX + u, srd(SX), sK, 1024 * u, dmaflag if xflag is None else xflag), []))
        for v in range(5):
            pre = []
            if v == 0:
                pre = ["s_add_u32 m0, s%d, %d" % (sM0B, slot)]
            if v == 4:
                pre = ["s_add_u32 m0, s%d, %d" % (sM0B, slot + 4096)]
            post = []
            if v == 4:
                post = ["s_add_u32 s%d, s%d, 128" % (sK, sK)]
                if rot1 != (0, 0):
                    post += ["s_cmp_eq_u32 s%d, 1280" % sK, "s_cselect_b32 s%d, 0, s%d" % (sK, sK)]
            ops.append((pre, "buffer_load_dwordx4 v%d, %s, s%d offen offset:%d %s lds" % (vDB + v, srd(SB), sK, 1024 * (v & 3) if v < 4 else 0, dmaflag), post))
        return ops

    def dma_c_ops(sig):
        slot = CSLOT[sig] * SLOT
        ops = []
        for u in range(10):
            pre = ["s_add_u32 m0, s%d, %d" % (sM0C, slot + 4096 * (u >> 2))] if (u & 3) == 0 else []
            post = []
            if u == 9:
                post = ["s_add_u32 s%d, s%d, 128" % (sKC, sKC), "s_cmp_eq_u32 s%d, 640" % sKC, "s_cselect_b32 s%d, 0, s%d" % (sKC, sKC)]
            ops.append((pre, "buffer_load_dwordx4 v%d, %s, s%d offen offset:%d %s lds" % (vPC + u, srd(SC), sKC, 1024 * (u & 3), cflag), post))
        return ops

    def emit_dma(R, tag, ops):
        for pre, d, post in ops:
            for p in pre:
                R(p)
                R("s_nop 0")
            R.vm(tag, d)
            for p in post:
                R(p)
            if isinstance(R, Rec):
                R.mark()

    for r in (ST0, ST1, ST2):
        E("s_mov_b32 s%d, 1280" % (r + 2))
        E("s_mov_b32 s%d, 0x20000" % (r + 3))
    E.vm("par0", "buffer_load_ushort v11, v9, %s, 0 offen" % srd(ST0))
    E.vm("par0", "buffer_load_ushort v12, v9, %s, 0 offen" % srd(ST1))
    E.vm("par0", "buffer_load_ushort v13, v9, %s, 0 offen" % srd(ST2))
    emit_dma(E, "st0", dma_stage_ops(0))
    estamp(1)
    E("s_bitcmp1_b32 s2, 0")
    E("s_cselect_b64 s[54:55], s[72:73], s[54:55]")
    E("s_cselect_b64 s[56:57], s[74:75], s[56:57]")
    E("s_cselect_b64 s[%d:%d], s[78:79], s[60:61]" % (ST1, ST1 + 1))
    E("s_cselect_b64 s[%d:%d], s[60:61], s[78:79]" % (ST2, ST2 + 1))
    E("s_cmp_ge_u32 s%d, 2" % sW)
    E("s_cselect_b64 s[%d:%d], s[56:57], s[54:55]" % (SC, SC + 1))
    E("s_mov_b32 s%d, %d" % (SC + 2, 640 * 1280))
    E("s_mov_b32 s%d, 0x20000" % (SC + 3))
    if stamps:
        E("s_mov_b32 s44, s62")
        E("s_mov_b32 s45, s63")
    if wsbase:
        E("s_add_u32 s86, s86, %d" % wsbase)
        E("s_addc_u32 s87, s87, 0")
    E("s_mov_b32 s%d, s86" % SWS)
    E("s_mov_b32 s%d, s87" % (SWS + 1))
    E("s_mov_b32 s%d, %d" % (SWS + 2, ST_OFF + (256 * 4 * 128 if stamps else 0)))
    E("s_mov_b32 s%d, 0x20000" % (SWS + 3))
    E("s_mul_i32 s%d, s%d, 10240" % (sT0, sJ))
    E("s_add_u32 s%d, s%d, %d" % (sT0, sT0, E_OFF))
    E("s_add_u32 s%d, s86, s%d" % (SE, sT0))
    E("s_addc_u32 s%d, s87, 0" % (SE + 1))
    E("s_mov_b32 s%d, 10240" % (SE + 2))
    E("s_mov_b32 s%d, 0x20000" % (SE + 3))
    E("s_mov_b32 s%d, s84" % SDBG)
    E("s_mov_b32 s%d, s85" % (SDBG + 1))
    E("s_mov_b32 s%d, 256" % (SDBG + 2))
    E("s_mov_b32 s%d, 0x20000" % (SDBG + 3))
    E("s_mov_b32 s%d, s82" % SOUT)
    E("s_mov_b32 s%d, s83" % (SOUT + 1))
    E("s_mov_b32 s%d, %d" % (SOUT + 2, 2048 * 640 * 4))
    E("s_mov_b32 s%d, 0x20000" % (SOUT + 3))
    E("s_mov_b32 s%d, s80" % ST0)
    E("s_mov_b32 s%d, s81" % (ST0 + 1))
    if stamps:
        E("s_mov_b32 s%d, s44" % (sSTAMP + 17))
        E("s_mov_b32 s%d, s45" % (sSTAMP + 15))
    E("v_mov_b32 v4, 0x%x" % OOB)
    E("v_lshl_or_b32 v2, s2, 8, v0")
    E("v_cmp_eq_u32 vcc, 0, v2")
    E("v_mov_b32 v3, %d" % N_OFF)
    E("s_sub_u32 s%d, 15, s%d" % (sT0, sI))
    E("v_cndmask_b32 v%d, v4, v3, vcc" % vTW)
    E("v_cndmask_b32 v%d, v4, v2, vcc" % vTD)
    E.vm("tagw", "buffer_load_dword v%d, v%d, %s, 0 offen sc1" % (vN, vTW, srd(SWS)))
    E("s_mul_i32 s%d, s%d, 640" % (sT0, sT0))
    E("v_lshlrev_b32 v2, 3, v10")
    E("v_add_u32 v2, s%d, v2" % sT0)
    E("v_cmp_gt_u32 vcc, 20, v%d" % vL)
    E("s_lshl_b32 s%d, s%d, 7" % (sT0, sI))
    E("s_lshl_b32 s%d, s%d, 3" % (sT1, sJ))
    E("v_cndmask_b32 v%d, v4, v2, vcc" % vE)
    E("v_mov_b32 v14, -1")
    E("v_mov_b32 v15, -1")
    E.vm("clr", "buffer_store_dwordx2 v[14:15], v%d, %s, 0 offen sc1" % (vE, srd(SE)))
    E("s_add_u32 s%d, s%d, s%d" % (sT0, sT0, sT1))
    E("s_lshl_b32 s%d, s%d, 1" % (sT1, sW))
    E("s_add_u32 s%d, s%d, s%d" % (sT0, sT0, sT1))
    E("v_lshrrev_b32 v2, 5, v%d" % vL)
    E("v_add_u32 v8, s%d, v2" % sT0)
    E("v_lshlrev_b32 v2, 4, v8")
    E("v_add_u32 v2, %d, v2" % G_OFF)
    E("v_and_b32 v3, 31, v%d" % vL)
    E("v_cmp_eq_u32 vcc, 0, v3")
    E("s_lshl_b32 s%d, s%d, 4" % (sT0, sI))
    E("s_add_u32 s%d, s%d, s%d" % (sT0, sT0, sJ))
    E("v_cndmask_b32 v%d, v4, v2, vcc" % vG)
    E("s_lshl_b32 s%d, s%d, 7" % (sT0, sT0))
    E("s_add_u32 s%d, s%d, %d" % (sT0, sT0, F_OFF))
    E("v_mov_b32 v2, s%d" % sT0)
    E("v_cmp_eq_u32 vcc, 0, v0")
    E("s_mov_b32 s%d, %d" % (sRD, R_OFF - F_OFF))
    E("s_mov_b32 s%d, 0" % sCNT)
    E("v_cndmask_b32 v%d, v4, v2, vcc" % vF)
    E("v_and_b32 v2, 15, v%d" % vL)
    E("v_lshrrev_b32 v3, 1, v2")
    E("v_lshrrev_b32 v4, 4, v%d" % vL)
    E("v_xor_b32 v3, v3, v4")
    E("v_lshlrev_b32 v3, 4, v3")
    E("v_lshl_add_u32 v2, v2, 7, v3")
    E("v_xor_b32 v3, 64, v2")
    for ks in range(2):
        E("v_add_u32 v%d, s%d, v%d" % (vRA + 4 * ks, sM0X, 2 + ks))
        E("v_add_u32 v%d, 16384, v%d" % (vRB + 4 * ks, 2 + ks))
        E("v_add_u32 v%d, s%d, v%d" % (vRC + 3 * ks, sM0C, 2 + ks))
        for s in range(1, 4):
            E("v_add_u32 v%d, %d, v%d" % (vRA + 4 * ks + s, s * SLOT, vRA + 4 * ks))
            E("v_add_u32 v%d, %d, v%d" % (vRB + 4 * ks + s, s * SLOT, vRB + 4 * ks))
        E("v_add_u32 v%d, %d, v%d" % (vRC + 3 * ks + 1, 2 * SLOT, vRC + 3 * ks))
        E("v_add_u32 v%d, %d, v%d" % (vRC + 3 * ks + 2, 3 * SLOT, vRC + 3 * ks))
    E("s_mul_i32 s%d, s%d, %d" % (sT0, sDT, 80 * 1280))
    E("s_and_b32 s%d, s%d, 1" % (sT1, sW))
    E("s_mul_i32 s%d, s%d, 640" % (sT1, sT1))
    E("s_add_u32 s%d, s%d, s%d" % (sT0, sT0, sT1))
    E("v_add_u32 v%d, s%d, v7" % (vPC, sT0))
    E("v_xor_b32 v7, 64, v%d" % vPC)
    for u in range(1, 10):
        E("v_add_u32 v%d, %d, v%d" % (vPC + u, 8 * u * 1280 - 1024 * (u & 3), 7 if (u & 1) else vPC))
    E("s_lshr_b32 s%d, s%d, 1" % (sR2, sR2))
    E("s_mul_i32 s%d, s%d, %d" % (sR2, sR2, rot2[2]))
    E("s_and_b32 s%d, s%d, 3" % (sT0, sJ))
    E("s_mul_i32 s%d, s%d, %d" % (sT0, sT0, rot2[0]))
    E("s_add_u32 s%d, s%d, s%d" % (sR2, sR2, sT0))
    E("s_mul_i32 s%d, s%d, %d" % (sT0, sDT, rot2[1]))
    E("s_add_u32 s%d, s%d, s%d" % (sR2, sR2, sT0))
    E("s_mul_i32 s%d, s%d, 13108" % (sT0, sR2))
    E("s_lshr_b32 s%d, s%d, 16" % (sT0, sT0))
    E("s_mul_i32 s%d, s%d, 5" % (sT0, sT0))
    E("s_sub_u32 s%d, s%d, s%d" % (sR2, sR2, sT0))
    E("s_mul_i32 s%d, s%d, 3072" % (sT0, sW))
    E("s_add_u32 s%d, s%d, %d" % (sT0, sT0, X_OFF))
    E("s_mul_i32 s%d, s2, 24576" % sXW)
    E("s_add_u32 s%d, s%d, s%d" % (sXW, sXW, sT0))
    E("s_add_u32 s%d, s%d, 12288" % (sXW + 1, sXW))
    E("s_xor_b32 s%d, s2, 1" % sXR)
    E("s_mul_i32 s%d, s%d, 24576" % (sXR, sXR))
    E("s_add_u32 s%d, s%d, s%d" % (sXR, sXR, sT0))
    E("s_add_u32 s%d, s%d, 12288" % (sXR + 1, sXR))
    E("v_cmp_gt_u32 vcc, 32, v%d" % vL)
    E("v_lshlrev_b32 v%d, 4, v%d" % (vXA[0], vL))
    E("v_mov_b32 v4, 0x%x" % OOB)
    E("s_nop 0")
    E("v_cndmask_b32 v%d, v4, v%d, vcc" % (vXA[2], vXA[0]))
    E("s_lshl_b32 s%d, s%d, 7" % (sKC, sR2))

    def park(k, v):
        E("v_accvgpr_write_b32 a%d, v%d" % (PARK + k, v))

    def unpark(R, k, v):
        R("v_accvgpr_read_b32 v%d, a%d" % (v, PARK + k))

    E("v_and_b32 v2, 15, v%d" % vL)
    E("v_lshrrev_b32 v3, 4, v%d" % vL)
    E("v_bfe_u32 v4, v2, 1, 2")
    E("v_xor_b32 v4, v4, v3")
    E("v_bfe_u32 v5, v2, 3, 1")
    E("v_lshlrev_b32 v5, 1, v5")
    E("v_xor_b32 v4, v4, v5")
    E("v_lshlrev_b32 v4, 4, v4")
    E("s_lshl_b32 s%d, s%d, 11" % (sT0, sW))
    E("s_add_u32 s%d, s%d, %d" % (sT0, sT0, TRS))
    E("v_lshl_add_u32 v4, v2, 6, v4")
    E("v_add_u32 v7, s%d, v4" % sT0)
    park(0, 7)
    E("v_lshrrev_b32 v4, 2, v2")
    E("v_lshl_add_u32 v5, v3, 3, v4")
    E("v_lshlrev_b32 v5, 6, v5")
    E("v_lshrrev_b32 v4, 1, v4")
    E("v_bfe_u32 v6, v2, 1, 1")
    E("v_xor_b32 v4, v4, v6")
    E("v_lshl_add_u32 v5, v4, 4, v5")
    E("v_and_b32 v4, 1, v2")
    E("v_lshl_add_u32 v5, v4, 3, v5")
    E("v_and_b32 v4, 1, v3")
    E("v_lshl_add_u32 v5, v4, 5, v5")
    E("v_add_u32 v7, s%d, v5" % sT0)
    park(1, 7)
    E("v_xor_b32 v7, 32, v7")
    park(2, 7)
    E("v_and_b32 v4, 31, v%d" % vL)
    E("v_lshlrev_b32 v4, 4, v4")
    E("v_lshrrev_b32 v5, 5, v%d" % vL)
    E("v_mul_u32_u24 v5, %d, v5" % MAT)
    E("v_add_u32 v7, v4, v5")
    park(3, 7)
    E("s_lshr_b32 s%d, s%d, 3" % (sT0, sJ))
    E("s_mul_i32 s%d, s%d, %d" % (sHB0, sT0, 2 * MAT))
    E("s_lshl_b32 s%d, s%d, 3" % (sT0, sI))
    E("s_lshl_b32 s%d, s%d, 1" % (sT1, sW))
    E("s_add_u32 s%d, s%d, s%d" % (sT0, sT0, sT1))
    E("s_mul_i32 s%d, s%d, 20480" % (sT0, sT0))
    E("s_add_u32 s%d, s%d, s%d" % (sHB0, sHB0, sT0))
    E("s_and_b32 s%d, s%d, 7" % (sT0, sJ))
    E("s_mul_i32 s%d, s%d, 2560" % (sT0, sT0))
    E("s_add_u32 s%d, s%d, s%d" % (sHB0, sHB0, sT0))
    E("s_add_u32 s%d, s%d, 20480" % (sHB1, sHB0))
    E("s_and_b32 s%d, s2, 1" % sT0)
    E("s_lshl_b32 s%d, s%d, 1" % (sT0, sT0))
    E("s_sub_u32 s%d, 2, s%d" % (sT0, sT0))
    E("v_bfe_u32 v15, v%d, 3, 2" % vL)
    E("v_add_u32 v15, s%d, v15" % sT0)
    E("v_and_b32 v15, 3, v15")
    for k in range(4):
        E("s_and_b32 s%d, s%d, 3" % (sT0, sT0))
        E("s_mul_i32 s%d, s%d, 40960" % (sTO + 2 * k, sT0))
        E("s_add_u32 s%d, s%d, 20480" % (sTO + 2 * k + 1, sTO + 2 * k))
        if k >= 2:
            E("s_lshl_b32 s%d, s%d, 1" % (sO + k - 2, sTO + 2 * k))
        E("s_add_u32 s%d, s%d, 1" % (sT0, sT0))
    E("s_lshl_b32 s%d, s%d, 3" % (sT1, sW))
    E("s_lshl_b32 s%d, s%d, 7" % (sT0, sJ))
    E("s_add_u32 s%d, s%d, s%d" % (sT0, sT0, sT1))
    E("v_and_b32 v2, 7, v%d" % vL)
    E("v_lshl_add_u32 v2, v15, 5, v2")
    E("v_add_u32 v2, s%d, v2" % sT0)
    E("v_lshlrev_b32 v2, 4, v2")
    E("v_add_u32 v2, %d, v2" % G_OFF)
    park(10, 2)
    E("s_mul_i32 s%d, s%d, 160" % (sT2, sDT))
    E("v_cmp_gt_u32 vcc, 32, v%d" % vL)
    for pi in range(3):
        if pi == 0:
            E("v_mov_b32 v2, v%d" % vL)
        elif pi == 1:
            E("v_add_u32 v2, 64, v%d" % vL)
        else:
            E("v_min_u32 v2, 31, v%d" % vL)
            E("v_add_u32 v2, 128, v2")
        E("v_mul_u32_u24 v3, 205, v2")
        E("v_lshrrev_b32 v3, 12, v3")
        E("v_mul_u32_u24 v4, 20, v3")
        E("v_sub_u32 v4, v2, v4")
        E("v_lshlrev_b32 v6, 2, v3")
        park(11 + pi, 6)
        E("v_lshl_add_u32 v6, v4, 3, s%d" % sT2)
        park(4 + pi, 6)
        E("v_add_u32 v5, s%d, v3" % sT0)
        E("v_mul_u32_u24 v5, 1280, v5")
        E("v_add_u32 v5, v5, v6")
        park(7 + pi, 5)
        E("v_lshlrev_b32 v%d, 1, v5" % vO[pi])
        E("v_add_u32 v3, s%d, v3" % sT1)
        E("v_bfe_u32 v5, v3, 1, 2")
        E("v_xor_b32 v5, v5, v4")
        E("v_lshlrev_b32 v5, 4, v5")
        E("v_mul_u32_u24 v3, 320, v3")
        E("v_add_u32 v%d, v3, v5" % vPR[0][pi])
    E("v_mov_b32 v6, 0x%x" % OOB)
    E("v_cndmask_b32 v%d, v6, v%d, vcc" % (vO[2], vO[2]))
    E("v_and_b32 v2, 15, v%d" % vL)
    E("v_lshrrev_b32 v3, 4, v%d" % vL)
    E("v_bfe_u32 v4, v2, 1, 2")
    E("v_xor_b32 v3, v3, v4")
    E("v_lshlrev_b32 v3, 4, v3")
    E("v_mul_u32_u24 v2, 320, v2")
    E("v_add3_u32 v%d, v2, v3, s%d" % (vPW, sM0C))
    E("s_and_b32 s%d, s2, 1" % sT1)
    E("s_lshl_b32 s%d, s%d, 1" % (sT1, sT1))
    E("s_lshr_b32 s%d, s%d, 1" % (sT2, sW))
    E("s_add_u32 s%d, s%d, s%d" % (sT1, sT1, sT2))
    E("s_mul_i32 s%d, s%d, %d" % (sT1, sT1, MAT))
    E("s_mul_i32 s%d, s%d, %d" % (sT2, sJ, 8 * 20480))
    E("s_add_u32 s%d, s%d, s%d" % (sT1, sT1, sT2))
    E("s_and_b32 s%d, s%d, 1" % (sT2, sW))
    E("s_mul_i32 s%d, s%d, 10240" % (sT2, sT2))
    E("s_add_u32 s%d, s%d, s%d" % (sT1, sT1, sT2))
    E("v_lshl_add_u32 v%d, v%d, 4, s%d" % (vHB, vL, sT1))
    E("v_add_u32 v%d, s%d, v%d" % (vHL, sTO, vHB))
    E("s_lshl_b32 s%d, s%d, 11" % (sH, sR2))
    for k in range(1, 5):
        E("s_add_u32 s%d, s%d, 2048" % (sH + k, sH + k - 1))
        E("s_cmp_eq_u32 s%d, 10240" % (sH + k))
        E("s_cselect_b32 s%d, 0, s%d" % (sH + k, sH + k))
    E("s_lshl_b32 s%d, s%d, 4" % (sT0, sJ))
    E("v_add_u32 v2, s%d, v%d" % (sT0, vL))
    E("s_xor_b32 s%d, s%d, 8" % (sT0, sI))
    E("s_lshl_b32 s%d, s%d, 4" % (sT0, sT0))
    E("s_add_u32 s%d, s%d, s%d" % (sT0, sT0, sJ))
    E("v_cmp_gt_u32 vcc, 16, v%d" % vL)
    E("v_mov_b32 v3, s%d" % sT0)
    E("s_nop 0")
    E("v_cndmask_b32 v2, v3, v2, vcc")
    E("v_lshlrev_b32 v2, 7, v2")
    E("v_add_u32 v2, %d, v2" % F_OFF)
    park(16, 2)
    E("v_min_u32 v2, 15, v%d" % vL)
    E("s_lshl_b32 s%d, s%d, 7" % (sT0, sJ))
    E("s_add_u32 s%d, s%d, %d" % (sT0, sT0, R_OFF))
    E("v_lshl_add_u32 v2, v2, 11, s%d" % sT0)
    park(14, 2)
    E("s_sub_u32 s%d, 16, s%d" % (sT0, sI))
    E("s_mul_i32 s%d, s%d, 640" % (sT0, sT0))
    E("v_lshl_add_u32 v2, v10, 3, s%d" % sT0)
    park(15, 2)
    E("s_mov_b32 s%d, 3840" % sE1)
    E("s_mov_b32 s%d, 7680" % sE2)

    def exp_nat(dst, x, t0, t1):
        E("v_mul_f32 v%d, s%d, v%d" % (t0, sT0, x))
        E("v_fma_f32 v%d, v%d, s%d, -v%d" % (t1, x, sT0, t0))
        E("v_exp_f32 v%d, v%d" % (t0, t0))
        E("v_fma_f32 v%d, v%d, s%d, v%d" % (t1, x, sT1, t1))
        E("v_mul_f32 v%d, s%d, v%d" % (t1, sT2, t1))
        E("v_fma_f32 v%d, v%d, v%d, v%d" % (dst, t0, t1, t0))

    E("s_mov_b32 s%d, 0x%x" % (sT0, LOG2E))
    E("s_mov_b32 s%d, 0x%x" % (sT1, LOG2E_LO))
    E("s_mov_b32 s%d, 0x%x" % (sT2, LN2))
    T = 16
    E.wait(vm="par0")
    E("v_lshlrev_b32 v13, 16, v13")
    E("v_lshlrev_b32 v%d, 16, v11" % (T + 0))
    E("v_lshlrev_b32 v%d, 16, v12" % (T + 1))
    exp_nat(13, 13, 2, 3)
    E("v_cvt_pk_bf16_f32 v13, v13, v13")
    E("v_lshlrev_b32 v13, 16, v13")
    E("v_mul_f32 v11, v13, v%d" % (T + 0))
    E("v_mul_f32 v12, v13, v%d" % (T + 1))
    exp_nat(11, 11, 2, 3)
    E("v_mul_f32 v12, 0.15915494, v12")
    E("v_rndne_f32 v2, v12")
    E("v_sub_f32 v12, v12, v2")
    E("v_cos_f32 v2, v12")
    E("v_sin_f32 v3, v12")
    E("v_mul_f32 v4, v%d, v%d" % (T + 0, T + 0))
    E("v_fmac_f32 v4, v%d, v%d" % (T + 1, T + 1))
    E("v_mul_f32 v%d, v11, v2" % (T + 2))
    E("v_mul_f32 v%d, v11, v3" % (T + 3))
    E("v_rcp_f32 v4, v4")
    cmul(T + 6, T + 2, T + 2)
    cmul(T + 4, T + 6, T + 6)
    cmul(vA8, T + 4, T + 4)
    cmul(T + 6, vA8, vA8)
    cmul(T + 8, T + 6, T + 6)
    cmul(T + 6, T + 8, T + 8)
    cmul(vA128, T + 6, T + 6)
    E("v_add_f32 v4, v4, v4")
    E("v_add_f32 v2, -1.0, v%d" % (T + 2))
    E("v_mul_f32 v6, v2, v%d" % (T + 0))
    E("v_fmac_f32 v6, v%d, v%d" % (T + 3, T + 1))
    E("v_mul_f32 v7, v%d, v%d" % (T + 3, T + 0))
    E("v_fma_f32 v7, -v2, v%d, v7" % (T + 1))
    E("v_mul_f32 v%d, v4, v6" % (vCO + 0))
    E("v_mul_f32 v%d, v4, v7" % (vCO + 1))
    E("v_lshlrev_b32 v2, 5, v10")
    E("v_add_u32 v2, %d, v2" % PTAB)
    E("s_mov_b64 exec, 0xfffff")
    E.lg("ptw", "ds_write_b128 v2, %s" % vr(T + 2, 4))
    E.lg("ptw", "ds_write_b64 v2, %s offset:16" % vr(vCO, 2))
    E("s_mov_b64 exec, -1")
    E("v_and_b32 v9, 15, v%d" % vL)
    E("v_lshlrev_b32 v9, 5, v9")
    E("v_add_u32 v9, %d, v9" % PTAB)
    E("v_and_b32 v2, 15, v%d" % vL)
    E("v_mul_u32_u24 v2, 144, v2")
    E("v_lshrrev_b32 v3, 4, v%d" % vL)
    E("v_lshl_add_u32 v2, v3, 3, v2")
    E("s_lshl_b32 s%d, s%d, 5" % (sT0, sW))
    E("s_add_u32 s%d, s%d, %d" % (sT0, sT0, ETAB))
    E("v_add_u32 v12, s%d, v2" % sT0)
    E("v_mul_u32_u24 v13, 144, v10")
    E("v_add_u32 v13, %d, v13" % ETAB)
    E("v_and_b32 v2, 31, v%d" % vL)
    E("v_lshlrev_b32 v6, 4, v2")
    E("v_mul_u32_u24 v4, 1280, v8")
    E("v_cmp_gt_u32 vcc, 16, v2")
    E("v_add_u32 v4, v4, v6")
    E("v_mov_b32 v3, 0x%x" % OOB)
    E("s_mov_b32 s%d, 0xffff0000" % sT0)
    E("v_cndmask_b32 v5, v3, v4, vcc")
    E("v_cndmask_b32 v7, v3, v6, vcc")
    for n in range(1, npro):
        emit_dma(E, "st%d" % n, dma_stage_ops(n))
    E.wait(vm=("tagw", "st0"), lg="ptw")
    E.c("thread 0 of workgroup 0 picks this launch's tag: the word an earlier launch left, plus one")
    E("v_add_u32 v%d, 1, v%d" % (vN, vN))
    E("v_mov_b32 v%d, 1" % (vN + 1))
    E("s_barrier")
    E.vm("ns", "buffer_store_dwordx2 %s, v%d, %s, 0 offen sc1" % (vr(vN, 2), vTD, srd(SDBG)))
    E.vm("ns", "buffer_store_dword v%d, v%d, %s, 0 offen sc1" % (vN, vTW, srd(SWS)))
    stamp("first")

    issueG = {}

    def rdA(kap, mt):
        n, ks = kap >> 1, kap & 1
        return ("A%d_%d" % (kap, mt), "ds_read_b128 %s, v%d offset:%d" % (vr(AF + 8 * (kap & 1) + 4 * mt, 4), vRA + 4 * ks + n % 4, 2048 * mt))

    def rdB(kap, nt):
        n, ks = kap >> 1, kap & 1
        return ("B%d_%d" % (kap, nt), "ds_read_b128 %s, v%d offset:%d" % (vr(BF + 4 * nt, 4), vRB + 4 * ks + n % 4, 2048 * nt))

    side = {}

    def at(G, fn):
        side.setdefault(G, []).append(fn)

    lgsched = {}

    def lgop(G, rd):
        lgsched.setdefault(G, []).append(rd[0])

        def f():
            E.lg(rd[0], rd[1])
            issueG[rd[0]] = G
        at(G, f)

    for kap in range(19):
        g0 = 20 * kap
        if kap & 1 == 0:
            lgop(g0 + 0, rdA(kap + 1, 0))
            lgop(g0 + 2, rdA(kap + 1, 1))
            for nt in range(10):
                lgop(g0 + 2 * nt + 1, rdB(kap + 1, nt))
        else:
            lgop(g0 + 6, rdA(kap + 1, 0))
            lgop(g0 + 8, rdA(kap + 1, 1))
            for nt, g in enumerate([7, 9, 10, 11, 12, 13, 14, 15, 17, 19]):
                lgop(g0 + g, rdB(kap + 1, nt))

    def place_dma(tag, ops, G0, offs):
        for (pre, d, post), o in zip(ops, offs):
            for p in pre:
                at(G0 + o - 1, (lambda p=p: E(p)))
            at(G0 + o, (lambda d=d: E.vm(tag, d)))
            for k, p in enumerate(post):
                at(G0 + o + 1, (lambda p=p: E(p)))

    batches = [("st%d" % n, dma_stage_ops(n), 1 if n < 4 else 20 * (2 * (n - 4) + 1) + 7) for n in range(npro, 10)]
    batches += [("c%d" % k, dma_c_ops(k), 20 * (2 * (k + 6) + 1) + 7) for k in plan[0]]
    nextG = 1
    for tag, ops, g_ok in batches:
        g = max(g_ok, nextG)
        late = g > g_ok or tag in ("st1", "st2", "st3")
        n = len(ops)
        offs = [2 * k for k in range(n)] if late else [(34 * k) // (n - 1) for k in range(n)]
        if tag[0] == "c":
            span = {1: 100, 2: 54, 3: 34}[len(plan[0])]
            offs = [(span * k) // (n - 1) for k in range(n)]
        place_dma(tag, ops, g, offs)
        nextG = g + offs[-1] + 3
    for n in range(10):
        G = 20 * (2 * n + 1) + 5

        def bar(n=n):
            E.wait(vm=("st%d" % (n + 1),), lg=list(E.lgq))
            E("s_barrier")
            stamp("b%d" % n, 2)
        at(G, bar)
    slow = []
    at(20 * 5 + 4, lambda: E.vm("tag", "buffer_load_dwordx2 v[14:15], off, %s, 0 sc1" % srd(SDBG)))

    def tagchk():
        E.wait(vm="tag")
        E.label("L_tag")
        E("v_cmp_eq_u32 vcc, 1, v15")
        E("v_mov_b32 v%d, v14" % vN)
        E("s_cbranch_vccz L_tag_slow")
        E.label("L_tag_ok")
    at(20 * 11 + 6, tagchk)
    at(20 * 11 + 8, lambda: E("v_xor_b32 v%d, 0x%x, v14" % (vN + 1, TAGK)))
    at(20 * 11 + 10, lambda: E.vm("rdy", "buffer_store_dwordx2 %s, v%d, %s, s%d offen sc1" % (vr(vN, 2), vF, srd(SWS), sRD)))
    slow += ["L_tag_slow:", "s_add_u32 s%d, s%d, 1" % (sCNT, sCNT), "s_cmp_gt_u32 s%d, %d" % (sCNT, SPIN), "s_cbranch_scc1 L_tag_ok",
             "s_sleep 2", "buffer_load_dwordx2 v[14:15], off, %s, 0 sc1" % srd(SDBG), "s_waitcnt vmcnt(0)", "s_branch L_tag"]
    for n in range(5):
        lgop(20 * 19 + 6 + 2 * n, ("pa%d" % n, "ds_read_b128 %s, v9 offset:%d" % (vr(PA + 4 * n, 4), 512 * n)))
        lgop(20 * 19 + 7 + 2 * n, ("pc%d" % n, "ds_read_b64 %s, v9 offset:%d" % (vr(PCF + 2 * n, 2), 512 * n + 16)))

    first_reads = [rdA(0, 0), rdB(0, 0), rdA(0, 1)] + [rdB(0, nt) for nt in range(1, 10)]
    for rd in first_reads:
        E.lg(rd[0], rd[1])
        issueG[rd[0]] = -1
    cap = {G: [len(v), 0] for G, v in side.items()}
    q = [(rd[0], -1) for rd in first_reads]
    for G in range(400):
        kap, g = divmod(G, 20)
        need = {"A%d_%d" % (kap, g & 1), "B%d_%d" % (kap, g >> 1)}
        if any(t in need for t, _ in q):
            last = max(i for i, (t, gi) in enumerate(q) if t in need or gi <= G - 8)
            q = q[last + 1:]
            cap.setdefault(G - 1, [0, 0])[0] += 1
        q += [(t, G) for t in lgsched.get(G, [])]
        if G % 40 == 25:
            q = []
            cap[G][0] += 2
    cap[226][0] += 2

    def fits(G, kind):
        u = cap.setdefault(G, [0, 0])
        if kind == "dsw":
            return u[0] == 0
        return u[0] < 2 and not (kind == "valu" and u[1])

    def put(G, kind, fn):
        while not fits(G, kind):
            G += 1
        u = cap[G]
        u[0] += 2 if kind == "dsw" else 1
        u[1] += kind == "valu"
        if fn is not None:
            at(G, fn)
        return G

    GX, GW, GT = 200, 212, 224
    for k in range(3):
        put(70 + 40 * k, "vm", lambda k=k: E.vm("gw%d" % k, "buffer_load_dwordx4 %s, v%d, %s, 0 offen offset:%d" % (vr(GW + 4 * k, 4), 7 if k == 2 else 6, srd(ST0), 512 * k)))
        put(90 + 40 * k, "vm", lambda k=k: E.vm("gx%d" % k, "buffer_load_dwordx4 %s, v%d, %s, 0 offen offset:%d" % (vr(GX + 4 * k, 4), 5 if k == 2 else 4, srd(SX), 512 * k)))
    G = 0
    for k in range(12):
        if k % 4 == 0:
            G = put(max(G, 186 + 40 * (k // 4) - (40 if k == 0 else 0)), "wait", lambda k=k: E.wait(vm=("gw%d" % (k // 4), "gx%d" % (k // 4))))
        d = GT + 5 if k == 0 else GT
        seq = ["v_lshlrev_b32 v%d, 16, v%d" % (GT, GX + k), "v_and_b32 v%d, s%d, v%d" % (GT + 1, sT0, GX + k),
               "v_lshlrev_b32 v%d, 16, v%d" % (GT + 2, GW + k), "v_and_b32 v%d, s%d, v%d" % (GT + 3, sT0, GW + k),
               "v_mul_f32 v%d, v%d, v%d" % (GT, GT, GT + 2), "v_mul_f32 v%d, v%d, v%d" % (GT + 1, GT + 1, GT + 3),
               "v_cvt_pk_bf16_f32 v%d, v%d, v%d" % (GT + 2, GT, GT + 1),
               "v_lshlrev_b32 v%d, 16, v%d" % (d, GT + 2), "v_and_b32 v%d, s%d, v%d" % (d + 1, sT0, GT + 2)]
        if k:
            seq += ["v_add_f32 v%d, v%d, v%d" % (GT + 5, GT + 5, GT), "v_add_f32 v%d, v%d, v%d" % (GT + 6, GT + 6, GT + 1)]
        for t in seq:
            G = put(G, "valu", lambda t=t: E(t))
    a, b = GT, GT + 1
    seq = [(0, "v_add_f32 v%d, v%d, v%d" % (a, GT + 5, GT + 6))]
    seq += [(2, "v_add_f32_dpp v%d, v%d, v%d row_ror:%d row_mask:0xf bank_mask:0xf" % (a, a, a, sh)) for sh in (8, 4, 2, 1)]
    seq += [(0, "v_mov_b32 v%d, v%d" % (b, a)), (2, "v_permlane16_swap_b32 v%d, v%d" % (a, b)), (0, "v_add_f32 v%d, v%d, v%d" % (a, a, b)),
            (0, "v_cvt_pk_bf16_f32 v%d, v%d, v%d" % (a, a, a)), (0, "v_lshlrev_b32 v%d, 16, v%d" % (a, a)),
            (0, "v_mul_f32 v%d, 0x%x, v%d" % (a, LOG2E | 0x80000000, a)), (0, "v_exp_f32 v%d, v%d" % (a, a)),
            (0, "v_add_f32 v%d, 1.0, v%d" % (a, a)), (0, "v_rcp_f32 v%d, v%d" % (a, a)),
            (0, "v_cvt_pk_bf16_f32 v%d, v%d, v%d" % (a, a, a)), (0, "v_lshlrev_b32 v%d, 16, v%d" % (GT + 4, a)),
            (0, "v_sub_f32 v%d, 1.0, v%d" % (a, GT + 4)), (0, "v_cvt_pk_bf16_f32 v%d, v%d, v%d" % (a, a, a)),
            (0, "v_lshlrev_b32 v%d, 16, v%d" % (GT + 5, a)), (0, "v_mov_b32 v%d, v%d" % (GT + 6, vN)), (0, "v_mov_b32 v%d, v%d" % (GT + 7, vN + 1))]
    for dG, t in seq:
        G = put(G + dG, "valu", lambda t=t: E(t))
    G = put(G, "vm", lambda: E.vm("gpub", "buffer_store_dwordx4 %s, v%d, %s, 0 offen sc1" % (vr(GT + 4, 4), vG, srd(SWS))))
    assert 232 < G < 384, G

    def need_lg(tags, G):
        tags = [t for t in tags if E.outstanding_lg(t)]
        if not tags:
            return
        extra = [t for t in E.lgq if issueG.get(t, 1 << 30) <= G - 8]
        E.wait(lg=tags + extra)

    for kap in range(20):
        for nt in range(10):
            for mt in range(2):
                G = 20 * kap + 2 * nt + mt
                need_lg(["A%d_%d" % (kap, mt), "B%d_%d" % (kap, nt)], G)
                d = vr(acc(mt, nt), 4)
                E("v_mfma_f32_16x16x32_bf16 %s, %s, %s, %s" % (d, vr(AF + 8 * (kap & 1) + 4 * mt, 4), vr(BF + 4 * nt, 4), d if kap else "0"))
                for fn in side.pop(G, []):
                    fn()
    assert not side, sorted(side)
    stamp("gemm1")

    moved = set()

    def c_move(R, sig):
        if sig in moved:
            return
        moved.add(sig)
        R.wait(vm="c%d" % sig)
        si = CSI[CSLOT[sig]]
        for ks in range(2):
            for n in range(5):
                R.lg("cm%d" % sig, "ds_read_b128 %s, v%d offset:%d" % (cfrag(sig, ks, n), vRC + 3 * ks + si, 2048 * n))
                if isinstance(R, Rec) and n in (1, 4):
                    R.mark()

    def c_dma(R, sig):
        if sig >= 3:
            c_move(R, sig - 3)
            R.wait(lg="cm%d" % (sig - 3))
        emit_dma(R, "c%d" % sig, dma_c_ops(sig))

    E1 = 96
    E2 = 116
    EL = 120
    ET = 130
    ELO = 164
    E.wait(lg=["pa0"])
    E(".p2align 3")

    def scan_step(R, dre, dim, pre, pim, ure, uim, a, conj=False):
        R("v_pk_fma_f32 %s, %s, %s, %s %s" % (vr(dre, 2), vr(a, 2), vr(pre, 2), vr(ure, 2), BC_LO))
        R("v_pk_fma_f32 %s, %s, %s, %s %s" % (vr(dim, 2), vr(a, 2), vr(pim, 2), vr(uim, 2), BC_LO))
        R("v_pk_fma_f32 %s, %s, %s, %s %s %s" % (vr(dre, 2), vr(a, 2), vr(pim, 2), vr(dre, 2), BC_HI, "" if conj else NEG0))
        R("v_pk_fma_f32 %s, %s, %s, %s %s %s" % (vr(dim, 2), vr(a, 2), vr(pre, 2), vr(dim, 2), BC_HI, NEG0 if conj else ""))

    F = Rec()
    for n in range(5):
        a = PA + 4 * n
        e = E1 + 4 * n
        if n == 1:
            F.wait(lg=["pc4"])
        scan_step(F, e, e + 2, U(0, n, 0), U(1, n, 0), U(0, n, 1), U(1, n, 1), a)
        scan_step(F, E2, E2 + 2, e, e + 2, U(0, n, 2), U(1, n, 2), a)
        scan_step(F, e, e + 2, E2, E2 + 2, U(0, n, 3), U(1, n, 3), a)
        F("v_fma_f32 v%d, v%d, v%d, v%d" % (EL + 2 * n, a + 2, e, e + 1))
        F("v_fma_f32 v%d, v%d, v%d, v%d" % (EL + 2 * n + 1, a + 2, e + 2, e + 3))
        F("v_fma_f32 v%d, -v%d, v%d, v%d" % (EL + 2 * n, a + 3, e + 2, EL + 2 * n))
        F("v_fma_f32 v%d, v%d, v%d, v%d" % (EL + 2 * n + 1, a + 3, e, EL + 2 * n + 1))
        F.lg("etw", "ds_write_b64 v12, %s offset:%d" % (vr(EL + 2 * n, 2), 2304 * n))
    B = Rec()
    for k in plan[1]:
        c_dma(B, k)
    E.play(F, B)

    def elo(n):
        e = E1 + 4 * n
        c = PCF + 2 * n
        E("v_mul_f32 v%d, v%d, v%d" % (ELO + 2 * n, c, e))
        E("v_mul_f32 v%d, v%d, v%d" % (ELO + 2 * n + 1, c + 1, e))
        E("v_fma_f32 v%d, -v%d, v%d, v%d" % (ELO + 2 * n, c + 1, e + 2, ELO + 2 * n))
        E("v_fma_f32 v%d, -v%d, v%d, -v%d" % (ELO + 2 * n + 1, c, e + 2, ELO + 2 * n + 1))
    elo(0)
    elo(1)
    E.wait(lg="etw")
    E("s_barrier")
    E("s_mov_b64 exec, 0xfffff")
    for k in range(8):
        E.lg("etr%d" % k, "ds_read_b128 %s, v13 offset:%d" % (vr(ET + 2 + 4 * k, 4), 16 * k))
    E("s_mov_b64 exec, -1")
    elo(2)
    elo(3)
    elo(4)
    S0, S1 = 2, 4
    cur = ET + 2
    for j in range(1, 16):
        if j in (1, 4, 8):
            E.wait(lg="etr%d" % {1: 1, 4: 3, 8: 7}[j])
            E("s_nop 0")
        nxt = S0 if cur != S0 else S1
        E("v_pk_fma_f32 %s, %s, %s, %s %s" % (vr(nxt, 2), vr(vA8, 2), vr(cur, 2), vr(ET + 2 + 2 * j, 2), BC_LO))
        E("v_pk_fma_f32 %s, %s, %s, %s %s neg_lo:[0,1,0]" % (vr(nxt, 2), vr(vA8, 2), vr(cur, 2), vr(nxt, 2), BC_HI_SW))
        cur = nxt
    E("v_min_u32 v%d, -2, v%d" % (cur, cur))
    E("v_min_u32 v%d, -2, v%d" % (cur + 1, cur + 1))
    E.vm("epub", "buffer_store_dwordx2 %s, v%d, %s, 0 offen sc1" % (vr(cur, 2), vE, srd(SE)))
    stamp("epub")

    unpark(E, 14, 9)
    unpark(E, 15, 14)
    E("s_bfm_b64 s[%d:%d], s%d, 0" % (sT1, sT1 + 1, sI))
    E.vm("rchk", "buffer_load_dwordx2 v[126:127], v9, %s, 0 offen sc1" % srd(SWS))

    def scale_u(R, n):
        c = PCF + 2 * n
        for s in range(4):
            ur, ui = U(0, n, s), U(1, n, s)
            R("v_pk_mul_f32 v[2:3], %s, %s op_sel:[1,0] op_sel_hi:[1,1] neg_lo:[1,0] neg_hi:[1,0]" % (vr(c, 2), vr(ui, 2)))
            R("v_pk_mul_f32 %s, %s, %s op_sel_hi:[0,1] neg_lo:[1,0] neg_hi:[1,0]" % (vr(ui, 2), vr(c, 2), vr(ui, 2)))
            R("v_pk_fma_f32 %s, %s, %s, %s %s %s" % (vr(ui, 2), vr(c, 2), vr(ur, 2), vr(ui, 2), BC_HI, NEG0))
            R("v_pk_fma_f32 %s, %s, %s, v[2:3] %s" % (vr(ur, 2), vr(c, 2), vr(ur, 2), BC_LO))

    F = Rec()
    for n in range(5):
        scale_u(F, n)
    for j in range(15):
        r = ET + 2 + 2 * j
        F("v_pk_mul_f32 v[2:3], %s, %s op_sel_hi:[0,1] neg_hi:[1,0]" % (vr(vCO, 2), vr(r, 2)))
        F("v_pk_fma_f32 %s, %s, %s, v[2:3] %s %s" % (vr(r, 2), vr(vCO, 2), vr(r, 2), BC_HI_SW, NEG0))
    AD = 220
    LS = 174
    U2 = Rec()
    for k, v in ((0, 9), (1, 11), (2, 15), (3, 8), (16, vFA)):
        unpark(U2, k, v)
    for k in range(6):
        unpark(U2, 4 + k, AD + k)
    for k in range(3):
        unpark(U2, 11 + k, LS + k)
    unpark(U2, 10, LS + 3)
    B = Rec()
    for k in plan[2]:
        c_dma(B, k)
    E.play(F, B, lead=0, tail=early)
    E("s_mov_b32 s%d, 0" % sCNT)
    E.wait(vm="rchk")
    E.label("L_clr")
    E("v_cmp_ne_u64 vcc, v[126:127], %s" % vr(vN, 2))
    E("s_add_u32 s%d, s%d, 1" % (sCNT, sCNT))
    E("s_nop 0")
    E("s_and_b64 vcc, vcc, s[%d:%d]" % (sT1, sT1 + 1))
    E("s_cbranch_scc1 L_clr_slow")
    E.label("L_clr_ok")
    slow += ["L_clr_slow:", "s_cmp_gt_u32 s%d, %d" % (sCNT, SPIN), "s_cbranch_scc1 L_clr_ok", "s_sleep 2",
             "buffer_load_dwordx2 v[126:127], v9, %s, 0 offen sc1" % srd(SWS), "s_waitcnt vmcnt(0)", "s_branch L_clr"]
    PK = [96 + 2 * k for k in range(15)]
    E("s_mov_b32 s%d, 0" % sCNT)

    def e_loads():
        for k in range(15):
            so = ["0", "s%d" % sE1, "s%d" % sE2][k // 6]
            E.vm("ep", "buffer_load_dwordx2 %s, v14, %s, %s offen offset:%d sc1" % (vr(PK[k], 2), srd(SE), so, 640 * (k % 6)))
    stamp("winB")
    E("s_mov_b64 exec, 0xfffff")
    e_loads()
    E("s_mov_b64 exec, -1")
    E.play(U2)
    for k in range(max(plan[2]) + 1):
        c_move(E, k)
    E("s_mov_b64 exec, 0xfffff")
    E("s_branch L_ep_chk")
    E.label("L_ep")
    e_loads()
    E.label("L_ep_chk")
    E.wait_all(vm=True)
    regs = [r for p in PK for r in (p, p + 1)]
    E("v_max3_u32 v2, v%d, v%d, v%d" % tuple(regs[:3]))
    for k in range(3, 29, 2):
        E("v_max3_u32 v2, v2, v%d, v%d" % (regs[k], regs[k + 1]))
    E("v_max_u32 v2, v2, v%d" % regs[29])
    E("v_cmp_eq_u32 vcc, -1, v2")
    E("s_add_u32 s%d, s%d, 1" % (sCNT, sCNT))
    E("s_cbranch_vccz L_ep_ok")
    E("s_cmp_gt_u32 s%d, %d" % (sCNT, SPIN))
    E("s_cbranch_scc0 L_ep")
    E.label("L_ep_ok")
    stamp("earr")

    XP, GR, DS, DU = 226, 160, 148, 44
    gload = "buffer_load_dwordx4 %s, v%d, %s, 0 offen sc1" % (vr(GR, 4), LS + 3, srd(SWS))

    def small_loads():
        E.vm("gl", gload)
        L = E
        for pi in range(3):
            L.vm("ds", "buffer_load_dwordx2 %s, v%d, %s, 0 offen" % (vr(DS + 4 * pi, 2), AD + pi, srd(ST1)))
            L.vm("ds", "buffer_load_dwordx2 %s, v%d, %s, 0 offen" % (vr(DS + 4 * pi + 2, 2), AD + pi, srd(ST2)))
            for s in range(2):
                L.vm("xp", "buffer_load_dwordx2 %s, v%d, %s, s%d offen" % (vr(XP + 6 * s + 2 * pi, 2), AD + 3 + pi, srd(SX), sTO + 4 + 2 * s))

    E(".p2align 3")
    for k in range(13, -1, -1):
        E("v_pk_fma_f32 %s, %s, %s, %s %s" % (vr(PK[k], 2), vr(vA128, 2), vr(PK[k + 1], 2), vr(PK[k], 2), BC_LO))
        E("v_pk_fma_f32 %s, %s, %s, %s %s neg_lo:[0,1,0]" % (vr(PK[k], 2), vr(vA128, 2), vr(PK[k + 1], 2), vr(PK[k], 2), BC_HI_SW))
    E("v_pk_mul_f32 v[2:3], %s, %s op_sel_hi:[0,1] neg_hi:[1,0]" % (vr(vCO, 2), vr(PK[0], 2)))
    E("v_pk_fma_f32 %s, %s, %s, v[2:3] %s %s" % (vr(ET, 2), vr(vCO, 2), vr(PK[0], 2), BC_HI_SW, NEG0))
    for j in range(15):
        t, r = ET + 2 * j, ET + 2 + 2 * j
        E("v_pk_fma_f32 %s, %s, %s, %s %s" % (vr(r, 2), vr(vA8, 2), vr(t, 2), vr(r, 2), BC_LO))
        E("v_pk_fma_f32 %s, %s, %s, %s %s neg_hi:[1,0,0]" % (vr(r, 2), vr(vA8, 2), vr(t, 2), vr(r, 2), BC_HI_SW))
        if j & 1 == 0:
            k = j >> 1
            E.lg("ttw", "ds_write_b128 v13, %s offset:%d" % (vr(ET + 4 * k, 4), (TTAB - ETAB) + 16 * k))
    E("s_mov_b64 exec, -1")
    if lpos == 0:
        small_loads()
    for k in plan[3]:
        c_dma(E, k)
    stamp("tchain", 2)
    E.wait(lg="ttw")
    E("s_barrier")
    stamp("tbar", 2)
    Q = 96
    DV = 116
    TRV = 132
    for n in range(5):
        E.lg("ttr%d" % n, "ds_read_b64 %s, v12 offset:%d" % (vr(Q + 4 * n, 2), (TTAB - ETAB) + 2304 * n))

    def h_store(n):
        E.wait(lg="tr%d" % n)
        E("s_nop 0")
        for mp in range(2):
            E.vm("hst", "buffer_store_dwordx4 %s, v8, %s, s%d offen offset:%d %s" % (vr(TRV + 8 * (n & 1) + 4 * mp, 4), srd(SWS), sHB0 + mp, 512 * n, hflag))

    E(".p2align 3")
    for n in range(5):
        a = PA + 4 * n
        q = Q + 4 * n
        if not E.wait(lg="ttr%d" % (0 if n == 0 else 4)):
            E("s_nop 0")
        E("v_mov_b32 v%d, v%d" % (q + 2, q + 1))
        E("v_fma_f32 v%d, v%d, v%d, v%d" % (q + 3, a + 2, q + 1, ELO + 2 * n + 1))
        E("v_fma_f32 v%d, v%d, v%d, v%d" % (q + 1, a + 2, q, ELO + 2 * n))
        E("v_fma_f32 v%d, -v%d, v%d, v%d" % (q + 3, a + 3, q, q + 3))
        E("v_fma_f32 v%d, v%d, v%d, v%d" % (q + 1, a + 3, q + 2, q + 1))
        pre, pim = q, q + 2
        for s in range(4):
            scan_step(E, U(0, n, s), U(1, n, s), pre, pim, U(0, n, s), U(1, n, s), a, conj=True)
            pre, pim = U(0, n, s), U(1, n, s)
            if s == 1 and n:
                h_store(n - 1)
        dv = DV + 8 * (n & 1)
        for kind in range(2):
            for h in range(2):
                E("v_cvt_pk_bf16_f32 v%d, v%d, v%d" % (dv + 4 * kind + 2 * h, U(kind, n, 0) + h, U(kind, n, 1) + h))
                E("v_cvt_pk_bf16_f32 v%d, v%d, v%d" % (dv + 4 * kind + 2 * h + 1, U(kind, n, 2) + h, U(kind, n, 3) + h))
            E.lg("trw", "ds_write_b128 v9, %s offset:%d" % (vr(dv + 4 * kind, 4), 1024 * kind))
        for mp in range(2):
            for half in range(2):
                E.lg("tr%d" % n, "ds_read_b64_tr_b16 %s, v%d offset:%d" % (vr(TRV + 8 * (n & 1) + 4 * mp + 2 * half, 2), 11 if (mp ^ half) == 0 else 15, 256 * half))
    h_store(4)
    stamp("hst")

    E("s_mov_b32 s%d, 0" % sCNT)
    E.wait(vm="gl")
    E.label("L_g")
    E("v_cmp_ne_u64 vcc, %s, %s" % (vr(GR + 2, 2), vr(vN, 2)))
    E("s_add_u32 s%d, s%d, 1" % (sCNT, sCNT))
    E("s_cbranch_vccnz L_g_slow")
    E.label("L_g_ok")
    slow += ["L_g_slow:", "s_cmp_gt_u32 s%d, %d" % (sCNT, SPIN), "s_cbranch_scc1 L_g_ok", "s_sleep 2", gload, "s_waitcnt vmcnt(0)", "s_branch L_g"]
    E("s_bitcmp1_b32 s2, 0")
    E("s_cselect_b64 vcc, -1, 0")
    E("s_mov_b32 s%d, 0xffff0000" % sT0)
    E("v_cndmask_b32 v8, v%d, v%d, vcc" % (GR, GR + 1))
    E("v_cndmask_b32 v9, v%d, v%d, vcc" % (GR + 1, GR))
    F = Rec()
    for s in range(4):
        for pi in range(3):
            d = GS[3 * s + pi] if s < 2 else GO[3 * (s - 2) + pi]
            F.lg("gp", "ds_bpermute_b32 v%d, v%d, v8 offset:%d" % (d, LS + pi, 32 * s))
            if s >= 2:
                F.lg("gp", "ds_bpermute_b32 v%d, v%d, v9 offset:%d" % (d + 1, LS + pi, 32 * s))
    F.wait(vm=("ds", "xp"))
    for k in range(12):
        F("v_lshlrev_b32 v%d, 16, v%d" % (DU + 2 * k, DS + k))
        F("v_and_b32 v%d, s%d, v%d" % (DU + 1 + 2 * k, sT0, DS + k))
    for pi in range(3):
        F("v_add_u32 v%d, 40960, v%d" % (vPR[1][pi], vPR[0][pi]))
    F("v_and_b32 v2, 31, v%d" % vL)
    F("v_lshlrev_b32 v%d, 4, v2" % vXL[2])
    for k in range(4):
        F("s_mov_b32 s%d, 0x%x" % (sSEL + k, 0x07060500 + k))
    F("s_mov_b32 s68, 0x0c0c0400")
    F("s_mov_b32 s69, 0x04000c0c")
    F.wait(lg="gp")
    for s in range(2):
        for pi in range(3):
            x = XP + 6 * s + 2 * pi
            g = GO[3 * s + pi]
            sk = SKIP + 12 * s + 4 * pi
            for h in range(2):
                F("v_lshlrev_b32 v2, 16, v%d" % (x + h))
                F("v_and_b32 v3, s%d, v%d" % (sT0, x + h))
                F("v_pk_mul_f32 v[4:5], v[2:3], %s" % vr(DU + 8 * pi + 2 * h, 2))
                F("v_pk_mul_f32 v[6:7], v[2:3], %s" % vr(DU + 8 * pi + 4 + 2 * h, 2))
                F("v_cvt_pk_bf16_f32 v4, v4, v5")
                F("v_cvt_pk_bf16_f32 v6, v6, v7")
                F("v_and_b32 v5, s%d, v4" % sT0)
                F("v_lshlrev_b32 v4, 16, v4")
                F("v_and_b32 v7, s%d, v6" % sT0)
                F("v_lshlrev_b32 v6, 16, v6")
                F("v_pk_mul_f32 %s, %s, v[4:5] op_sel_hi:[0,1]" % (vr(sk + 2 * h, 2), vr(g, 2)))
                F("v_pk_fma_f32 %s, %s, v[6:7], %s %s" % (vr(sk + 2 * h, 2), vr(g, 2), vr(sk + 2 * h, 2), BC_HI))

    B = Rec()
    for k in plan[4]:
        c_dma(B, k)
    E.play(F, B, lead=dlead)
    stamp("dsetup", 2)
    E.wait(vm="hst")
    E("s_barrier")
    E.vm("flag", "buffer_store_dwordx2 %s, v%d, %s, 0 offen sc1" % (vr(vN, 2), vF, srd(SWS)))
    stamp("flag")

    if lpos == 1:
        small_loads()
    for k in plan[5]:
        c_dma(E, k)
    for k in range(5):
        c_move(E, k)
    def h_load(u, k):
        E.vm("h%d_%d" % (u, k), "buffer_load_dwordx4 %s, v%d, %s, s%d offen offset:%d sc1" % (vr(HBUF + 4 * (10 * (u & 1) + k), 4), vHL, srd(SWS), sH + (k >> 1), 1024 * (k & 1)))

    stamp("winE")
    E("s_cmp_lg_u32 s%d, 0" % sW)
    E("s_cbranch_scc1 L_f_done")
    E("s_mov_b32 s%d, 0" % sCNT)
    E("s_mov_b64 exec, 0x1ffff")
    E.label("L_f")
    E("buffer_load_dwordx2 v[16:17], v%d, %s, 0 offen sc1" % (vFA, srd(SWS)))
    E("s_waitcnt vmcnt(0)")
    E("v_cmp_ne_u64 vcc, v[16:17], %s" % vr(vN, 2))
    E("s_add_u32 s%d, s%d, 1" % (sCNT, sCNT))
    E("s_cbranch_vccz L_f_ok")
    E("s_cmp_gt_u32 s%d, %d" % (sCNT, SPIN))
    E("s_cbranch_scc0 L_f")
    E.label("L_f_ok")
    E("s_mov_b64 exec, -1")
    E.label("L_f_done")
    E("s_barrier")
    stamp("prod")

    for k in range(10):
        h_load(0, k)
    E("v_add_u32 v%d, s%d, v%d" % (vHL, sTO + 1, vHB))
    for k in range(10):
        h_load(1, k)
    E("v_add_u32 v%d, s%d, v%d" % (vHL, sTO + 2, vHB))
    E("s_mov_b32 s%d, 0" % sCNT)
    side = {}
    cap.clear()

    def hwait(u, k):
        return u < 2 or k % 2 == 0

    for u in range(8):
        for k in range(10):
            if hwait(u, k) and (u or k):
                put(50 * u + 5 * k - 1, "wait", None)
    for u in range(6):
        for k in range(10):
            G = put(50 * u + 5 * k + 4, "vm", lambda u=u, k=k: h_load(u + 2, k))
        if u < 5:
            put(G, "valu", lambda u=u: E("v_add_u32 v%d, s%d, v%d" % (vHL, sTO + u + 3, vHB)))

    def red_write(u, n):
        E.lg("pw%d" % u, "ds_write_b128 v%d, %s offset:%d" % (vPW, vr(ACC2 + 20 * (u & 1) + 4 * n, 4), 40960 * ((u >> 1) & 1) + 5120 * (u & 1) + 64 * n))

    def red_read(s, pi, w):
        E.lg("pr%d_%d" % (s, pi), "ds_read_b128 %s, v%d offset:%d" % (vr(PART[pi if s == 3 else pi & 1] + 4 * w, 4), vPR[s & 1][pi], 10240 * w))

    def x_loads(s):
        return ["buffer_load_dwordx4 %s, v%d, %s, s%d offen offset:%d sc1" % (vr(XD[s] + 4 * pi, 4), vXL[pi], srd(SWS), sXR + s, 1024 * pi) for pi in range(3)]

    def x_check(s):
        ins = []
        for pi in range(3):
            r = XD[s] + 4 * pi
            ins += ["v_perm_b32 v14, v%d, v%d, s68" % (r + 1, r), "v_perm_b32 v15, v%d, v%d, s69" % (r + 3, r + 2),
                    "v_bitop3_b32 v%d, v14, v15, v%d bitop3:0x56" % (153 + pi, vN)]
        ins += ["v_or3_b32 v15, v153, v154, v155", "v_cmp_ne_u32 vcc, 0, v15"]
        slow.extend(["L_x%d_slow:" % s, "s_add_u32 s%d, s%d, 1" % (sCNT, sCNT), "s_cmp_gt_u32 s%d, %d" % (sCNT, SPIN), "s_cbranch_scc1 L_x%d_ok" % s]
                    + x_loads(s) + ["s_waitcnt vmcnt(0)"] + ins + ["s_nop 0", "s_cbranch_vccnz L_x%d_slow" % s, "s_branch L_x%d_ok" % s])
        return ins

    def x_branch(s):
        E("s_cbranch_vccnz L_x%d_slow" % s)
        E.label("L_x%d_ok" % s)

    lastw = {}
    for u in range(7):
        G = 50 * (u + 1) + 3
        for n in range(5):
            G = put(G, "dsw", lambda u=u, n=n: red_write(u, n))
            lastw[u] = G
            G += 4
    for s in range(2):
        G = gxd[s]
        for t in x_loads(s):
            G = put(G, "vm", lambda t=t, s=s: E.vm("xd%d" % s, t)) + 1
    G = put(gxd[0] + 45, "wait", lambda: E.wait(vm="xd0"))
    for t in x_check(0):
        G = put(G, "valu", lambda t=t: E(t))
    G = put(G + 1, "wait", lambda: x_branch(0))
    xok = G
    prev_end = 0
    for s in range(3):
        def bar(s=s):
            E.wait(lg="pw%d" % (2 * s + 1))
            E("s_barrier")
        G = put(max(lastw[2 * s + 1] + 6, prev_end), "dsw", bar)
        for pi in range(2):
            for w in range(4):
                G = put(G + 1, "ds", lambda w=w, pi=pi, s=s: red_read(s, pi, w))
        G -= 0
        for pi in range(3):
            p = PART[pi & 1]
            G = put(G + (2 if pi == 0 else 0), "wait", lambda pi=pi, s=s: E.wait(lg="pr%d_%d" % (s, pi)))
            seq = ["v_add_f32 v%d, v%d, v%d" % (p + h, p + h, p + 4 + h) for h in range(4)]
            seq += ["v_add_f32 v%d, v%d, v%d" % (p + 8 + h, p + 8 + h, p + 12 + h) for h in range(4)]
            seq += ["v_add_f32 v%d, v%d, v%d" % (p + h, p + h, p + 8 + h) for h in range(4)]
            if s < 2:
                seq += ["v_mul_f32 v%d, v%d, v%d" % (p + 4 + h, GS[3 * s + pi], p + h) for h in range(4)]
                seq += ["v_perm_b32 v%d, v%d, v%d, s%d" % (p + 4 + h, p + 4 + h, vN, sSEL + h) for h in range(4)]
                st = "buffer_store_dwordx4 %s, v%d, %s, s%d offen offset:%d %s" % (vr(p + 4, 4), vXA[pi], srd(SWS), sXW + s, 1024 * pi, xflag2)
            else:
                sk = SKIP + 4 * pi
                seq += ["v_fmac_f32 v%d, v%d, v%d" % (sk + h, GO[pi], p + h) for h in range(4)]
                seq += ["v_add_f32 v%d, v%d, v%d" % (sk + h, sk + h, XD[0] + 4 * pi + h) for h in range(4)]
                st = "buffer_store_dwordx4 %s, v%d, %s, s%d offen %s" % (vr(sk, 4), vO[pi], srd(SOUT), sO, outflag)
                G = max(G, xok)
            for t in seq:
                G = put(G, "valu2" if s in v2 else "valu", lambda t=t: E(t))
            if not (nox and s < 2):
                G = put(G, "vm", lambda st=st: E.vm("out", st))
            if pi == 0:
                G2 = G
                for w in range(4):
                    G2 = put(G2 + 1, "ds", lambda w=w, s=s: red_read(s, 2, w))
        prev_end = G
    for u in range(8):
        A = ACC2 + 20 * (u & 1)
        for k in range(10):
            if hwait(u, k):
                last = k if (k == 9 or hwait(u, k + 1)) else k + 1
                E.wait(vm=["h%d_%d" % (u, k), "h%d_%d" % (u, last)], lg=["cm%d" % j for j in range(5)])
            if k == 0:
                stamp("t%d" % u, 2)
            for n in range(5):
                G = 50 * u + 5 * k + n
                d = vr(A + 4 * n, 4)
                E("v_mfma_f32_16x16x32_bf16 %s, %s, %s, %s" % (d, cfrag(k >> 1, k & 1, n), vr(HBUF + 4 * (10 * (u & 1) + k), 4), d if k else "0"))
                for fn in side.pop(G, []):
                    fn()
    stamp("gemm2")
    left = [fn for G in sorted(side) for fn in side[G]]
    if len(left) < 4:
        E("s_nop 3")
    for n in range(5):
        for fn in left[:4]:
            fn()
        del left[:4]
        if n == 4 and not left:
            E("s_nop 3")
        red_write(7, n)
    for fn in left:
        fn()
    E.wait(vm="xd1")
    for t in x_check(1):
        E(t)
    E.wait(lg="pw7")
    E("s_barrier")
    for pi in range(3):
        for w in range(4):
            red_read(3, pi, w)
    x_branch(1)
    for pi in range(3):
        sk = SKIP + 12 + 4 * pi
        p = PART[pi]
        g = GO[3 + pi]
        for h in range(2):
            E("v_pk_add_f32 %s, %s, %s" % (vr(sk + 2 * h, 2), vr(sk + 2 * h, 2), vr(XD[1] + 4 * pi + 2 * h, 2)))
        E.wait(lg="pr3_%d" % pi)
        for h in range(2):
            E("v_pk_add_f32 %s, %s, %s" % (vr(p + 2 * h, 2), vr(p + 2 * h, 2), vr(p + 4 + 2 * h, 2)))
            E("v_pk_add_f32 %s, %s, %s" % (vr(p + 8 + 2 * h, 2), vr(p + 8 + 2 * h, 2), vr(p + 12 + 2 * h, 2)))
        for h in range(2):
            E("v_pk_add_f32 %s, %s, %s" % (vr(p + 2 * h, 2), vr(p + 2 * h, 2), vr(p + 8 + 2 * h, 2)))
        for h in range(2):
            E("v_pk_fma_f32 %s, %s, %s, %s %s" % (vr(sk + 2 * h, 2), vr(g, 2), vr(p + 2 * h, 2), vr(sk + 2 * h, 2), BC_LO))
        E.vm("out", "buffer_store_dwordx4 %s, v%d, %s, s%d offen %s" % (vr(sk, 4), vO[pi], srd(SOUT), sO + 1, lastflag))
    if stamps:
        stamp("fin")
        E.wait_all(vm=True)
        stamp("drain")
        E("s_memrealtime s[100:101]")
        E("s_waitcnt lgkmcnt(0)")
        E("s_mov_b32 s%d, s100" % (sSTAMP + 16))
        E("s_lshl_b32 s%d, s2, 2" % sT0)
        E("s_add_u32 s%d, s%d, s%d" % (sT0, sT0, sW))
        E("s_lshl_b32 s%d, s%d, 7" % (sT0, sT0))
        E("s_add_u32 s%d, s%d, %d" % (sT0, sT0, ST_OFF))
        E("v_mov_b32 v2, 0")
        for k in range(18):
            E("v_mov_b32 v3, s%d" % (sSTAMP + k))
            E("buffer_store_dword v3, v2, %s, s%d offen offset:%d sc1" % (srd(SWS), sT0, 4 * k))
        E("buffer_store_dword v253, v2, %s, s%d offen offset:72 sc1" % (srd(SWS), sT0))
        E("buffer_store_dword v254, v2, %s, s%d offen offset:76 sc1" % (srd(SWS), sT0))
        E("s_waitcnt vmcnt(0)")
    E.label("L_end")
    E("s_endpgm")
    for t in slow:
        E(t)
    E.label("L_last")
    body = E.text()
    if stamps:
        body = "; STAMPS " + " ".join(names) + "\n" + body
    probs = check_hazards(body)
    assert not probs, "hazards"
    return body


HEADER = open("gated_mix__ssm_conv_s5__ssm_conv_s5__prompt.s.ref").read()


def full_file(**kw):
    body = generate(**kw)
    head = HEADER[:HEADER.index("; Override launch geometry")]
    out = head
    out += "; Generated by a hand-written scheduler script (fused two-phase kernel, one workgroup per CU).\n"
    out += "; @launch grid=(256,1,1) block=(256,1,1) lds=163840\n"
    out += '.amdgcn_target "amdgcn-amd-amdhsa--gfx950"\n.text\n.globl %s\n.p2align 8\n.type %s,@function\n%s:\n' % (KNAME, KNAME, KNAME)
    out += body + "\ns_endpgm\n"
    out += """.section .rodata,"a"
.p2align 6
.amdhsa_kernel %s
  .amdhsa_next_free_vgpr 512
  .amdhsa_next_free_sgpr 102
  .amdhsa_accum_offset 256
  .amdhsa_group_segment_fixed_size 0
  .amdhsa_kernarg_size 176
  .amdhsa_user_sgpr_count 2
  .amdhsa_user_sgpr_kernarg_segment_ptr 1
  .amdhsa_system_sgpr_workgroup_id_x 1
  .amdhsa_float_denorm_mode_32 3
.end_amdhsa_kernel
""" % KNAME
    return out


if __name__ == "__main__":
    import ast
    kw = {}
    path = sys.argv[1]
    for a in sys.argv[2:]:
        k, v = a.split("=", 1)
        try:
            kw[k] = ast.literal_eval(v)
        except Exception:
            kw[k] = v
    open(path, "w").write(full_file(**kw))
    print("wrote", path)
```

```python
import sys
from asmlib import Emitter, Rec, check_hazards

KNAME = "gated_mix__ssm_conv_s5__ssm_conv_s5__prompt_kernel"

MAT = 128 * 40 * 512
E_OFF = 4 * MAT
G_OFF = E_OFF + 16 * 16 * 640
F_OFF = G_OFF + 2048 * 16
R_OFF = F_OFF + 256 * 128
N_OFF = R_OFF + 256 * 128
X_OFF = N_OFF + 128
ST_OFF = X_OFF + 256 * 24576
TAGK = 0x9E3779B9
OOB = 0x7FF00000
SLOT = 40960
ETAB = SLOT
TTAB = SLOT + 11520
TRS = SLOT + 23040
PTAB = SLOT + 36864
RED = SLOT
SPIN = 1 << 16

SX, SB, SC, SWS, SE, SDBG, SOUT, ST0, ST1, ST2 = 4, 8, 12, 16, 20, 24, 28, 32, 36, 40
sW = 3
sI, sJ, sDT = 88, 89, 91
sM0X, sM0B, sM0C = 92, 93, 94
sK, sKC = 95, 96
sT0, sT1, sT2 = 97, 98, 99
sCNT = 100
sR2 = 101
sH = 44
sXW, sXR = 49, 51
sRD = 53
sSEL = 54
sHB0, sHB1 = 54, 55
sE1, sE2 = 56, 57
sTO = 58
sO = 66
sSTAMP = 70


def srd(r):
    return "s[%d:%d]" % (r, r + 3)


def vr(r, n=1):
    return "v%d" % r if n == 1 else "v[%d:%d]" % (r, r + n - 1)


def ar(r, n=1):
    return "a%d" % r if n == 1 else "a[%d:%d]" % (r, r + n - 1)


vL = 1
ACC = 16
HBUF = 16
BF = 96
AF = 136
vRA, vRB, vDX = 156, 164, 172
vDB = 248
vPC = 238
vRC = 180
vN = 186
vTW, vTD = 176, 177
vXA = (178, 178, 179)
vXL = (178, 178, 152)
vHL, vPW = 190, 191
vPR = ((192, 193, 189), (148, 149, 150))
vO = (194, 195, 188)
vFA = 255
PARK = 200
vE, vG, vF, vHB = 196, 197, 198, 199
PA, PCF = 200, 220
SKIP = 200
GS = (224, 225, 248, 249, 250, 251)
GO = (136, 138, 140, 142, 144, 146)
vA8, vA128, vCO = 232, 234, 236
ACC2 = 96
PART = (232, 156, 32)
XD = (2, 16)


def acc(mt, nt):
    return ACC + (mt * 10 + nt) * 4


def U(kind, n, s):
    return acc(s >> 1, n + 5 * kind) + 2 * (s & 1)


def cfrag(sig, ks, n):
    return ar(40 * sig + 4 * (ks * 5 + n), 4)


CSLOT = {0: 2, 1: 3, 2: 0, 3: 2, 4: 3}
CSI = {0: 0, 2: 1, 3: 2}

BC_LO = "op_sel_hi:[0,1,1]"
BC_HI = "op_sel:[1,0,0] op_sel_hi:[1,1,1]"
BC_HI_SW = "op_sel:[1,1,0] op_sel_hi:[1,0,1]"
NEG0 = "neg_lo:[1,0,0] neg_hi:[1,0,0]"
LOG2E = 0x3FB8AA3B
LOG2E_LO = 0x32A5705F
LN2 = 0x3F317218


def generate(rot1=(1, 3), rot2=(1, 1, 1), stamps=False, outflag="sc1", lastflag="sc1", dmaflag="", cflag="",
             fine=(), npro=2, plan=((0,), (), (1,), (), (2,), (3, 4)), hflag="sc1", pf=1, xflag=None, gxd=(300, 340), w64=1, vmx=1, early=0, lpos=0, v2=(1,), xflag2='sc1', nox=0, dlead=0, wsbase=0):
    E = Emitter()
    names = []

    def stamp(name="", lvl=1):
        if stamps and (lvl == 1 or name in fine):
            k = len(names)
            names.append(name)
            assert k < 15
            E("s_memtime s[%d:%d]" % (sT1, sT1 + 1))
            E.wait_all(lg=True)
            E("s_mov_b32 s%d, s%d" % (sSTAMP + k, sT1))

    def estamp(k):
        if stamps:
            E("s_memtime s[%d:%d]" % (sT1, sT1 + 1))
            E("s_waitcnt lgkmcnt(0)")
            E("v_mov_b32 v%d, s%d" % (253 + k, sT1))

    def cmul(dst, x, y):
        E("v_pk_mul_f32 %s, %s, %s op_sel_hi:[0,1]" % (vr(dst, 2), vr(x, 2), vr(y, 2)))
        E("v_pk_fma_f32 %s, %s, %s, %s %s neg_lo:[0,1,0]" % (vr(dst, 2), vr(x, 2), vr(y, 2), vr(dst, 2), BC_HI_SW))

    def mod10(r, t):
        E("s_mul_i32 s%d, s%d, 6554" % (t, r))
        E("s_lshr_b32 s%d, s%d, 16" % (t, t))
        E("s_mul_i32 s%d, s%d, 10" % (t, t))
        E("s_sub_u32 s%d, s%d, s%d" % (r, r, t))

    E("s_cmp_ge_u32 s2, 256")
    E("s_cbranch_scc1 L_end")
    E("s_load_dwordx16 s[44:59], s[0:1], 0")
    E("s_load_dwordx16 s[60:75], s[0:1], 64")
    E("s_load_dwordx8 s[76:83], s[0:1], 128")
    E("s_load_dwordx4 s[84:87], s[0:1], 160")
    if stamps:
        E("s_memrealtime s[16:17]")
        E("s_memtime s[18:19]")
    E("s_getpc_b64 s[98:99]")
    E.label("L_pc")
    E.c("pull this kernel's own code into L2 while the first tiles are fetched (1 KB per workgroup)")
    E("s_lshr_b32 s%d, s2, 3" % sKC)
    E("v_min_u32 v2, 7, v0")
    E("v_lshl_add_u32 v2, s%d, 3, v2" % sKC)
    E("v_lshlrev_b32 v2, 7, v2")
    E("v_min_u32 v2, L_last-L_pc, v2")
    if pf:
        E.vm("pf", "global_load_dword v255, v2, s[98:99]")
    E("v_lshrrev_b32 v4, 6, v0")
    E("v_and_b32 v%d, 63, v0" % vL)
    E("v_readfirstlane_b32 s%d, v4" % sW)
    E("s_and_b32 s%d, s2, 7" % sR2)
    E("s_and_b32 s%d, s%d, 1" % (sI, sR2))
    E("s_lshl_b32 s%d, s%d, 3" % (sI, sI))
    E("s_and_b32 s%d, s%d, 7" % (sDT, sKC))
    E("s_add_u32 s%d, s%d, s%d" % (sI, sI, sDT))
    E("s_lshr_b32 s%d, s%d, 1" % (sJ, sR2))
    E("s_lshl_b32 s%d, s%d, 2" % (sJ, sJ))
    E("s_lshr_b32 s%d, s%d, 3" % (sK, sKC))
    E("s_add_u32 s%d, s%d, s%d" % (sJ, sJ, sK))
    if rot1 == (0, 0):
        E("s_mov_b32 s%d, 0" % sK)
    else:
        E("s_mul_i32 s%d, s%d, %d" % (sK, sI, rot1[0]))
        E("s_mul_i32 s%d, s%d, %d" % (sT0, sJ, rot1[1]))
        E("s_add_u32 s%d, s%d, s%d" % (sK, sK, sT0))
        mod10(sK, sT0)
        E("s_lshl_b32 s%d, s%d, 7" % (sK, sK))
    E("s_lshl_b32 s%d, s%d, 12" % (sM0X, sW))
    E("s_mul_i32 s%d, s%d, 5120" % (sM0B, sW))
    E("s_add_u32 s%d, s%d, 16384" % (sM0B, sM0B))
    E("s_mul_i32 s%d, s%d, 10240" % (sM0C, sW))
    E("v_lshrrev_b32 v4, 4, v%d" % vL)
    E("v_and_b32 v5, 7, v%d" % vL)
    E("v_xor_b32 v5, v5, v4")
    E("v_lshlrev_b32 v5, 4, v5")
    E("v_lshrrev_b32 v6, 5, v%d" % vL)
    E("v_lshlrev_b32 v6, 3, v6")
    E("v_bfe_u32 v8, v%d, 3, 1" % vL)
    E("v_lshl_add_u32 v6, v8, 2, v6")
    E("v_and_b32 v8, 1, v4")
    E("v_add_u32 v6, v6, v8")
    E("s_lshl_b32 s%d, s%d, 7" % (sT0, sI))
    E("s_lshl_b32 s%d, s%d, 5" % (sT1, sW))
    E("s_add_u32 s%d, s%d, s%d" % (sT0, sT0, sT1))
    E("v_add_u32 v6, s%d, v6" % sT0)
    E("v_mul_u32_u24 v6, 1280, v6")
    E("v_add_u32 v%d, v6, v5" % (vDX + 0))
    E("v_xor_b32 v6, 64, v%d" % (vDX + 0))
    E("v_add_u32 v%d, %d, v6" % (vDX + 1, 16 * 1280 - 1024))
    E("v_add_u32 v%d, %d, v%d" % (vDX + 2, 2 * 1280 - 2048, vDX + 0))
    E("v_add_u32 v%d, %d, v6" % (vDX + 3, 18 * 1280 - 3072))
    E("v_lshrrev_b32 v7, 3, v%d" % vL)
    E("v_mul_u32_u24 v7, 1280, v7")
    E("v_add_u32 v7, v7, v5")
    E("s_and_b32 s%d, s%d, 7" % (sT0, sJ))
    E("s_mul_i32 s%d, s%d, 80" % (sT0, sT0))
    E("s_and_b32 s%d, s%d, 1" % (sT1, sW))
    E("s_mul_i32 s%d, s%d, 40" % (sT2, sT1))
    E("s_add_u32 s%d, s%d, s%d" % (sT2, sT2, sT0))
    E("s_mul_i32 s%d, s%d, 1280" % (sT2, sT2))
    E("s_lshl_b32 s%d, s%d, 6" % (sT1, sT1))
    E("v_xor_b32 v8, s%d, v7" % sT1)
    E("v_add_u32 v%d, s%d, v8" % (vDB + 0, sT2))
    E("v_xor_b32 v8, 64, v%d" % (vDB + 0))
    E("v_add_u32 v%d, %d, v8" % (vDB + 1, 8 * 1280 - 1024))
    E("v_add_u32 v%d, %d, v%d" % (vDB + 2, 16 * 1280 - 2048, vDB + 0))
    E("v_add_u32 v%d, %d, v8" % (vDB + 3, 24 * 1280 - 3072))
    E("v_add_u32 v%d, %d, v%d" % (vDB + 4, 32 * 1280, vDB + 0))
    E("s_mul_i32 s%d, s%d, 20" % (sT1, sW))
    E("v_add_u32 v10, s%d, v%d" % (sT1, vL))
    E("v_add_u32 v9, s%d, v10" % sT0)
    E("v_lshlrev_b32 v9, 1, v9")
    E("s_waitcnt lgkmcnt(0)")
    estamp(0)
    if stamps:
        E("s_mov_b32 s62, s16")
        E("s_mov_b32 s63, s18")
    E("s_mov_b32 s%d, s44" % SX)
    E("s_mov_b32 s%d, s45" % (SX + 1))
    E("s_mov_b32 s%d, %d" % (SX + 2, 2048 * 1280))
    E("s_mov_b32 s%d, 0x20000" % (SX + 3))
    E("s_cmp_ge_u32 s%d, 8" % sJ)
    E("s_cselect_b64 s[50:51], s[68:69], s[50:51]")
    E("s_cselect_b64 s[52:53], s[70:71], s[52:53]")
    E("s_cselect_b64 s[%d:%d], s[64:65], s[46:47]" % (ST0, ST0 + 1))
    E("s_cselect_b64 s[%d:%d], s[66:67], s[48:49]" % (ST1, ST1 + 1))
    E("s_cselect_b64 s[%d:%d], s[76:77], s[58:59]" % (ST2, ST2 + 1))
    E("s_cmp_ge_u32 s%d, 2" % sW)
    E("s_cselect_b64 s[%d:%d], s[52:53], s[50:51]" % (SB, SB + 1))
    E("s_mov_b32 s%d, %d" % (SB + 2, 640 * 1280))
    E("s_mov_b32 s%d, 0x20000" % (SB + 3))

    def dma_stage_ops(n):
        slot = (n % 4) * SLOT
        ops = []
        for u in range(4):
            pre = ["s_add_u32 m0, s%d, %d" % (sM0X, slot)] if u == 0 else []
            ops.append((pre, "buffer_load_dwordx4 v%d, %s, s%d offen offset:%d %s lds" % (vDX + u, srd(SX), sK, 1024 * u, dmaflag if xflag is None else xflag), []))
        for v in range(5):
            pre = []
            if v == 0:
                pre = ["s_add_u32 m0, s%d, %d" % (sM0B, slot)]
            if v == 4:
                pre = ["s_add_u32 m0, s%d, %d" % (sM0B, slot + 4096)]
            post = []
            if v == 4:
                post = ["s_add_u32 s%d, s%d, 128" % (sK, sK)]
                if rot1 != (0, 0):
                    post += ["s_cmp_eq_u32 s%d, 1280" % sK, "s_cselect_b32 s%d, 0, s%d" % (sK, sK)]
            ops.append((pre, "buffer_load_dwordx4 v%d, %s, s%d offen offset:%d %s lds" % (vDB + v, srd(SB), sK, 1024 * (v & 3) if v < 4 else 0, dmaflag), post))
        return ops

    def dma_c_ops(sig):
        slot = CSLOT[sig] * SLOT
        ops = []
        for u in range(10):
            pre = ["s_add_u32 m0, s%d, %d" % (sM0C, slot + 4096 * (u >> 2))] if (u & 3) == 0 else []
            post = []
            if u == 9:
                post = ["s_add_u32 s%d, s%d, 128" % (sKC, sKC), "s_cmp_eq_u32 s%d, 640" % sKC, "s_cselect_b32 s%d, 0, s%d" % (sKC, sKC)]
            ops.append((pre, "buffer_load_dwordx4 v%d, %s, s%d offen offset:%d %s lds" % (vPC + u, srd(SC), sKC, 1024 * (u & 3), cflag), post))
        return ops

    def emit_dma(R, tag, ops):
        for pre, d, post in ops:
            for p in pre:
                R(p)
                R("s_nop 0")
            R.vm(tag, d)
            for p in post:
                R(p)
            if isinstance(R, Rec):
                R.mark()

    for r in (ST0, ST1, ST2):
        E("s_mov_b32 s%d, 1280" % (r + 2))
        E("s_mov_b32 s%d, 0x20000" % (r + 3))
    E.vm("par0", "buffer_load_ushort v11, v9, %s, 0 offen" % srd(ST0))
    E.vm("par0", "buffer_load_ushort v12, v9, %s, 0 offen" % srd(ST1))
    E.vm("par0", "buffer_load_ushort v13, v9, %s, 0 offen" % srd(ST2))
    emit_dma(E, "st0", dma_stage_ops(0))
    estamp(1)
    E("s_bitcmp1_b32 s2, 0")
    E("s_cselect_b64 s[54:55], s[72:73], s[54:55]")
    E("s_cselect_b64 s[56:57], s[74:75], s[56:57]")
    E("s_cselect_b64 s[%d:%d], s[78:79], s[60:61]" % (ST1, ST1 + 1))
    E("s_cselect_b64 s[%d:%d], s[60:61], s[78:79]" % (ST2, ST2 + 1))
    E("s_cmp_ge_u32 s%d, 2" % sW)
    E("s_cselect_b64 s[%d:%d], s[56:57], s[54:55]" % (SC, SC + 1))
    E("s_mov_b32 s%d, %d" % (SC + 2, 640 * 1280))
    E("s_mov_b32 s%d, 0x20000" % (SC + 3))
    if stamps:
        E("s_mov_b32 s44, s62")
        E("s_mov_b32 s45, s63")
    if wsbase:
        E("s_add_u32 s86, s86, %d" % wsbase)
        E("s_addc_u32 s87, s87, 0")
    E("s_mov_b32 s%d, s86" % SWS)
    E("s_mov_b32 s%d, s87" % (SWS + 1))
    E("s_mov_b32 s%d, %d" % (SWS + 2, ST_OFF + (256 * 4 * 128 if stamps else 0)))
    E("s_mov_b32 s%d, 0x20000" % (SWS + 3))
    E("s_mul_i32 s%d, s%d, 10240" % (sT0, sJ))
    E("s_add_u32 s%d, s%d, %d" % (sT0, sT0, E_OFF))
    E("s_add_u32 s%d, s86, s%d" % (SE, sT0))
    E("s_addc_u32 s%d, s87, 0" % (SE + 1))
    E("s_mov_b32 s%d, 10240" % (SE + 2))
    E("s_mov_b32 s%d, 0x20000" % (SE + 3))
    E("s_mov_b32 s%d, s84" % SDBG)
    E("s_mov_b32 s%d, s85" % (SDBG + 1))
    E("s_mov_b32 s%d, 256" % (SDBG + 2))
    E("s_mov_b32 s%d, 0x20000" % (SDBG + 3))
    E("s_mov_b32 s%d, s82" % SOUT)
    E("s_mov_b32 s%d, s83" % (SOUT + 1))
    E("s_mov_b32 s%d, %d" % (SOUT + 2, 2048 * 640 * 4))
    E("s_mov_b32 s%d, 0x20000" % (SOUT + 3))
    E("s_mov_b32 s%d, s80" % ST0)
    E("s_mov_b32 s%d, s81" % (ST0 + 1))
    if stamps:
        E("s_mov_b32 s%d, s44" % (sSTAMP + 17))
        E("s_mov_b32 s%d, s45" % (sSTAMP + 15))
    E("v_mov_b32 v4, 0x%x" % OOB)
    E("v_lshl_or_b32 v2, s2, 8, v0")
    E("v_cmp_eq_u32 vcc, 0, v2")
    E("v_mov_b32 v3, %d" % N_OFF)
    E("s_sub_u32 s%d, 15, s%d" % (sT0, sI))
    E("v_cndmask_b32 v%d, v4, v3, vcc" % vTW)
    E("v_cndmask_b32 v%d, v4, v2, vcc" % vTD)
    E.vm("tagw", "buffer_load_dword v%d, v%d, %s, 0 offen sc1" % (vN, vTW, srd(SWS)))
    E("s_mul_i32 s%d, s%d, 640" % (sT0, sT0))
    E("v_lshlrev_b32 v2, 3, v10")
    E("v_add_u32 v2, s%d, v2" % sT0)
    E("v_cmp_gt_u32 vcc, 20, v%d" % vL)
    E("s_lshl_b32 s%d, s%d, 7" % (sT0, sI))
    E("s_lshl_b32 s%d, s%d, 3" % (sT1, sJ))
    E("v_cndmask_b32 v%d, v4, v2, vcc" % vE)
    E("v_mov_b32 v14, -1")
    E("v_mov_b32 v15, -1")
    E.vm("clr", "buffer_store_dwordx2 v[14:15], v%d, %s, 0 offen sc1" % (vE, srd(SE)))
    E("s_add_u32 s%d, s%d, s%d" % (sT0, sT0, sT1))
    E("s_lshl_b32 s%d, s%d, 1" % (sT1, sW))
    E("s_add_u32 s%d, s%d, s%d" % (sT0, sT0, sT1))
    E("v_lshrrev_b32 v2, 5, v%d" % vL)
    E("v_add_u32 v8, s%d, v2" % sT0)
    E("v_lshlrev_b32 v2, 4, v8")
    E("v_add_u32 v2, %d, v2" % G_OFF)
    E("v_and_b32 v3, 31, v%d" % vL)
    E("v_cmp_eq_u32 vcc, 0, v3")
    E("s_lshl_b32 s%d, s%d, 4" % (sT0, sI))
    E("s_add_u32 s%d, s%d, s%d" % (sT0, sT0, sJ))
    E("v_cndmask_b32 v%d, v4, v2, vcc" % vG)
    E("s_lshl_b32 s%d, s%d, 7" % (sT0, sT0))
    E("s_add_u32 s%d, s%d, %d" % (sT0, sT0, F_OFF))
    E("v_mov_b32 v2, s%d" % sT0)
    E("v_cmp_eq_u32 vcc, 0, v0")
    E("s_mov_b32 s%d, %d" % (sRD, R_OFF - F_OFF))
    E("s_mov_b32 s%d, 0" % sCNT)
    E("v_cndmask_b32 v%d, v4, v2, vcc" % vF)
    E("v_and_b32 v2, 15, v%d" % vL)
    E("v_lshrrev_b32 v3, 1, v2")
    E("v_lshrrev_b32 v4, 4, v%d" % vL)
    E("v_xor_b32 v3, v3, v4")
    E("v_lshlrev_b32 v3, 4, v3")
    E("v_lshl_add_u32 v2, v2, 7, v3")
    E("v_xor_b32 v3, 64, v2")
    for ks in range(2):
        E("v_add_u32 v%d, s%d, v%d" % (vRA + 4 * ks, sM0X, 2 + ks))
        E("v_add_u32 v%d, 16384, v%d" % (vRB + 4 * ks, 2 + ks))
        E("v_add_u32 v%d, s%d, v%d" % (vRC + 3 * ks, sM0C, 2 + ks))
        for s in range(1, 4):
            E("v_add_u32 v%d, %d, v%d" % (vRA + 4 * ks + s, s * SLOT, vRA + 4 * ks))
            E("v_add_u32 v%d, %d, v%d" % (vRB + 4 * ks + s, s * SLOT, vRB + 4 * ks))
        E("v_add_u32 v%d, %d, v%d" % (vRC + 3 * ks + 1, 2 * SLOT, vRC + 3 * ks))
        E("v_add_u32 v%d, %d, v%d" % (vRC + 3 * ks + 2, 3 * SLOT, vRC + 3 * ks))
    E("s_mul_i32 s%d, s%d, %d" % (sT0, sDT, 80 * 1280))
    E("s_and_b32 s%d, s%d, 1" % (sT1, sW))
    E("s_mul_i32 s%d, s%d, 640" % (sT1, sT1))
    E("s_add_u32 s%d, s%d, s%d" % (sT0, sT0, sT1))
    E("v_add_u32 v%d, s%d, v7" % (vPC, sT0))
    E("v_xor_b32 v7, 64, v%d" % vPC)
    for u in range(1, 10):
        E("v_add_u32 v%d, %d, v%d" % (vPC + u, 8 * u * 1280 - 1024 * (u & 3), 7 if (u & 1) else vPC))
    E("s_lshr_b32 s%d, s%d, 1" % (sR2, sR2))
    E("s_mul_i32 s%d, s%d, %d" % (sR2, sR2, rot2[2]))
    E("s_and_b32 s%d, s%d, 3" % (sT0, sJ))
    E("s_mul_i32 s%d, s%d, %d" % (sT0, sT0, rot2[0]))
    E("s_add_u32 s%d, s%d, s%d" % (sR2, sR2, sT0))
    E("s_mul_i32 s%d, s%d, %d" % (sT0, sDT, rot2[1]))
    E("s_add_u32 s%d, s%d, s%d" % (sR2, sR2, sT0))
    E("s_mul_i32 s%d, s%d, 13108" % (sT0, sR2))
    E("s_lshr_b32 s%d, s%d, 16" % (sT0, sT0))
    E("s_mul_i32 s%d, s%d, 5" % (sT0, sT0))
    E("s_sub_u32 s%d, s%d, s%d" % (sR2, sR2, sT0))
    E("s_mul_i32 s%d, s%d, 3072" % (sT0, sW))
    E("s_add_u32 s%d, s%d, %d" % (sT0, sT0, X_OFF))
    E("s_mul_i32 s%d, s2, 24576" % sXW)
    E("s_add_u32 s%d, s%d, s%d" % (sXW, sXW, sT0))
    E("s_add_u32 s%d, s%d, 12288" % (sXW + 1, sXW))
    E("s_xor_b32 s%d, s2, 1" % sXR)
    E("s_mul_i32 s%d, s%d, 24576" % (sXR, sXR))
    E("s_add_u32 s%d, s%d, s%d" % (sXR, sXR, sT0))
    E("s_add_u32 s%d, s%d, 12288" % (sXR + 1, sXR))
    E("v_cmp_gt_u32 vcc, 32, v%d" % vL)
    E("v_lshlrev_b32 v%d, 4, v%d" % (vXA[0], vL))
    E("v_mov_b32 v4, 0x%x" % OOB)
    E("s_nop 0")
    E("v_cndmask_b32 v%d, v4, v%d, vcc" % (vXA[2], vXA[0]))
    E("s_lshl_b32 s%d, s%d, 7" % (sKC, sR2))

    def park(k, v):
        E("v_accvgpr_write_b32 a%d, v%d" % (PARK + k, v))

    def unpark(R, k, v):
        R("v_accvgpr_read_b32 v%d, a%d" % (v, PARK + k))

    E("v_and_b32 v2, 15, v%d" % vL)
    E("v_lshrrev_b32 v3, 4, v%d" % vL)
    E("v_bfe_u32 v4, v2, 1, 2")
    E("v_xor_b32 v4, v4, v3")
    E("v_bfe_u32 v5, v2, 3, 1")
    E("v_lshlrev_b32 v5, 1, v5")
    E("v_xor_b32 v4, v4, v5")
    E("v_lshlrev_b32 v4, 4, v4")
    E("s_lshl_b32 s%d, s%d, 11" % (sT0, sW))
    E("s_add_u32 s%d, s%d, %d" % (sT0, sT0, TRS))
    E("v_lshl_add_u32 v4, v2, 6, v4")
    E("v_add_u32 v7, s%d, v4" % sT0)
    park(0, 7)
    E("v_lshrrev_b32 v4, 2, v2")
    E("v_lshl_add_u32 v5, v3, 3, v4")
    E("v_lshlrev_b32 v5, 6, v5")
    E("v_lshrrev_b32 v4, 1, v4")
    E("v_bfe_u32 v6, v2, 1, 1")
    E("v_xor_b32 v4, v4, v6")
    E("v_lshl_add_u32 v5, v4, 4, v5")
    E("v_and_b32 v4, 1, v2")
    E("v_lshl_add_u32 v5, v4, 3, v5")
    E("v_and_b32 v4, 1, v3")
    E("v_lshl_add_u32 v5, v4, 5, v5")
    E("v_add_u32 v7, s%d, v5" % sT0)
    park(1, 7)
    E("v_xor_b32 v7, 32, v7")
    park(2, 7)
    E("v_and_b32 v4, 31, v%d" % vL)
    E("v_lshlrev_b32 v4, 4, v4")
    E("v_lshrrev_b32 v5, 5, v%d" % vL)
    E("v_mul_u32_u24 v5, %d, v5" % MAT)
    E("v_add_u32 v7, v4, v5")
    park(3, 7)
    E("s_lshr_b32 s%d, s%d, 3" % (sT0, sJ))
    E("s_mul_i32 s%d, s%d, %d" % (sHB0, sT0, 2 * MAT))
    E("s_lshl_b32 s%d, s%d, 3" % (sT0, sI))
    E("s_lshl_b32 s%d, s%d, 1" % (sT1, sW))
    E("s_add_u32 s%d, s%d, s%d" % (sT0, sT0, sT1))
    E("s_mul_i32 s%d, s%d, 20480" % (sT0, sT0))
    E("s_add_u32 s%d, s%d, s%d" % (sHB0, sHB0, sT0))
    E("s_and_b32 s%d, s%d, 7" % (sT0, sJ))
    E("s_mul_i32 s%d, s%d, 2560" % (sT0, sT0))
    E("s_add_u32 s%d, s%d, s%d" % (sHB0, sHB0, sT0))
    E("s_add_u32 s%d, s%d, 20480" % (sHB1, sHB0))
    E("s_and_b32 s%d, s2, 1" % sT0)
    E("s_lshl_b32 s%d, s%d, 1" % (sT0, sT0))
    E("s_sub_u32 s%d, 2, s%d" % (sT0, sT0))
    E("v_bfe_u32 v15, v%d, 3, 2" % vL)
    E("v_add_u32 v15, s%d, v15" % sT0)
    E("v_and_b32 v15, 3, v15")
    for k in range(4):
        E("s_and_b32 s%d, s%d, 3" % (sT0, sT0))
        E("s_mul_i32 s%d, s%d, 40960" % (sTO + 2 * k, sT0))
        E("s_add_u32 s%d, s%d, 20480" % (sTO + 2 * k + 1, sTO + 2 * k))
        if k >= 2:
            E("s_lshl_b32 s%d, s%d, 1" % (sO + k - 2, sTO + 2 * k))
        E("s_add_u32 s%d, s%d, 1" % (sT0, sT0))
    E("s_lshl_b32 s%d, s%d, 3" % (sT1, sW))
    E("s_lshl_b32 s%d, s%d, 7" % (sT0, sJ))
    E("s_add_u32 s%d, s%d, s%d" % (sT0, sT0, sT1))
    E("v_and_b32 v2, 7, v%d" % vL)
    E("v_lshl_add_u32 v2, v15, 5, v2")
    E("v_add_u32 v2, s%d, v2" % sT0)
    E("v_lshlrev_b32 v2, 4, v2")
    E("v_add_u32 v2, %d, v2" % G_OFF)
    park(10, 2)
    E("s_mul_i32 s%d, s%d, 160" % (sT2, sDT))
    E("v_cmp_gt_u32 vcc, 32, v%d" % vL)
    for pi in range(3):
        if pi == 0:
            E("v_mov_b32 v2, v%d" % vL)
        elif pi == 1:
            E("v_add_u32 v2, 64, v%d" % vL)
        else:
            E("v_min_u32 v2, 31, v%d" % vL)
            E("v_add_u32 v2, 128, v2")
        E("v_mul_u32_u24 v3, 205, v2")
        E("v_lshrrev_b32 v3, 12, v3")
        E("v_mul_u32_u24 v4, 20, v3")
        E("v_sub_u32 v4, v2, v4")
        E("v_lshlrev_b32 v6, 2, v3")
        park(11 + pi, 6)
        E("v_lshl_add_u32 v6, v4, 3, s%d" % sT2)
        park(4 + pi, 6)
        E("v_add_u32 v5, s%d, v3" % sT0)
        E("v_mul_u32_u24 v5, 1280, v5")
        E("v_add_u32 v5, v5, v6")
        park(7 + pi, 5)
        E("v_lshlrev_b32 v%d, 1, v5" % vO[pi])
        E("v_add_u32 v3, s%d, v3" % sT1)
        E("v_bfe_u32 v5, v3, 1, 2")
        E("v_xor_b32 v5, v5, v4")
        E("v_lshlrev_b32 v5, 4, v5")
        E("v_mul_u32_u24 v3, 320, v3")
        E("v_add_u32 v%d, v3, v5" % vPR[0][pi])
    E("v_mov_b32 v6, 0x%x" % OOB)
    E("v_cndmask_b32 v%d, v6, v%d, vcc" % (vO[2], vO[2]))
    E("v_and_b32 v2, 15, v%d" % vL)
    E("v_lshrrev_b32 v3, 4, v%d" % vL)
    E("v_bfe_u32 v4, v2, 1, 2")
    E("v_xor_b32 v3, v3, v4")
    E("v_lshlrev_b32 v3, 4, v3")
    E("v_mul_u32_u24 v2, 320, v2")
    E("v_add3_u32 v%d, v2, v3, s%d" % (vPW, sM0C))
    E("s_and_b32 s%d, s2, 1" % sT1)
    E("s_lshl_b32 s%d, s%d, 1" % (sT1, sT1))
    E("s_lshr_b32 s%d, s%d, 1" % (sT2, sW))
    E("s_add_u32 s%d, s%d, s%d" % (sT1, sT1, sT2))
    E("s_mul_i32 s%d, s%d, %d" % (sT1, sT1, MAT))
    E("s_mul_i32 s%d, s%d, %d" % (sT2, sJ, 8 * 20480))
    E("s_add_u32 s%d, s%d, s%d" % (sT1, sT1, sT2))
    E("s_and_b32 s%d, s%d, 1" % (sT2, sW))
    E("s_mul_i32 s%d, s%d, 10240" % (sT2, sT2))
    E("s_add_u32 s%d, s%d, s%d" % (sT1, sT1, sT2))
    E("v_lshl_add_u32 v%d, v%d, 4, s%d" % (vHB, vL, sT1))
    E("v_add_u32 v%d, s%d, v%d" % (vHL, sTO, vHB))
    E("s_lshl_b32 s%d, s%d, 11" % (sH, sR2))
    for k in range(1, 5):
        E("s_add_u32 s%d, s%d, 2048" % (sH + k, sH + k - 1))
        E("s_cmp_eq_u32 s%d, 10240" % (sH + k))
        E("s_cselect_b32 s%d, 0, s%d" % (sH + k, sH + k))
    E("s_lshl_b32 s%d, s%d, 4" % (sT0, sJ))
    E("v_add_u32 v2, s%d, v%d" % (sT0, vL))
    E("s_xor_b32 s%d, s%d, 8" % (sT0, sI))
    E("s_lshl_b32 s%d, s%d, 4" % (sT0, sT0))
    E("s_add_u32 s%d, s%d, s%d" % (sT0, sT0, sJ))
    E("v_cmp_gt_u32 vcc, 16, v%d" % vL)
    E("v_mov_b32 v3, s%d" % sT0)
    E("s_nop 0")
    E("v_cndmask_b32 v2, v3, v2, vcc")
    E("v_lshlrev_b32 v2, 7, v2")
    E("v_add_u32 v2, %d, v2" % F_OFF)
    park(16, 2)
    E("v_min_u32 v2, 15, v%d" % vL)
    E("s_lshl_b32 s%d, s%d, 7" % (sT0, sJ))
    E("s_add_u32 s%d, s%d, %d" % (sT0, sT0, R_OFF))
    E("v_lshl_add_u32 v2, v2, 11, s%d" % sT0)
    park(14, 2)
    E("s_sub_u32 s%d, 16, s%d" % (sT0, sI))
    E("s_mul_i32 s%d, s%d, 640" % (sT0, sT0))
    E("v_lshl_add_u32 v2, v10, 3, s%d" % sT0)
    park(15, 2)
    E("s_mov_b32 s%d, 3840" % sE1)
    E("s_mov_b32 s%d, 7680" % sE2)

    def exp_nat(dst, x, t0, t1):
        E("v_mul_f32 v%d, s%d, v%d" % (t0, sT0, x))
        E("v_fma_f32 v%d, v%d, s%d, -v%d" % (t1, x, sT0, t0))
        E("v_exp_f32 v%d, v%d" % (t0, t0))
        E("v_fma_f32 v%d, v%d, s%d, v%d" % (t1, x, sT1, t1))
        E("v_mul_f32 v%d, s%d, v%d" % (t1, sT2, t1))
        E("v_fma_f32 v%d, v%d, v%d, v%d" % (dst, t0, t1, t0))

    E("s_mov_b32 s%d, 0x%x" % (sT0, LOG2E))
    E("s_mov_b32 s%d, 0x%x" % (sT1, LOG2E_LO))
    E("s_mov_b32 s%d, 0x%x" % (sT2, LN2))
    T = 16
    E.wait(vm="par0")
    E("v_lshlrev_b32 v13, 16, v13")
    E("v_lshlrev_b32 v%d, 16, v11" % (T + 0))
    E("v_lshlrev_b32 v%d, 16, v12" % (T + 1))
    exp_nat(13, 13, 2, 3)
    E("v_cvt_pk_bf16_f32 v13, v13, v13")
    E("v_lshlrev_b32 v13, 16, v13")
    E("v_mul_f32 v11, v13, v%d" % (T + 0))
    E("v_mul_f32 v12, v13, v%d" % (T + 1))
    exp_nat(11, 11, 2, 3)
    E("v_mul_f32 v12, 0.15915494, v12")
    E("v_rndne_f32 v2, v12")
    E("v_sub_f32 v12, v12, v2")
    E("v_cos_f32 v2, v12")
    E("v_sin_f32 v3, v12")
    E("v_mul_f32 v4, v%d, v%d" % (T + 0, T + 0))
    E("v_fmac_f32 v4, v%d, v%d" % (T + 1, T + 1))
    E("v_mul_f32 v%d, v11, v2" % (T + 2))
    E("v_mul_f32 v%d, v11, v3" % (T + 3))
    E("v_rcp_f32 v4, v4")
    cmul(T + 6, T + 2, T + 2)
    cmul(T + 4, T + 6, T + 6)
    cmul(vA8, T + 4, T + 4)
    cmul(T + 6, vA8, vA8)
    cmul(T + 8, T + 6, T + 6)
    cmul(T + 6, T + 8, T + 8)
    cmul(vA128, T + 6, T + 6)
    E("v_add_f32 v4, v4, v4")
    E("v_add_f32 v2, -1.0, v%d" % (T + 2))
    E("v_mul_f32 v6, v2, v%d" % (T + 0))
    E("v_fmac_f32 v6, v%d, v%d" % (T + 3, T + 1))
    E("v_mul_f32 v7, v%d, v%d" % (T + 3, T + 0))
    E("v_fma_f32 v7, -v2, v%d, v7" % (T + 1))
    E("v_mul_f32 v%d, v4, v6" % (vCO + 0))
    E("v_mul_f32 v%d, v4, v7" % (vCO + 1))
    E("v_lshlrev_b32 v2, 5, v10")
    E("v_add_u32 v2, %d, v2" % PTAB)
    E("s_mov_b64 exec, 0xfffff")
    E.lg("ptw", "ds_write_b128 v2, %s" % vr(T + 2, 4))
    E.lg("ptw", "ds_write_b64 v2, %s offset:16" % vr(vCO, 2))
    E("s_mov_b64 exec, -1")
    E("v_and_b32 v9, 15, v%d" % vL)
    E("v_lshlrev_b32 v9, 5, v9")
    E("v_add_u32 v9, %d, v9" % PTAB)
    E("v_and_b32 v2, 15, v%d" % vL)
    E("v_mul_u32_u24 v2, 144, v2")
    E("v_lshrrev_b32 v3, 4, v%d" % vL)
    E("v_lshl_add_u32 v2, v3, 3, v2")
    E("s_lshl_b32 s%d, s%d, 5" % (sT0, sW))
    E("s_add_u32 s%d, s%d, %d" % (sT0, sT0, ETAB))
    E("v_add_u32 v12, s%d, v2" % sT0)
    E("v_mul_u32_u24 v13, 144, v10")
    E("v_add_u32 v13, %d, v13" % ETAB)
    E("v_and_b32 v2, 31, v%d" % vL)
    E("v_lshlrev_b32 v6, 4, v2")
    E("v_mul_u32_u24 v4, 1280, v8")
    E("v_cmp_gt_u32 vcc, 16, v2")
    E("v_add_u32 v4, v4, v6")
    E("v_mov_b32 v3, 0x%x" % OOB)
    E("s_mov_b32 s%d, 0xffff0000" % sT0)
    E("v_cndmask_b32 v5, v3, v4, vcc")
    E("v_cndmask_b32 v7, v3, v6, vcc")
    for n in range(1, npro):
        emit_dma(E, "st%d" % n, dma_stage_ops(n))
    E.wait(vm=("tagw", "st0"), lg="ptw")
    E.c("thread 0 of workgroup 0 picks this launch's tag: the word an earlier launch left, plus one")
    E("v_add_u32 v%d, 1, v%d" % (vN, vN))
    E("v_mov_b32 v%d, 1" % (vN + 1))
    E("s_barrier")
    E.vm("ns", "buffer_store_dwordx2 %s, v%d, %s, 0 offen sc1" % (vr(vN, 2), vTD, srd(SDBG)))
    E.vm("ns", "buffer_store_dword v%d, v%d, %s, 0 offen sc1" % (vN, vTW, srd(SWS)))
    stamp("first")

    issueG = {}

    def rdA(kap, mt):
        n, ks = kap >> 1, kap & 1
        return ("A%d_%d" % (kap, mt), "ds_read_b128 %s, v%d offset:%d" % (vr(AF + 8 * (kap & 1) + 4 * mt, 4), vRA + 4 * ks + n % 4, 2048 * mt))

    def rdB(kap, nt):
        n, ks = kap >> 1, kap & 1
        return ("B%d_%d" % (kap, nt), "ds_read_b128 %s, v%d offset:%d" % (vr(BF + 4 * nt, 4), vRB + 4 * ks + n % 4, 2048 * nt))

    side = {}

    def at(G, fn):
        side.setdefault(G, []).append(fn)

    lgsched = {}

    def lgop(G, rd):
        lgsched.setdefault(G, []).append(rd[0])

        def f():
            E.lg(rd[0], rd[1])
            issueG[rd[0]] = G
        at(G, f)

    for kap in range(19):
        g0 = 20 * kap
        if kap & 1 == 0:
            lgop(g0 + 0, rdA(kap + 1, 0))
            lgop(g0 + 2, rdA(kap + 1, 1))
            for nt in range(10):
                lgop(g0 + 2 * nt + 1, rdB(kap + 1, nt))
        else:
            lgop(g0 + 6, rdA(kap + 1, 0))
            lgop(g0 + 8, rdA(kap + 1, 1))
            for nt, g in enumerate([7, 9, 10, 11, 12, 13, 14, 15, 17, 19]):
                lgop(g0 + g, rdB(kap + 1, nt))

    def place_dma(tag, ops, G0, offs):
        for (pre, d, post), o in zip(ops, offs):
            for p in pre:
                at(G0 + o - 1, (lambda p=p: E(p)))
            at(G0 + o, (lambda d=d: E.vm(tag, d)))
            for k, p in enumerate(post):
                at(G0 + o + 1, (lambda p=p: E(p)))

    batches = [("st%d" % n, dma_stage_ops(n), 1 if n < 4 else 20 * (2 * (n - 4) + 1) + 7) for n in range(npro, 10)]
    batches += [("c%d" % k, dma_c_ops(k), 20 * (2 * (k + 6) + 1) + 7) for k in plan[0]]
    nextG = 1
    for tag, ops, g_ok in batches:
        g = max(g_ok, nextG)
        late = g > g_ok or tag in ("st1", "st2", "st3")
        n = len(ops)
        offs = [2 * k for k in range(n)] if late else [(34 * k) // (n - 1) for k in range(n)]
        if tag[0] == "c":
            span = {1: 100, 2: 54, 3: 34}[len(plan[0])]
            offs = [(span * k) // (n - 1) for k in range(n)]
        place_dma(tag, ops, g, offs)
        nextG = g + offs[-1] + 3
    for n in range(10):
        G = 20 * (2 * n + 1) + 5

        def bar(n=n):
            E.wait(vm=("st%d" % (n + 1),), lg=list(E.lgq))
            E("s_barrier")
            stamp("b%d" % n, 2)
        at(G, bar)
    slow = []
    at(20 * 5 + 4, lambda: E.vm("tag", "buffer_load_dwordx2 v[14:15], off, %s, 0 sc1" % srd(SDBG)))

    def tagchk():
        E.wait(vm="tag")
        E.label("L_tag")
        E("v_cmp_eq_u32 vcc, 1, v15")
        E("v_mov_b32 v%d, v14" % vN)
        E("s_cbranch_vccz L_tag_slow")
        E.label("L_tag_ok")
    at(20 * 11 + 6, tagchk)
    at(20 * 11 + 8, lambda: E("v_xor_b32 v%d, 0x%x, v14" % (vN + 1, TAGK)))
    at(20 * 11 + 10, lambda: E.vm("rdy", "buffer_store_dwordx2 %s, v%d, %s, s%d offen sc1" % (vr(vN, 2), vF, srd(SWS), sRD)))
    slow += ["L_tag_slow:", "s_add_u32 s%d, s%d, 1" % (sCNT, sCNT), "s_cmp_gt_u32 s%d, %d" % (sCNT, SPIN), "s_cbranch_scc1 L_tag_ok",
             "s_sleep 2", "buffer_load_dwordx2 v[14:15], off, %s, 0 sc1" % srd(SDBG), "s_waitcnt vmcnt(0)", "s_branch L_tag"]
    for n in range(5):
        lgop(20 * 19 + 6 + 2 * n, ("pa%d" % n, "ds_read_b128 %s, v9 offset:%d" % (vr(PA + 4 * n, 4), 512 * n)))
        lgop(20 * 19 + 7 + 2 * n, ("pc%d" % n, "ds_read_b64 %s, v9 offset:%d" % (vr(PCF + 2 * n, 2), 512 * n + 16)))

    first_reads = [rdA(0, 0), rdB(0, 0), rdA(0, 1)] + [rdB(0, nt) for nt in range(1, 10)]
    for rd in first_reads:
        E.lg(rd[0], rd[1])
        issueG[rd[0]] = -1
    cap = {G: [len(v), 0] for G, v in side.items()}
    q = [(rd[0], -1) for rd in first_reads]
    for G in range(400):
        kap, g = divmod(G, 20)
        need = {"A%d_%d" % (kap, g & 1), "B%d_%d" % (kap, g >> 1)}
        if any(t in need for t, _ in q):
            last = max(i for i, (t, gi) in enumerate(q) if t in need or gi <= G - 8)
            q = q[last + 1:]
            cap.setdefault(G - 1, [0, 0])[0] += 1
        q += [(t, G) for t in lgsched.get(G, [])]
        if G % 40 == 25:
            q = []
            cap[G][0] += 2
    cap[226][0] += 2

    def fits(G, kind):
        u = cap.setdefault(G, [0, 0])
        if kind == "dsw" or (kind == "vm" and vmx):
            return u[0] == 0
        return u[0] < 2 and not (kind == "valu" and u[1])

    def put(G, kind, fn):
        while not fits(G, kind):
            G += 1
        u = cap[G]
        u[0] += 2 if kind == "dsw" or (kind == "vm" and vmx) else 1
        u[1] += kind == "valu"
        if fn is not None:
            at(G, fn)
        return G

    GX, GW, GT = 200, 212, 224
    for k in range(3):
        put(70 + 40 * k, "vm", lambda k=k: E.vm("gw%d" % k, "buffer_load_dwordx4 %s, v%d, %s, 0 offen offset:%d" % (vr(GW + 4 * k, 4), 7 if k == 2 else 6, srd(ST0), 512 * k)))
        put(90 + 40 * k, "vm", lambda k=k: E.vm("gx%d" % k, "buffer_load_dwordx4 %s, v%d, %s, 0 offen offset:%d" % (vr(GX + 4 * k, 4), 5 if k == 2 else 4, srd(SX), 512 * k)))
    G = 0
    for k in range(12):
        if k % 4 == 0:
            G = put(max(G, 186 + 40 * (k // 4) - (40 if k == 0 else 0)), "wait", lambda k=k: E.wait(vm=("gw%d" % (k // 4), "gx%d" % (k // 4))))
        d = GT + 5 if k == 0 else GT
        seq = ["v_lshlrev_b32 v%d, 16, v%d" % (GT, GX + k), "v_and_b32 v%d, s%d, v%d" % (GT + 1, sT0, GX + k),
               "v_lshlrev_b32 v%d, 16, v%d" % (GT + 2, GW + k), "v_and_b32 v%d, s%d, v%d" % (GT + 3, sT0, GW + k),
               "v_mul_f32 v%d, v%d, v%d" % (GT, GT, GT + 2), "v_mul_f32 v%d, v%d, v%d" % (GT + 1, GT + 1, GT + 3),
               "v_cvt_pk_bf16_f32 v%d, v%d, v%d" % (GT + 2, GT, GT + 1),
               "v_lshlrev_b32 v%d, 16, v%d" % (d, GT + 2), "v_and_b32 v%d, s%d, v%d" % (d + 1, sT0, GT + 2)]
        if k:
            seq += ["v_add_f32 v%d, v%d, v%d" % (GT + 5, GT + 5, GT), "v_add_f32 v%d, v%d, v%d" % (GT + 6, GT + 6, GT + 1)]
        for t in seq:
            G = put(G, "valu", lambda t=t: E(t))
    a, b = GT, GT + 1
    seq = [(0, "v_add_f32 v%d, v%d, v%d" % (a, GT + 5, GT + 6))]
    seq += [(2, "v_add_f32_dpp v%d, v%d, v%d row_ror:%d row_mask:0xf bank_mask:0xf" % (a, a, a, sh)) for sh in (8, 4, 2, 1)]
    seq += [(0, "v_mov_b32 v%d, v%d" % (b, a)), (2, "v_permlane16_swap_b32 v%d, v%d" % (a, b)), (0, "v_add_f32 v%d, v%d, v%d" % (a, a, b)),
            (0, "v_cvt_pk_bf16_f32 v%d, v%d, v%d" % (a, a, a)), (0, "v_lshlrev_b32 v%d, 16, v%d" % (a, a)),
            (0, "v_mul_f32 v%d, 0x%x, v%d" % (a, LOG2E | 0x80000000, a)), (0, "v_exp_f32 v%d, v%d" % (a, a)),
            (0, "v_add_f32 v%d, 1.0, v%d" % (a, a)), (0, "v_rcp_f32 v%d, v%d" % (a, a)),
            (0, "v_cvt_pk_bf16_f32 v%d, v%d, v%d" % (a, a, a)), (0, "v_lshlrev_b32 v%d, 16, v%d" % (GT + 4, a)),
            (0, "v_sub_f32 v%d, 1.0, v%d" % (a, GT + 4)), (0, "v_cvt_pk_bf16_f32 v%d, v%d, v%d" % (a, a, a)),
            (0, "v_lshlrev_b32 v%d, 16, v%d" % (GT + 5, a)), (0, "v_mov_b32 v%d, v%d" % (GT + 6, vN)), (0, "v_mov_b32 v%d, v%d" % (GT + 7, vN + 1))]
    for dG, t in seq:
        G = put(G + dG, "valu", lambda t=t: E(t))
    G = put(G, "vm", lambda: E.vm("gpub", "buffer_store_dwordx4 %s, v%d, %s, 0 offen sc1" % (vr(GT + 4, 4), vG, srd(SWS))))
    assert 232 < G < 384, G

    def need_lg(tags, G):
        tags = [t for t in tags if E.outstanding_lg(t)]
        if not tags:
            return
        extra = [t for t in E.lgq if issueG.get(t, 1 << 30) <= G - 8]
        E.wait(lg=tags + extra)

    for kap in range(20):
        for nt in range(10):
            for mt in range(2):
                G = 20 * kap + 2 * nt + mt
                need_lg(["A%d_%d" % (kap, mt), "B%d_%d" % (kap, nt)], G)
                d = vr(acc(mt, nt), 4)
                E("v_mfma_f32_16x16x32_bf16 %s, %s, %s, %s" % (d, vr(AF + 8 * (kap & 1) + 4 * mt, 4), vr(BF + 4 * nt, 4), d if kap else "0"))
                for fn in side.pop(G, []):
                    fn()
    assert not side, sorted(side)
    stamp("gemm1")

    moved = set()

    def c_move(R, sig):
        if sig in moved:
            return
        moved.add(sig)
        R.wait(vm="c%d" % sig)
        si = CSI[CSLOT[sig]]
        for ks in range(2):
            for n in range(5):
                R.lg("cm%d" % sig, "ds_read_b128 %s, v%d offset:%d" % (cfrag(sig, ks, n), vRC + 3 * ks + si, 2048 * n))
                if isinstance(R, Rec) and n in (1, 4):
                    R.mark()

    def c_dma(R, sig):
        if sig >= 3:
            c_move(R, sig - 3)
            R.wait(lg="cm%d" % (sig - 3))
        emit_dma(R, "c%d" % sig, dma_c_ops(sig))

    E1 = 96
    E2 = 116
    EL = 120
    ET = 130
    ELO = 164
    E.wait(lg=["pa0"])
    E(".p2align 3")

    def scan_step(R, dre, dim, pre, pim, ure, uim, a, conj=False):
        R("v_pk_fma_f32 %s, %s, %s, %s %s" % (vr(dre, 2), vr(a, 2), vr(pre, 2), vr(ure, 2), BC_LO))
        R("v_pk_fma_f32 %s, %s, %s, %s %s" % (vr(dim, 2), vr(a, 2), vr(pim, 2), vr(uim, 2), BC_LO))
        R("v_pk_fma_f32 %s, %s, %s, %s %s %s" % (vr(dre, 2), vr(a, 2), vr(pim, 2), vr(dre, 2), BC_HI, "" if conj else NEG0))
        R("v_pk_fma_f32 %s, %s, %s, %s %s %s" % (vr(dim, 2), vr(a, 2), vr(pre, 2), vr(dim, 2), BC_HI, NEG0 if conj else ""))

    F = Rec()
    for n in range(5):
        a = PA + 4 * n
        e = E1 + 4 * n
        if n == 1:
            F.wait(lg=["pc4"])
        scan_step(F, e, e + 2, U(0, n, 0), U(1, n, 0), U(0, n, 1), U(1, n, 1), a)
        scan_step(F, E2, E2 + 2, e, e + 2, U(0, n, 2), U(1, n, 2), a)
        scan_step(F, e, e + 2, E2, E2 + 2, U(0, n, 3), U(1, n, 3), a)
        F("v_fma_f32 v%d, v%d, v%d, v%d" % (EL + 2 * n, a + 2, e, e + 1))
        F("v_fma_f32 v%d, v%d, v%d, v%d" % (EL + 2 * n + 1, a + 2, e + 2, e + 3))
        F("v_fma_f32 v%d, -v%d, v%d, v%d" % (EL + 2 * n, a + 3, e + 2, EL + 2 * n))
        F("v_fma_f32 v%d, v%d, v%d, v%d" % (EL + 2 * n + 1, a + 3, e, EL + 2 * n + 1))
        F.lg("etw", "ds_write_b64 v12, %s offset:%d" % (vr(EL + 2 * n, 2), 2304 * n))
    B = Rec()
    for k in plan[1]:
        c_dma(B, k)
    E.play(F, B)

    def elo(n):
        e = E1 + 4 * n
        c = PCF + 2 * n
        E("v_mul_f32 v%d, v%d, v%d" % (ELO + 2 * n, c, e))
        E("v_mul_f32 v%d, v%d, v%d" % (ELO + 2 * n + 1, c + 1, e))
        E("v_fma_f32 v%d, -v%d, v%d, v%d" % (ELO + 2 * n, c + 1, e + 2, ELO + 2 * n))
        E("v_fma_f32 v%d, -v%d, v%d, -v%d" % (ELO + 2 * n + 1, c, e + 2, ELO + 2 * n + 1))
    elo(0)
    elo(1)
    E.wait(lg="etw")
    E("s_barrier")
    E("s_mov_b64 exec, 0xfffff")
    for k in range(8):
        E.lg("etr%d" % k, "ds_read_b128 %s, v13 offset:%d" % (vr(ET + 2 + 4 * k, 4), 16 * k))
    E("s_mov_b64 exec, -1")
    elo(2)
    elo(3)
    elo(4)
    S0, S1 = 2, 4
    cur = ET + 2
    for j in range(1, 16):
        if j in (1, 4, 8):
            E.wait(lg="etr%d" % {1: 1, 4: 3, 8: 7}[j])
            E("s_nop 0")
        nxt = S0 if cur != S0 else S1
        E("v_pk_fma_f32 %s, %s, %s, %s %s" % (vr(nxt, 2), vr(vA8, 2), vr(cur, 2), vr(ET + 2 + 2 * j, 2), BC_LO))
        E("v_pk_fma_f32 %s, %s, %s, %s %s neg_lo:[0,1,0]" % (vr(nxt, 2), vr(vA8, 2), vr(cur, 2), vr(nxt, 2), BC_HI_SW))
        cur = nxt
    E("v_min_u32 v%d, -2, v%d" % (cur, cur))
    E("v_min_u32 v%d, -2, v%d" % (cur + 1, cur + 1))
    E.vm("epub", "buffer_store_dwordx2 %s, v%d, %s, 0 offen sc1" % (vr(cur, 2), vE, srd(SE)))
    stamp("epub")

    unpark(E, 14, 9)
    unpark(E, 15, 14)
    E("s_bfm_b64 s[%d:%d], s%d, 0" % (sT1, sT1 + 1, sI))
    E.vm("rchk", "buffer_load_dwordx2 v[126:127], v9, %s, 0 offen sc1" % srd(SWS))

    def scale_u(R, n):
        c = PCF + 2 * n
        for s in range(4):
            ur, ui = U(0, n, s), U(1, n, s)
            R("v_pk_mul_f32 v[2:3], %s, %s op_sel:[1,0] op_sel_hi:[1,1] neg_lo:[1,0] neg_hi:[1,0]" % (vr(c, 2), vr(ui, 2)))
            R("v_pk_mul_f32 %s, %s, %s op_sel_hi:[0,1] neg_lo:[1,0] neg_hi:[1,0]" % (vr(ui, 2), vr(c, 2), vr(ui, 2)))
            R("v_pk_fma_f32 %s, %s, %s, %s %s %s" % (vr(ui, 2), vr(c, 2), vr(ur, 2), vr(ui, 2), BC_HI, NEG0))
            R("v_pk_fma_f32 %s, %s, %s, v[2:3] %s" % (vr(ur, 2), vr(c, 2), vr(ur, 2), BC_LO))

    F = Rec()
    for n in range(5):
        scale_u(F, n)
    for j in range(15):
        r = ET + 2 + 2 * j
        F("v_pk_mul_f32 v[2:3], %s, %s op_sel_hi:[0,1] neg_hi:[1,0]" % (vr(vCO, 2), vr(r, 2)))
        F("v_pk_fma_f32 %s, %s, %s, v[2:3] %s %s" % (vr(r, 2), vr(vCO, 2), vr(r, 2), BC_HI_SW, NEG0))
    AD = 220
    LS = 174
    U2 = Rec()
    for k, v in ((0, 9), (1, 11), (2, 15), (3, 8), (16, vFA)):
        unpark(U2, k, v)
    for k in range(6):
        unpark(U2, 4 + k, AD + k)
    for k in range(3):
        unpark(U2, 11 + k, LS + k)
    unpark(U2, 10, LS + 3)
    B = Rec()
    for k in plan[2]:
        c_dma(B, k)
    E.play(F, B, lead=0, tail=early)
    E("s_mov_b32 s%d, 0" % sCNT)
    E.wait(vm="rchk")
    E.label("L_clr")
    E("v_cmp_ne_u64 vcc, v[126:127], %s" % vr(vN, 2))
    E("s_add_u32 s%d, s%d, 1" % (sCNT, sCNT))
    E("s_nop 0")
    E("s_and_b64 vcc, vcc, s[%d:%d]" % (sT1, sT1 + 1))
    E("s_cbranch_scc1 L_clr_slow")
    E.label("L_clr_ok")
    slow += ["L_clr_slow:", "s_cmp_gt_u32 s%d, %d" % (sCNT, SPIN), "s_cbranch_scc1 L_clr_ok", "s_sleep 2",
             "buffer_load_dwordx2 v[126:127], v9, %s, 0 offen sc1" % srd(SWS), "s_waitcnt vmcnt(0)", "s_branch L_clr"]
    PK = [96 + 2 * k for k in range(15)]
    E("s_mov_b32 s%d, 0" % sCNT)

    def e_loads():
        for k in range(15):
            so = ["0", "s%d" % sE1, "s%d" % sE2][k // 6]
            E.vm("ep", "buffer_load_dwordx2 %s, v14, %s, %s offen offset:%d sc1" % (vr(PK[k], 2), srd(SE), so, 640 * (k % 6)))
    stamp("winB")
    E("s_mov_b64 exec, 0xfffff")
    e_loads()
    E("s_mov_b64 exec, -1")
    E.play(U2)
    for k in range(max(plan[2]) + 1):
        c_move(E, k)
    E("s_mov_b64 exec, 0xfffff")
    E("s_branch L_ep_chk")
    E.label("L_ep")
    e_loads()
    E.label("L_ep_chk")
    E.wait_all(vm=True)
    regs = [r for p in PK for r in (p, p + 1)]
    E("v_max3_u32 v2, v%d, v%d, v%d" % tuple(regs[:3]))
    for k in range(3, 29, 2):
        E("v_max3_u32 v2, v2, v%d, v%d" % (regs[k], regs[k + 1]))
    E("v_max_u32 v2, v2, v%d" % regs[29])
    E("v_cmp_eq_u32 vcc, -1, v2")
    E("s_add_u32 s%d, s%d, 1" % (sCNT, sCNT))
    E("s_cbranch_vccz L_ep_ok")
    E("s_cmp_gt_u32 s%d, %d" % (sCNT, SPIN))
    E("s_cbranch_scc0 L_ep")
    E.label("L_ep_ok")
    stamp("earr")

    XP, GR, DS, DU = 226, 160, 148, 44
    gload = "buffer_load_dwordx4 %s, v%d, %s, 0 offen sc1" % (vr(GR, 4), LS + 3, srd(SWS))

    def small_loads():
        E.vm("gl", gload)
        L = E
        for pi in range(3):
            L.vm("ds", "buffer_load_dwordx2 %s, v%d, %s, 0 offen" % (vr(DS + 4 * pi, 2), AD + pi, srd(ST1)))
            L.vm("ds", "buffer_load_dwordx2 %s, v%d, %s, 0 offen" % (vr(DS + 4 * pi + 2, 2), AD + pi, srd(ST2)))
            for s in range(2):
                L.vm("xp", "buffer_load_dwordx2 %s, v%d, %s, s%d offen" % (vr(XP + 6 * s + 2 * pi, 2), AD + 3 + pi, srd(SX), sTO + 4 + 2 * s))

    E(".p2align 3")
    for k in range(13, -1, -1):
        E("v_pk_fma_f32 %s, %s, %s, %s %s" % (vr(PK[k], 2), vr(vA128, 2), vr(PK[k + 1], 2), vr(PK[k], 2), BC_LO))
        E("v_pk_fma_f32 %s, %s, %s, %s %s neg_lo:[0,1,0]" % (vr(PK[k], 2), vr(vA128, 2), vr(PK[k + 1], 2), vr(PK[k], 2), BC_HI_SW))
    E("v_pk_mul_f32 v[2:3], %s, %s op_sel_hi:[0,1] neg_hi:[1,0]" % (vr(vCO, 2), vr(PK[0], 2)))
    E("v_pk_fma_f32 %s, %s, %s, v[2:3] %s %s" % (vr(ET, 2), vr(vCO, 2), vr(PK[0], 2), BC_HI_SW, NEG0))
    for j in range(15):
        t, r = ET + 2 * j, ET + 2 + 2 * j
        E("v_pk_fma_f32 %s, %s, %s, %s %s" % (vr(r, 2), vr(vA8, 2), vr(t, 2), vr(r, 2), BC_LO))
        E("v_pk_fma_f32 %s, %s, %s, %s %s neg_hi:[1,0,0]" % (vr(r, 2), vr(vA8, 2), vr(t, 2), vr(r, 2), BC_HI_SW))
        if j & 1 == 0:
            k = j >> 1
            E.lg("ttw", "ds_write_b128 v13, %s offset:%d" % (vr(ET + 4 * k, 4), (TTAB - ETAB) + 16 * k))
    E("s_mov_b64 exec, -1")
    if lpos == 0:
        small_loads()
    for k in plan[3]:
        c_dma(E, k)
    stamp("tchain", 2)
    E.wait(lg="ttw")
    E("s_barrier")
    stamp("tbar", 2)
    Q = 96
    DV = 116
    TRV = 132
    for n in range(5):
        E.lg("ttr%d" % n, "ds_read_b64 %s, v12 offset:%d" % (vr(Q + 4 * n, 2), (TTAB - ETAB) + 2304 * n))

    def h_store(n):
        E.wait(lg="tr%d" % n)
        E("s_nop 0")
        for mp in range(2):
            E.vm("hst", "buffer_store_dwordx4 %s, v8, %s, s%d offen offset:%d %s" % (vr(TRV + 8 * (n & 1) + 4 * mp, 4), srd(SWS), sHB0 + mp, 512 * n, hflag))

    E(".p2align 3")
    for n in range(5):
        a = PA + 4 * n
        q = Q + 4 * n
        if not E.wait(lg="ttr%d" % (0 if n == 0 else 4)):
            E("s_nop 0")
        E("v_mov_b32 v%d, v%d" % (q + 2, q + 1))
        E("v_fma_f32 v%d, v%d, v%d, v%d" % (q + 3, a + 2, q + 1, ELO + 2 * n + 1))
        E("v_fma_f32 v%d, v%d, v%d, v%d" % (q + 1, a + 2, q, ELO + 2 * n))
        E("v_fma_f32 v%d, -v%d, v%d, v%d" % (q + 3, a + 3, q, q + 3))
        E("v_fma_f32 v%d, v%d, v%d, v%d" % (q + 1, a + 3, q + 2, q + 1))
        pre, pim = q, q + 2
        for s in range(4):
            scan_step(E, U(0, n, s), U(1, n, s), pre, pim, U(0, n, s), U(1, n, s), a, conj=True)
            pre, pim = U(0, n, s), U(1, n, s)
            if s == 1 and n:
                h_store(n - 1)
        dv = DV + 8 * (n & 1)
        for kind in range(2):
            for h in range(2):
                E("v_cvt_pk_bf16_f32 v%d, v%d, v%d" % (dv + 4 * kind + 2 * h, U(kind, n, 0) + h, U(kind, n, 1) + h))
                E("v_cvt_pk_bf16_f32 v%d, v%d, v%d" % (dv + 4 * kind + 2 * h + 1, U(kind, n, 2) + h, U(kind, n, 3) + h))
            E.lg("trw", "ds_write_b128 v9, %s offset:%d" % (vr(dv + 4 * kind, 4), 1024 * kind))
        for mp in range(2):
            for half in range(2):
                E.lg("tr%d" % n, "ds_read_b64_tr_b16 %s, v%d offset:%d" % (vr(TRV + 8 * (n & 1) + 4 * mp + 2 * half, 2), 11 if (mp ^ half) == 0 else 15, 256 * half))
    h_store(4)
    stamp("hst")

    E("s_mov_b32 s%d, 0" % sCNT)
    E.wait(vm="gl")
    E.label("L_g")
    E("v_cmp_ne_u64 vcc, %s, %s" % (vr(GR + 2, 2), vr(vN, 2)))
    E("s_add_u32 s%d, s%d, 1" % (sCNT, sCNT))
    E("s_cbranch_vccnz L_g_slow")
    E.label("L_g_ok")
    slow += ["L_g_slow:", "s_cmp_gt_u32 s%d, %d" % (sCNT, SPIN), "s_cbranch_scc1 L_g_ok", "s_sleep 2", gload, "s_waitcnt vmcnt(0)", "s_branch L_g"]
    E("s_bitcmp1_b32 s2, 0")
    E("s_cselect_b64 vcc, -1, 0")
    E("s_mov_b32 s%d, 0xffff0000" % sT0)
    E("v_cndmask_b32 v8, v%d, v%d, vcc" % (GR, GR + 1))
    E("v_cndmask_b32 v9, v%d, v%d, vcc" % (GR + 1, GR))
    F = Rec()
    for s in range(4):
        for pi in range(3):
            d = GS[3 * s + pi] if s < 2 else GO[3 * (s - 2) + pi]
            F.lg("gp", "ds_bpermute_b32 v%d, v%d, v8 offset:%d" % (d, LS + pi, 32 * s))
            if s >= 2:
                F.lg("gp", "ds_bpermute_b32 v%d, v%d, v9 offset:%d" % (d + 1, LS + pi, 32 * s))
    F.wait(vm=("ds", "xp"))
    for k in range(12):
        F("v_lshlrev_b32 v%d, 16, v%d" % (DU + 2 * k, DS + k))
        F("v_and_b32 v%d, s%d, v%d" % (DU + 1 + 2 * k, sT0, DS + k))
    for pi in range(3):
        F("v_add_u32 v%d, 40960, v%d" % (vPR[1][pi], vPR[0][pi]))
    F("v_and_b32 v2, 31, v%d" % vL)
    F("v_lshlrev_b32 v%d, 4, v2" % vXL[2])
    for k in range(4):
        F("s_mov_b32 s%d, 0x%x" % (sSEL + k, 0x07060500 + k))
    F("s_mov_b32 s68, 0x0c0c0400")
    F("s_mov_b32 s69, 0x04000c0c")
    F.wait(lg="gp")
    for s in range(2):
        for pi in range(3):
            x = XP + 6 * s + 2 * pi
            g = GO[3 * s + pi]
            sk = SKIP + 12 * s + 4 * pi
            for h in range(2):
                F("v_lshlrev_b32 v2, 16, v%d" % (x + h))
                F("v_and_b32 v3, s%d, v%d" % (sT0, x + h))
                F("v_pk_mul_f32 v[4:5], v[2:3], %s" % vr(DU + 8 * pi + 2 * h, 2))
                F("v_pk_mul_f32 v[6:7], v[2:3], %s" % vr(DU + 8 * pi + 4 + 2 * h, 2))
                F("v_cvt_pk_bf16_f32 v4, v4, v5")
                F("v_cvt_pk_bf16_f32 v6, v6, v7")
                F("v_and_b32 v5, s%d, v4" % sT0)
                F("v_lshlrev_b32 v4, 16, v4")
                F("v_and_b32 v7, s%d, v6" % sT0)
                F("v_lshlrev_b32 v6, 16, v6")
                F("v_pk_mul_f32 %s, %s, v[4:5] op_sel_hi:[0,1]" % (vr(sk + 2 * h, 2), vr(g, 2)))
                F("v_pk_fma_f32 %s, %s, v[6:7], %s %s" % (vr(sk + 2 * h, 2), vr(g, 2), vr(sk + 2 * h, 2), BC_HI))

    B = Rec()
    for k in plan[4]:
        c_dma(B, k)
    E.play(F, B, lead=dlead)
    stamp("dsetup", 2)
    E.wait(vm="hst")
    E("s_barrier")
    E.vm("flag", "buffer_store_dwordx2 %s, v%d, %s, 0 offen sc1" % (vr(vN, 2), vF, srd(SWS)))
    stamp("flag")

    if lpos == 1:
        small_loads()
    for k in plan[5]:
        c_dma(E, k)
    for k in range(5):
        c_move(E, k)
    def h_load(u, k):
        E.vm("h%d_%d" % (u, k), "buffer_load_dwordx4 %s, v%d, %s, s%d offen offset:%d sc1" % (vr(HBUF + 4 * (10 * (u & 1) + k), 4), vHL, srd(SWS), sH + (k >> 1), 1024 * (k & 1)))

    stamp("winE")
    E("s_cmp_lg_u32 s%d, 0" % sW)
    E("s_cbranch_scc1 L_f_done")
    E("s_mov_b32 s%d, 0" % sCNT)
    E("s_mov_b64 exec, 0x1ffff")
    E.label("L_f")
    E("buffer_load_dwordx2 v[16:17], v%d, %s, 0 offen sc1" % (vFA, srd(SWS)))
    E("s_waitcnt vmcnt(0)")
    E("v_cmp_ne_u64 vcc, v[16:17], %s" % vr(vN, 2))
    E("s_add_u32 s%d, s%d, 1" % (sCNT, sCNT))
    E("s_cbranch_vccz L_f_ok")
    E("s_cmp_gt_u32 s%d, %d" % (sCNT, SPIN))
    E("s_cbranch_scc0 L_f")
    E.label("L_f_ok")
    E("s_mov_b64 exec, -1")
    E.label("L_f_done")
    E("s_barrier")
    stamp("prod")

    for k in range(10):
        h_load(0, k)
    E("v_add_u32 v%d, s%d, v%d" % (vHL, sTO + 1, vHB))
    for k in range(10):
        h_load(1, k)
    E("v_add_u32 v%d, s%d, v%d" % (vHL, sTO + 2, vHB))
    E("s_mov_b32 s%d, 0" % sCNT)
    side = {}
    cap.clear()

    def hwait(u, k):
        return u < 2 or k % 2 == 0

    for u in range(8):
        for k in range(10):
            if hwait(u, k) and (u or k):
                put(50 * u + 5 * k - 1, "wait", None)
    for u in range(6):
        for k in range(10):
            G = put(50 * u + 5 * k + 4, "vm", lambda u=u, k=k: h_load(u + 2, k))
        if u < 5:
            put(G, "valu", lambda u=u: E("v_add_u32 v%d, s%d, v%d" % (vHL, sTO + u + 3, vHB)))

    def red_write(u, n, h=None):
        off = 40960 * ((u >> 1) & 1) + 5120 * (u & 1) + 64 * n
        r = ACC2 + 20 * (u & 1) + 4 * n
        if h is None:
            E.lg("pw%d" % u, "ds_write_b128 v%d, %s offset:%d" % (vPW, vr(r, 4), off))
        else:
            E.lg("pw%d" % u, "ds_write_b64 v%d, %s offset:%d" % (vPW, vr(r + 2 * h, 2), off + 8 * h))

    def red_read(s, pi, w):
        E.lg("pr%d_%d" % (s, pi), "ds_read_b128 %s, v%d offset:%d" % (vr(PART[pi if s == 3 else pi & 1] + 4 * w, 4), vPR[s & 1][pi], 10240 * w))

    def x_loads(s):
        return ["buffer_load_dwordx4 %s, v%d, %s, s%d offen offset:%d sc1" % (vr(XD[s] + 4 * pi, 4), vXL[pi], srd(SWS), sXR + s, 1024 * pi) for pi in range(3)]

    def x_check():
        ins = []
        for k in range(6):
            r = XD[k // 3] + 4 * (k % 3)
            ins += ["v_perm_b32 v14, v%d, v%d, s68" % (r + 1, r), "v_perm_b32 v15, v%d, v%d, s69" % (r + 3, r + 2),
                    "v_bitop3_b32 v%d, v14, v15, v%d bitop3:0x56" % (172 + k, vN)]
        ins += ["v_or3_b32 v15, v172, v173, v174", "v_or3_b32 v14, v175, v176, v177", "v_or_b32 v15, v14, v15", "v_cmp_ne_u32 vcc, 0, v15"]
        slow.extend(["L_x_slow:", "s_add_u32 s%d, s%d, 1" % (sCNT, sCNT), "s_cmp_gt_u32 s%d, %d" % (sCNT, SPIN), "s_cbranch_scc1 L_x_ok"]
                    + x_loads(0) + x_loads(1) + ["s_waitcnt vmcnt(0)"] + ins + ["s_nop 0", "s_cbranch_vccnz L_x_slow", "s_branch L_x_ok"])
        return ins

    lastw = {}
    for u in range(7):
        G = 50 * (u + 1) + 3
        for n in range(5):
            if w64:
                for h in range(2):
                    G = put(G, "ds", lambda u=u, n=n, h=h: red_write(u, n, h))
                    lastw[u] = G
                    G += 2
            else:
                G = put(G, "dsw", lambda u=u, n=n: red_write(u, n))
                lastw[u] = G
                G += 4
    G = 0
    for s in range(2):
        G = max(G, gxd[s])
        for t in x_loads(s):
            G = put(G, "vm", lambda t=t: E.vm("xd", t)) + 1
    prev_end = 0
    for s in range(3):
        def bar(s=s):
            E.wait(lg="pw%d" % (2 * s + 1))
            E("s_barrier")
        G = put(max(lastw[2 * s + 1] + 6, prev_end), "dsw", bar)
        for pi in range(2):
            for w in range(4):
                G = put(G + 1, "ds", lambda w=w, pi=pi, s=s: red_read(s, pi, w))
        G -= 0
        for pi in range(3):
            p = PART[pi & 1]
            G = put(G + (2 if pi == 0 else 0), "wait", lambda pi=pi, s=s: E.wait(lg="pr%d_%d" % (s, pi)))
            seq = ["v_add_f32 v%d, v%d, v%d" % (p + h, p + h, p + 4 + h) for h in range(4)]
            seq += ["v_add_f32 v%d, v%d, v%d" % (p + 8 + h, p + 8 + h, p + 12 + h) for h in range(4)]
            seq += ["v_add_f32 v%d, v%d, v%d" % (p + h, p + h, p + 8 + h) for h in range(4)]
            if s < 2:
                seq += ["v_mul_f32 v%d, v%d, v%d" % (p + 4 + h, GS[3 * s + pi], p + h) for h in range(4)]
                seq += ["v_perm_b32 v%d, v%d, v%d, s%d" % (p + 4 + h, p + 4 + h, vN, sSEL + h) for h in range(4)]
                st = "buffer_store_dwordx4 %s, v%d, %s, s%d offen offset:%d %s" % (vr(p + 4, 4), vXA[pi], srd(SWS), sXW + s, 1024 * pi, xflag2)
            else:
                sk = SKIP + 4 * pi
                seq += ["v_fmac_f32 v%d, v%d, v%d" % (sk + h, GO[pi], p + h) for h in range(4)]
                st = None
            for t in seq:
                G = put(G, "valu2" if s in v2 else "valu", lambda t=t: E(t))
            if st is not None:
                G = put(G, "vm", lambda st=st: E.vm("out", st))
            if pi == 0:
                G2 = G
                for w in range(4):
                    G2 = put(G2 + 1, "ds", lambda w=w, s=s: red_read(s, 2, w))
        prev_end = G
    for u in range(8):
        A = ACC2 + 20 * (u & 1)
        for k in range(10):
            if hwait(u, k):
                last = k if (k == 9 or hwait(u, k + 1)) else k + 1
                E.wait(vm=["h%d_%d" % (u, k), "h%d_%d" % (u, last)], lg=["cm%d" % j for j in range(5)])
            if k == 0:
                stamp("t%d" % u, 2)
            for n in range(5):
                G = 50 * u + 5 * k + n
                d = vr(A + 4 * n, 4)
                E("v_mfma_f32_16x16x32_bf16 %s, %s, %s, %s" % (d, cfrag(k >> 1, k & 1, n), vr(HBUF + 4 * (10 * (u & 1) + k), 4), d if k else "0"))
                for fn in side.pop(G, []):
                    fn()
    stamp("gemm2")
    left = [fn for G in sorted(side) for fn in side[G]]
    if len(left) < 4:
        E("s_nop 3")
    for n in range(5):
        for fn in left[:4]:
            fn()
        del left[:4]
        if n == 4 and not left:
            E("s_nop 3")
        red_write(7, n)
    for fn in left:
        fn()
    E.wait(vm="xd")
    for t in x_check():
        E(t)
    E("s_nop 0")
    E("s_cbranch_vccnz L_x_slow")
    E.label("L_x_ok")
    for pi in range(3):
        sk = SKIP + 4 * pi
        for h in range(2):
            E("v_pk_add_f32 %s, %s, %s" % (vr(sk + 2 * h, 2), vr(sk + 2 * h, 2), vr(XD[0] + 4 * pi + 2 * h, 2)))
        E.vm("out", "buffer_store_dwordx4 %s, v%d, %s, s%d offen %s" % (vr(sk, 4), vO[pi], srd(SOUT), sO, outflag))
    E.wait(lg="pw7")
    E("s_barrier")
    for pi in range(3):
        for w in range(4):
            red_read(3, pi, w)
    for pi in range(3):
        sk = SKIP + 12 + 4 * pi
        p = PART[pi]
        g = GO[3 + pi]
        for h in range(2):
            E("v_pk_add_f32 %s, %s, %s" % (vr(sk + 2 * h, 2), vr(sk + 2 * h, 2), vr(XD[1] + 4 * pi + 2 * h, 2)))
        E.wait(lg="pr3_%d" % pi)
        for h in range(2):
            E("v_pk_add_f32 %s, %s, %s" % (vr(p + 2 * h, 2), vr(p + 2 * h, 2), vr(p + 4 + 2 * h, 2)))
            E("v_pk_add_f32 %s, %s, %s" % (vr(p + 8 + 2 * h, 2), vr(p + 8 + 2 * h, 2), vr(p + 12 + 2 * h, 2)))
        for h in range(2):
            E("v_pk_add_f32 %s, %s, %s" % (vr(p + 2 * h, 2), vr(p + 2 * h, 2), vr(p + 8 + 2 * h, 2)))
        for h in range(2):
            E("v_pk_fma_f32 %s, %s, %s, %s %s" % (vr(sk + 2 * h, 2), vr(g, 2), vr(p + 2 * h, 2), vr(sk + 2 * h, 2), BC_LO))
        E.vm("out", "buffer_store_dwordx4 %s, v%d, %s, s%d offen %s" % (vr(sk, 4), vO[pi], srd(SOUT), sO + 1, lastflag))
    if stamps:
        stamp("fin")
        E.wait_all(vm=True)
        stamp("drain")
        E("s_memrealtime s[100:101]")
        E("s_waitcnt lgkmcnt(0)")
        E("s_mov_b32 s%d, s100" % (sSTAMP + 16))
        E("s_lshl_b32 s%d, s2, 2" % sT0)
        E("s_add_u32 s%d, s%d, s%d" % (sT0, sT0, sW))
        E("s_lshl_b32 s%d, s%d, 7" % (sT0, sT0))
        E("s_add_u32 s%d, s%d, %d" % (sT0, sT0, ST_OFF))
        E("v_mov_b32 v2, 0")
        for k in range(18):
            E("v_mov_b32 v3, s%d" % (sSTAMP + k))
            E("buffer_store_dword v3, v2, %s, s%d offen offset:%d sc1" % (srd(SWS), sT0, 4 * k))
        E("buffer_store_dword v253, v2, %s, s%d offen offset:72 sc1" % (srd(SWS), sT0))
        E("buffer_store_dword v254, v2, %s, s%d offen offset:76 sc1" % (srd(SWS), sT0))
        E("s_waitcnt vmcnt(0)")
    E.label("L_end")
    E("s_endpgm")
    for t in slow:
        E(t)
    E.label("L_last")
    body = E.text()
    if stamps:
        body = "; STAMPS " + " ".join(names) + "\n" + body
    probs = check_hazards(body)
    assert not probs, "hazards"
    return body


HEADER = open("gated_mix__ssm_conv_s5__ssm_conv_s5__prompt.s.ref").read()


def full_file(**kw):
    body = generate(**kw)
    head = HEADER[:HEADER.index("; Override launch geometry")]
    out = head
    out += "; Generated by a hand-written scheduler script (fused two-phase kernel, one workgroup per CU).\n"
    out += "; @launch grid=(256,1,1) block=(256,1,1) lds=163840\n"
    out += '.amdgcn_target "amdgcn-amd-amdhsa--gfx950"\n.text\n.globl %s\n.p2align 8\n.type %s,@function\n%s:\n' % (KNAME, KNAME, KNAME)
    out += body + "\ns_endpgm\n"
    out += """.section .rodata,"a"
.p2align 6
.amdhsa_kernel %s
  .amdhsa_next_free_vgpr 512
  .amdhsa_next_free_sgpr 102
  .amdhsa_accum_offset 256
  .amdhsa_group_segment_fixed_size 0
  .amdhsa_kernarg_size 176
  .amdhsa_user_sgpr_count 2
  .amdhsa_user_sgpr_kernarg_segment_ptr 1
  .amdhsa_system_sgpr_workgroup_id_x 1
  .amdhsa_float_denorm_mode_32 3
.end_amdhsa_kernel
""" % KNAME
    return out


if __name__ == "__main__":
    import ast
    kw = {}
    path = sys.argv[1]
    for a in sys.argv[2:]:
        k, v = a.split("=", 1)
        try:
            kw[k] = ast.literal_eval(v)
        except Exception:
            kw[k] = v
    open(path, "w").write(full_file(**kw))
    print("wrote", path)
```

```python
import sys
from asmlib import Emitter, Rec, check_hazards

KNAME = "gated_mix__ssm_conv_s5__ssm_conv_s5__prompt_kernel"

MAT = 128 * 40 * 512
E_OFF = 4 * MAT
G_OFF = E_OFF + 16 * 16 * 640
F_OFF = G_OFF + 2048 * 16
R_OFF = F_OFF + 256 * 128
N_OFF = R_OFF + 256 * 128
X_OFF = N_OFF + 128
ST_OFF = X_OFF + 256 * 24576
TAGK = 0x9E3779B9
OOB = 0x7FF00000
SLOT = 40960
ETAB = SLOT
TTAB = SLOT + 11520
TRS = SLOT + 23040
PTAB = SLOT + 36864
RED = SLOT
SPIN = 1 << 16

SX, SB, SC, SWS, SE, SDBG, SOUT, ST0, ST1, ST2 = 4, 8, 12, 16, 20, 24, 28, 32, 36, 40
sW = 3
sI, sJ, sDT = 88, 89, 91
sM0X, sM0B, sM0C = 92, 93, 94
sK, sKC = 95, 96
sT0, sT1, sT2 = 97, 98, 99
sCNT = 100
sR2 = 101
sH = 44
sXW, sXR = 49, 51
sRD = 53
sSEL = 54
sHB0, sHB1 = 54, 55
sE1, sE2 = 56, 57
sTO = 58
sO = 66
sSTAMP = 70


def srd(r):
    return "s[%d:%d]" % (r, r + 3)


def vr(r, n=1):
    return "v%d" % r if n == 1 else "v[%d:%d]" % (r, r + n - 1)


def ar(r, n=1):
    return "a%d" % r if n == 1 else "a[%d:%d]" % (r, r + n - 1)


vL = 1
ACC = 16
HBUF = 16
BF = 96
AF = 136
vRA, vRB, vDX = 156, 164, 172
vDB = 248
vPC = 238
vRC = 180
vN = 186
vTW, vTD = 176, 177
vXA = (178, 178, 179)
vXL = (178, 178, 152)
vHL, vPW = 190, 191
vPR = ((192, 193, 189), (148, 149, 150))
vO = (194, 195, 188)
vFA = 255
PARK = 200
vE, vG, vF, vHB = 196, 197, 198, 199
PA, PCF = 200, 220
SKIP = 200
GS = (224, 225, 248, 249, 250, 251)
GO = (136, 138, 140, 142, 144, 146)
vA8, vA128, vCO = 232, 234, 236
ACC2 = 96
PART = (232, 156, 32)
XD = (2, 16)


def acc(mt, nt):
    return ACC + (mt * 10 + nt) * 4


def U(kind, n, s):
    return acc(s >> 1, n + 5 * kind) + 2 * (s & 1)


def cfrag(sig, ks, n):
    return ar(40 * sig + 4 * (ks * 5 + n), 4)


CSLOT = {0: 2, 1: 3, 2: 0, 3: 2, 4: 3}
CSI = {0: 0, 2: 1, 3: 2}

BC_LO = "op_sel_hi:[0,1,1]"
BC_HI = "op_sel:[1,0,0] op_sel_hi:[1,1,1]"
BC_HI_SW = "op_sel:[1,1,0] op_sel_hi:[1,0,1]"
NEG0 = "neg_lo:[1,0,0] neg_hi:[1,0,0]"
LOG2E = 0x3FB8AA3B
LOG2E_LO = 0x32A5705F
LN2 = 0x3F317218


def generate(rot1=(1, 3), rot2=(1, 1, 1), stamps=False, outflag="sc1", lastflag="sc1", dmaflag="", cflag="",
             fine=(), npro=2, plan=((0,), (), (1,), (), (2,), (3, 4)), hflag="sc1", pf=1, xflag=None, gxd=(345, 348), w64=1, vmx=1, early=0, lpos=0, v2=(1,), xflag2='sc1', nox=0, dlead=0, wsbase=0, span1=100, tin=1):
    E = Emitter()
    names = []

    def stamp(name="", lvl=1):
        if stamps and (lvl == 1 or name in fine):
            k = len(names)
            names.append(name)
            assert k < 15
            E("s_memtime s[%d:%d]" % (sT1, sT1 + 1))
            E.wait_all(lg=True)
            E("s_mov_b32 s%d, s%d" % (sSTAMP + k, sT1))

    def estamp(k):
        if stamps:
            E("s_memtime s[%d:%d]" % (sT1, sT1 + 1))
            E("s_waitcnt lgkmcnt(0)")
            E("v_mov_b32 v%d, s%d" % (253 + k, sT1))

    def cmul(dst, x, y):
        E("v_pk_mul_f32 %s, %s, %s op_sel_hi:[0,1]" % (vr(dst, 2), vr(x, 2), vr(y, 2)))
        E("v_pk_fma_f32 %s, %s, %s, %s %s neg_lo:[0,1,0]" % (vr(dst, 2), vr(x, 2), vr(y, 2), vr(dst, 2), BC_HI_SW))

    def mod10(r, t):
        E("s_mul_i32 s%d, s%d, 6554" % (t, r))
        E("s_lshr_b32 s%d, s%d, 16" % (t, t))
        E("s_mul_i32 s%d, s%d, 10" % (t, t))
        E("s_sub_u32 s%d, s%d, s%d" % (r, r, t))

    E("s_cmp_ge_u32 s2, 256")
    E("s_cbranch_scc1 L_end")
    E("s_load_dwordx16 s[44:59], s[0:1], 0")
    E("s_load_dwordx16 s[60:75], s[0:1], 64")
    E("s_load_dwordx8 s[76:83], s[0:1], 128")
    E("s_load_dwordx4 s[84:87], s[0:1], 160")
    if stamps:
        E("s_memrealtime s[16:17]")
        E("s_memtime s[18:19]")
    E("s_getpc_b64 s[98:99]")
    E.label("L_pc")
    E.c("pull this kernel's own code into L2 while the first tiles are fetched (1 KB per workgroup)")
    E("s_lshr_b32 s%d, s2, 3" % sKC)
    E("v_min_u32 v2, 7, v0")
    E("v_lshl_add_u32 v2, s%d, 3, v2" % sKC)
    E("v_lshlrev_b32 v2, 7, v2")
    E("v_min_u32 v2, L_last-L_pc, v2")
    if pf:
        E.vm("pf", "global_load_dword v255, v2, s[98:99]")
    E("v_lshrrev_b32 v4, 6, v0")
    E("v_and_b32 v%d, 63, v0" % vL)
    E("v_readfirstlane_b32 s%d, v4" % sW)
    E("s_and_b32 s%d, s2, 7" % sR2)
    E("s_and_b32 s%d, s%d, 1" % (sI, sR2))
    E("s_lshl_b32 s%d, s%d, 3" % (sI, sI))
    E("s_and_b32 s%d, s%d, 7" % (sDT, sKC))
    E("s_add_u32 s%d, s%d, s%d" % (sI, sI, sDT))
    E("s_lshr_b32 s%d, s%d, 1" % (sJ, sR2))
    E("s_lshl_b32 s%d, s%d, 2" % (sJ, sJ))
    E("s_lshr_b32 s%d, s%d, 3" % (sK, sKC))
    E("s_add_u32 s%d, s%d, s%d" % (sJ, sJ, sK))
    if rot1 == (0, 0):
        E("s_mov_b32 s%d, 0" % sK)
    else:
        E("s_mul_i32 s%d, s%d, %d" % (sK, sI, rot1[0]))
        E("s_mul_i32 s%d, s%d, %d" % (sT0, sJ, rot1[1]))
        E("s_add_u32 s%d, s%d, s%d" % (sK, sK, sT0))
        mod10(sK, sT0)
        E("s_lshl_b32 s%d, s%d, 7" % (sK, sK))
    E("s_lshl_b32 s%d, s%d, 12" % (sM0X, sW))
    E("s_mul_i32 s%d, s%d, 5120" % (sM0B, sW))
    E("s_add_u32 s%d, s%d, 16384" % (sM0B, sM0B))
    E("s_mul_i32 s%d, s%d, 10240" % (sM0C, sW))
    E("v_lshrrev_b32 v4, 4, v%d" % vL)
    E("v_and_b32 v5, 7, v%d" % vL)
    E("v_xor_b32 v5, v5, v4")
    E("v_lshlrev_b32 v5, 4, v5")
    E("v_lshrrev_b32 v6, 5, v%d" % vL)
    E("v_lshlrev_b32 v6, 3, v6")
    E("v_bfe_u32 v8, v%d, 3, 1" % vL)
    E("v_lshl_add_u32 v6, v8, 2, v6")
    E("v_and_b32 v8, 1, v4")
    E("v_add_u32 v6, v6, v8")
    E("s_lshl_b32 s%d, s%d, 7" % (sT0, sI))
    E("s_lshl_b32 s%d, s%d, 5" % (sT1, sW))
    E("s_add_u32 s%d, s%d, s%d" % (sT0, sT0, sT1))
    E("v_add_u32 v6, s%d, v6" % sT0)
    E("v_mul_u32_u24 v6, 1280, v6")
    E("v_add_u32 v%d, v6, v5" % (vDX + 0))
    E("v_xor_b32 v6, 64, v%d" % (vDX + 0))
    E("v_add_u32 v%d, %d, v6" % (vDX + 1, 16 * 1280 - 1024))
    E("v_add_u32 v%d, %d, v%d" % (vDX + 2, 2 * 1280 - 2048, vDX + 0))
    E("v_add_u32 v%d, %d, v6" % (vDX + 3, 18 * 1280 - 3072))
    E("v_lshrrev_b32 v7, 3, v%d" % vL)
    E("v_mul_u32_u24 v7, 1280, v7")
    E("v_add_u32 v7, v7, v5")
    E("s_and_b32 s%d, s%d, 7" % (sT0, sJ))
    E("s_mul_i32 s%d, s%d, 80" % (sT0, sT0))
    E("s_and_b32 s%d, s%d, 1" % (sT1, sW))
    E("s_mul_i32 s%d, s%d, 40" % (sT2, sT1))
    E("s_add_u32 s%d, s%d, s%d" % (sT2, sT2, sT0))
    E("s_mul_i32 s%d, s%d, 1280" % (sT2, sT2))
    E("s_lshl_b32 s%d, s%d, 6" % (sT1, sT1))
    E("v_xor_b32 v8, s%d, v7" % sT1)
    E("v_add_u32 v%d, s%d, v8" % (vDB + 0, sT2))
    E("v_xor_b32 v8, 64, v%d" % (vDB + 0))
    E("v_add_u32 v%d, %d, v8" % (vDB + 1, 8 * 1280 - 1024))
    E("v_add_u32 v%d, %d, v%d" % (vDB + 2, 16 * 1280 - 2048, vDB + 0))
    E("v_add_u32 v%d, %d, v8" % (vDB + 3, 24 * 1280 - 3072))
    E("v_add_u32 v%d, %d, v%d" % (vDB + 4, 32 * 1280, vDB + 0))
    E("s_mul_i32 s%d, s%d, 20" % (sT1, sW))
    E("v_add_u32 v10, s%d, v%d" % (sT1, vL))
    E("v_add_u32 v9, s%d, v10" % sT0)
    E("v_lshlrev_b32 v9, 1, v9")
    E("s_waitcnt lgkmcnt(0)")
    estamp(0)
    if stamps:
        E("s_mov_b32 s62, s16")
        E("s_mov_b32 s63, s18")
    E("s_mov_b32 s%d, s44" % SX)
    E("s_mov_b32 s%d, s45" % (SX + 1))
    E("s_mov_b32 s%d, %d" % (SX + 2, 2048 * 1280))
    E("s_mov_b32 s%d, 0x20000" % (SX + 3))
    E("s_cmp_ge_u32 s%d, 8" % sJ)
    E("s_cselect_b64 s[50:51], s[68:69], s[50:51]")
    E("s_cselect_b64 s[52:53], s[70:71], s[52:53]")
    E("s_cselect_b64 s[%d:%d], s[64:65], s[46:47]" % (ST0, ST0 + 1))
    E("s_cselect_b64 s[%d:%d], s[66:67], s[48:49]" % (ST1, ST1 + 1))
    E("s_cselect_b64 s[%d:%d], s[76:77], s[58:59]" % (ST2, ST2 + 1))
    E("s_cmp_ge_u32 s%d, 2" % sW)
    E("s_cselect_b64 s[%d:%d], s[52:53], s[50:51]" % (SB, SB + 1))
    E("s_mov_b32 s%d, %d" % (SB + 2, 640 * 1280))
    E("s_mov_b32 s%d, 0x20000" % (SB + 3))

    def dma_stage_ops(n):
        slot = (n % 4) * SLOT
        ops = []
        for u in range(4):
            pre = ["s_add_u32 m0, s%d, %d" % (sM0X, slot)] if u == 0 else []
            ops.append((pre, "buffer_load_dwordx4 v%d, %s, s%d offen offset:%d %s lds" % (vDX + u, srd(SX), sK, 1024 * u, dmaflag if xflag is None else xflag), []))
        for v in range(5):
            pre = []
            if v == 0:
                pre = ["s_add_u32 m0, s%d, %d" % (sM0B, slot)]
            if v == 4:
                pre = ["s_add_u32 m0, s%d, %d" % (sM0B, slot + 4096)]
            post = []
            if v == 4:
                post = ["s_add_u32 s%d, s%d, 128" % (sK, sK)]
                if rot1 != (0, 0):
                    post += ["s_cmp_eq_u32 s%d, 1280" % sK, "s_cselect_b32 s%d, 0, s%d" % (sK, sK)]
            ops.append((pre, "buffer_load_dwordx4 v%d, %s, s%d offen offset:%d %s lds" % (vDB + v, srd(SB), sK, 1024 * (v & 3) if v < 4 else 0, dmaflag), post))
        return ops

    def dma_c_ops(sig):
        slot = CSLOT[sig] * SLOT
        ops = []
        for u in range(10):
            pre = ["s_add_u32 m0, s%d, %d" % (sM0C, slot + 4096 * (u >> 2))] if (u & 3) == 0 else []
            post = []
            if u == 9:
                post = ["s_add_u32 s%d, s%d, 128" % (sKC, sKC), "s_cmp_eq_u32 s%d, 640" % sKC, "s_cselect_b32 s%d, 0, s%d" % (sKC, sKC)]
            ops.append((pre, "buffer_load_dwordx4 v%d, %s, s%d offen offset:%d %s lds" % (vPC + u, srd(SC), sKC, 1024 * (u & 3), cflag), post))
        return ops

    def emit_dma(R, tag, ops):
        for pre, d, post in ops:
            for p in pre:
                R(p)
                R("s_nop 0")
            R.vm(tag, d)
            for p in post:
                R(p)
            if isinstance(R, Rec):
                R.mark()

    for r in (ST0, ST1, ST2):
        E("s_mov_b32 s%d, 1280" % (r + 2))
        E("s_mov_b32 s%d, 0x20000" % (r + 3))
    E.vm("par0", "buffer_load_ushort v11, v9, %s, 0 offen" % srd(ST0))
    E.vm("par0", "buffer_load_ushort v12, v9, %s, 0 offen" % srd(ST1))
    E.vm("par0", "buffer_load_ushort v13, v9, %s, 0 offen" % srd(ST2))
    emit_dma(E, "st0", dma_stage_ops(0))
    estamp(1)
    E("s_bitcmp1_b32 s2, 0")
    E("s_cselect_b64 s[54:55], s[72:73], s[54:55]")
    E("s_cselect_b64 s[56:57], s[74:75], s[56:57]")
    E("s_cselect_b64 s[%d:%d], s[78:79], s[60:61]" % (ST1, ST1 + 1))
    E("s_cselect_b64 s[%d:%d], s[60:61], s[78:79]" % (ST2, ST2 + 1))
    E("s_cmp_ge_u32 s%d, 2" % sW)
    E("s_cselect_b64 s[%d:%d], s[56:57], s[54:55]" % (SC, SC + 1))
    E("s_mov_b32 s%d, %d" % (SC + 2, 640 * 1280))
    E("s_mov_b32 s%d, 0x20000" % (SC + 3))
    if stamps:
        E("s_mov_b32 s44, s62")
        E("s_mov_b32 s45, s63")
    if wsbase:
        E("s_add_u32 s86, s86, %d" % wsbase)
        E("s_addc_u32 s87, s87, 0")
    E("s_mov_b32 s%d, s86" % SWS)
    E("s_mov_b32 s%d, s87" % (SWS + 1))
    E("s_mov_b32 s%d, %d" % (SWS + 2, ST_OFF + (256 * 4 * 128 if stamps else 0)))
    E("s_mov_b32 s%d, 0x20000" % (SWS + 3))
    E("s_mul_i32 s%d, s%d, 10240" % (sT0, sJ))
    E("s_add_u32 s%d, s%d, %d" % (sT0, sT0, E_OFF))
    E("s_add_u32 s%d, s86, s%d" % (SE, sT0))
    E("s_addc_u32 s%d, s87, 0" % (SE + 1))
    E("s_mov_b32 s%d, 10240" % (SE + 2))
    E("s_mov_b32 s%d, 0x20000" % (SE + 3))
    E("s_mov_b32 s%d, s84" % SDBG)
    E("s_mov_b32 s%d, s85" % (SDBG + 1))
    E("s_mov_b32 s%d, 256" % (SDBG + 2))
    E("s_mov_b32 s%d, 0x20000" % (SDBG + 3))
    E("s_mov_b32 s%d, s82" % SOUT)
    E("s_mov_b32 s%d, s83" % (SOUT + 1))
    E("s_mov_b32 s%d, %d" % (SOUT + 2, 2048 * 640 * 4))
    E("s_mov_b32 s%d, 0x20000" % (SOUT + 3))
    E("s_mov_b32 s%d, s80" % ST0)
    E("s_mov_b32 s%d, s81" % (ST0 + 1))
    if stamps:
        E("s_mov_b32 s%d, s44" % (sSTAMP + 17))
        E("s_mov_b32 s%d, s45" % (sSTAMP + 15))
    E("v_mov_b32 v4, 0x%x" % OOB)
    E("v_lshl_or_b32 v2, s2, 8, v0")
    E("v_cmp_eq_u32 vcc, 0, v2")
    E("v_mov_b32 v3, %d" % N_OFF)
    E("s_sub_u32 s%d, 15, s%d" % (sT0, sI))
    E("v_cndmask_b32 v%d, v4, v3, vcc" % vTW)
    E("v_cndmask_b32 v%d, v4, v2, vcc" % vTD)
    E.vm("tagw", "buffer_load_dword v%d, v%d, %s, 0 offen sc1" % (vN, vTW, srd(SWS)))
    E("s_mul_i32 s%d, s%d, 640" % (sT0, sT0))
    E("v_lshlrev_b32 v2, 3, v10")
    E("v_add_u32 v2, s%d, v2" % sT0)
    E("v_cmp_gt_u32 vcc, 20, v%d" % vL)
    E("s_lshl_b32 s%d, s%d, 7" % (sT0, sI))
    E("s_lshl_b32 s%d, s%d, 3" % (sT1, sJ))
    E("v_cndmask_b32 v%d, v4, v2, vcc" % vE)
    E("v_mov_b32 v14, -1")
    E("v_mov_b32 v15, -1")
    E.vm("clr", "buffer_store_dwordx2 v[14:15], v%d, %s, 0 offen sc1" % (vE, srd(SE)))
    E("s_add_u32 s%d, s%d, s%d" % (sT0, sT0, sT1))
    E("s_lshl_b32 s%d, s%d, 1" % (sT1, sW))
    E("s_add_u32 s%d, s%d, s%d" % (sT0, sT0, sT1))
    E("v_lshrrev_b32 v2, 5, v%d" % vL)
    E("v_add_u32 v8, s%d, v2" % sT0)
    E("v_lshlrev_b32 v2, 4, v8")
    E("v_add_u32 v2, %d, v2" % G_OFF)
    E("v_and_b32 v3, 31, v%d" % vL)
    E("v_cmp_eq_u32 vcc, 0, v3")
    E("s_lshl_b32 s%d, s%d, 4" % (sT0, sI))
    E("s_add_u32 s%d, s%d, s%d" % (sT0, sT0, sJ))
    E("v_cndmask_b32 v%d, v4, v2, vcc" % vG)
    E("s_lshl_b32 s%d, s%d, 7" % (sT0, sT0))
    E("s_add_u32 s%d, s%d, %d" % (sT0, sT0, F_OFF))
    E("v_mov_b32 v2, s%d" % sT0)
    E("v_cmp_eq_u32 vcc, 0, v0")
    E("s_mov_b32 s%d, %d" % (sRD, R_OFF - F_OFF))
    E("s_mov_b32 s%d, 0" % sCNT)
    E("v_cndmask_b32 v%d, v4, v2, vcc" % vF)
    E("v_and_b32 v2, 15, v%d" % vL)
    E("v_lshrrev_b32 v3, 1, v2")
    E("v_lshrrev_b32 v4, 4, v%d" % vL)
    E("v_xor_b32 v3, v3, v4")
    E("v_lshlrev_b32 v3, 4, v3")
    E("v_lshl_add_u32 v2, v2, 7, v3")
    E("v_xor_b32 v3, 64, v2")
    for ks in range(2):
        E("v_add_u32 v%d, s%d, v%d" % (vRA + 4 * ks, sM0X, 2 + ks))
        E("v_add_u32 v%d, 16384, v%d" % (vRB + 4 * ks, 2 + ks))
        E("v_add_u32 v%d, s%d, v%d" % (vRC + 3 * ks, sM0C, 2 + ks))
        for s in range(1, 4):
            E("v_add_u32 v%d, %d, v%d" % (vRA + 4 * ks + s, s * SLOT, vRA + 4 * ks))
            E("v_add_u32 v%d, %d, v%d" % (vRB + 4 * ks + s, s * SLOT, vRB + 4 * ks))
        E("v_add_u32 v%d, %d, v%d" % (vRC + 3 * ks + 1, 2 * SLOT, vRC + 3 * ks))
        E("v_add_u32 v%d, %d, v%d" % (vRC + 3 * ks + 2, 3 * SLOT, vRC + 3 * ks))
    E("s_mul_i32 s%d, s%d, %d" % (sT0, sDT, 80 * 1280))
    E("s_and_b32 s%d, s%d, 1" % (sT1, sW))
    E("s_mul_i32 s%d, s%d, 640" % (sT1, sT1))
    E("s_add_u32 s%d, s%d, s%d" % (sT0, sT0, sT1))
    E("v_add_u32 v%d, s%d, v7" % (vPC, sT0))
    E("v_xor_b32 v7, 64, v%d" % vPC)
    for u in range(1, 10):
        E("v_add_u32 v%d, %d, v%d" % (vPC + u, 8 * u * 1280 - 1024 * (u & 3), 7 if (u & 1) else vPC))
    E("s_lshr_b32 s%d, s%d, 1" % (sR2, sR2))
    E("s_mul_i32 s%d, s%d, %d" % (sR2, sR2, rot2[2]))
    E("s_and_b32 s%d, s%d, 3" % (sT0, sJ))
    E("s_mul_i32 s%d, s%d, %d" % (sT0, sT0, rot2[0]))
    E("s_add_u32 s%d, s%d, s%d" % (sR2, sR2, sT0))
    E("s_mul_i32 s%d, s%d, %d" % (sT0, sDT, rot2[1]))
    E("s_add_u32 s%d, s%d, s%d" % (sR2, sR2, sT0))
    E("s_mul_i32 s%d, s%d, 13108" % (sT0, sR2))
    E("s_lshr_b32 s%d, s%d, 16" % (sT0, sT0))
    E("s_mul_i32 s%d, s%d, 5" % (sT0, sT0))
    E("s_sub_u32 s%d, s%d, s%d" % (sR2, sR2, sT0))
    E("s_mul_i32 s%d, s%d, 3072" % (sT0, sW))
    E("s_add_u32 s%d, s%d, %d" % (sT0, sT0, X_OFF))
    E("s_mul_i32 s%d, s2, 24576" % sXW)
    E("s_add_u32 s%d, s%d, s%d" % (sXW, sXW, sT0))
    E("s_add_u32 s%d, s%d, 12288" % (sXW + 1, sXW))
    E("s_xor_b32 s%d, s2, 1" % sXR)
    E("s_mul_i32 s%d, s%d, 24576" % (sXR, sXR))
    E("s_add_u32 s%d, s%d, s%d" % (sXR, sXR, sT0))
    E("s_add_u32 s%d, s%d, 12288" % (sXR + 1, sXR))
    E("v_cmp_gt_u32 vcc, 32, v%d" % vL)
    E("v_lshlrev_b32 v%d, 4, v%d" % (vXA[0], vL))
    E("v_mov_b32 v4, 0x%x" % OOB)
    E("s_nop 0")
    E("v_cndmask_b32 v%d, v4, v%d, vcc" % (vXA[2], vXA[0]))
    E("s_lshl_b32 s%d, s%d, 7" % (sKC, sR2))

    def park(k, v):
        E("v_accvgpr_write_b32 a%d, v%d" % (PARK + k, v))

    def unpark(R, k, v):
        R("v_accvgpr_read_b32 v%d, a%d" % (v, PARK + k))

    E("v_and_b32 v2, 15, v%d" % vL)
    E("v_lshrrev_b32 v3, 4, v%d" % vL)
    E("v_bfe_u32 v4, v2, 1, 2")
    E("v_xor_b32 v4, v4, v3")
    E("v_bfe_u32 v5, v2, 3, 1")
    E("v_lshlrev_b32 v5, 1, v5")
    E("v_xor_b32 v4, v4, v5")
    E("v_lshlrev_b32 v4, 4, v4")
    E("s_lshl_b32 s%d, s%d, 11" % (sT0, sW))
    E("s_add_u32 s%d, s%d, %d" % (sT0, sT0, TRS))
    E("v_lshl_add_u32 v4, v2, 6, v4")
    E("v_add_u32 v7, s%d, v4" % sT0)
    park(0, 7)
    E("v_lshrrev_b32 v4, 2, v2")
    E("v_lshl_add_u32 v5, v3, 3, v4")
    E("v_lshlrev_b32 v5, 6, v5")
    E("v_lshrrev_b32 v4, 1, v4")
    E("v_bfe_u32 v6, v2, 1, 1")
    E("v_xor_b32 v4, v4, v6")
    E("v_lshl_add_u32 v5, v4, 4, v5")
    E("v_and_b32 v4, 1, v2")
    E("v_lshl_add_u32 v5, v4, 3, v5")
    E("v_and_b32 v4, 1, v3")
    E("v_lshl_add_u32 v5, v4, 5, v5")
    E("v_add_u32 v7, s%d, v5" % sT0)
    park(1, 7)
    E("v_xor_b32 v7, 32, v7")
    park(2, 7)
    E("v_and_b32 v4, 31, v%d" % vL)
    E("v_lshlrev_b32 v4, 4, v4")
    E("v_lshrrev_b32 v5, 5, v%d" % vL)
    E("v_mul_u32_u24 v5, %d, v5" % MAT)
    E("v_add_u32 v7, v4, v5")
    park(3, 7)
    E("s_lshr_b32 s%d, s%d, 3" % (sT0, sJ))
    E("s_mul_i32 s%d, s%d, %d" % (sHB0, sT0, 2 * MAT))
    E("s_lshl_b32 s%d, s%d, 3" % (sT0, sI))
    E("s_lshl_b32 s%d, s%d, 1" % (sT1, sW))
    E("s_add_u32 s%d, s%d, s%d" % (sT0, sT0, sT1))
    E("s_mul_i32 s%d, s%d, 20480" % (sT0, sT0))
    E("s_add_u32 s%d, s%d, s%d" % (sHB0, sHB0, sT0))
    E("s_and_b32 s%d, s%d, 7" % (sT0, sJ))
    E("s_mul_i32 s%d, s%d, 2560" % (sT0, sT0))
    E("s_add_u32 s%d, s%d, s%d" % (sHB0, sHB0, sT0))
    E("s_add_u32 s%d, s%d, 20480" % (sHB1, sHB0))
    E("s_and_b32 s%d, s2, 1" % sT0)
    E("s_lshl_b32 s%d, s%d, 1" % (sT0, sT0))
    E("s_sub_u32 s%d, 2, s%d" % (sT0, sT0))
    E("v_bfe_u32 v15, v%d, 3, 2" % vL)
    E("v_add_u32 v15, s%d, v15" % sT0)
    E("v_and_b32 v15, 3, v15")
    for k in range(4):
        E("s_and_b32 s%d, s%d, 3" % (sT0, sT0))
        E("s_mul_i32 s%d, s%d, 40960" % (sTO + 2 * k, sT0))
        E("s_add_u32 s%d, s%d, 20480" % (sTO + 2 * k + 1, sTO + 2 * k))
        if k >= 2:
            E("s_lshl_b32 s%d, s%d, 1" % (sO + k - 2, sTO + 2 * k))
        E("s_add_u32 s%d, s%d, 1" % (sT0, sT0))
    E("s_lshl_b32 s%d, s%d, 3" % (sT1, sW))
    E("s_lshl_b32 s%d, s%d, 7" % (sT0, sJ))
    E("s_add_u32 s%d, s%d, s%d" % (sT0, sT0, sT1))
    E("v_and_b32 v2, 7, v%d" % vL)
    E("v_lshl_add_u32 v2, v15, 5, v2")
    E("v_add_u32 v2, s%d, v2" % sT0)
    E("v_lshlrev_b32 v2, 4, v2")
    E("v_add_u32 v2, %d, v2" % G_OFF)
    park(10, 2)
    E("s_mul_i32 s%d, s%d, 160" % (sT2, sDT))
    E("v_cmp_gt_u32 vcc, 32, v%d" % vL)
    for pi in range(3):
        if pi == 0:
            E("v_mov_b32 v2, v%d" % vL)
        elif pi == 1:
            E("v_add_u32 v2, 64, v%d" % vL)
        else:
            E("v_min_u32 v2, 31, v%d" % vL)
            E("v_add_u32 v2, 128, v2")
        E("v_mul_u32_u24 v3, 205, v2")
        E("v_lshrrev_b32 v3, 12, v3")
        E("v_mul_u32_u24 v4, 20, v3")
        E("v_sub_u32 v4, v2, v4")
        E("v_lshlrev_b32 v6, 2, v3")
        park(11 + pi, 6)
        E("v_lshl_add_u32 v6, v4, 3, s%d" % sT2)
        park(4 + pi, 6)
        E("v_add_u32 v5, s%d, v3" % sT0)
        E("v_mul_u32_u24 v5, 1280, v5")
        E("v_add_u32 v5, v5, v6")
        park(7 + pi, 5)
        E("v_lshlrev_b32 v%d, 1, v5" % vO[pi])
        E("v_add_u32 v3, s%d, v3" % sT1)
        E("v_bfe_u32 v5, v3, 1, 2")
        E("v_xor_b32 v5, v5, v4")
        E("v_lshlrev_b32 v5, 4, v5")
        E("v_mul_u32_u24 v3, 320, v3")
        E("v_add_u32 v%d, v3, v5" % vPR[0][pi])
    E("v_mov_b32 v6, 0x%x" % OOB)
    E("v_cndmask_b32 v%d, v6, v%d, vcc" % (vO[2], vO[2]))
    E("v_and_b32 v2, 15, v%d" % vL)
    E("v_lshrrev_b32 v3, 4, v%d" % vL)
    E("v_bfe_u32 v4, v2, 1, 2")
    E("v_xor_b32 v3, v3, v4")
    E("v_lshlrev_b32 v3, 4, v3")
    E("v_mul_u32_u24 v2, 320, v2")
    E("v_add3_u32 v%d, v2, v3, s%d" % (vPW, sM0C))
    E("s_and_b32 s%d, s2, 1" % sT1)
    E("s_lshl_b32 s%d, s%d, 1" % (sT1, sT1))
    E("s_lshr_b32 s%d, s%d, 1" % (sT2, sW))
    E("s_add_u32 s%d, s%d, s%d" % (sT1, sT1, sT2))
    E("s_mul_i32 s%d, s%d, %d" % (sT1, sT1, MAT))
    E("s_mul_i32 s%d, s%d, %d" % (sT2, sJ, 8 * 20480))
    E("s_add_u32 s%d, s%d, s%d" % (sT1, sT1, sT2))
    E("s_and_b32 s%d, s%d, 1" % (sT2, sW))
    E("s_mul_i32 s%d, s%d, 10240" % (sT2, sT2))
    E("s_add_u32 s%d, s%d, s%d" % (sT1, sT1, sT2))
    E("v_lshl_add_u32 v%d, v%d, 4, s%d" % (vHB, vL, sT1))
    E("v_add_u32 v%d, s%d, v%d" % (vHL, sTO, vHB))
    E("s_lshl_b32 s%d, s%d, 11" % (sH, sR2))
    for k in range(1, 5):
        E("s_add_u32 s%d, s%d, 2048" % (sH + k, sH + k - 1))
        E("s_cmp_eq_u32 s%d, 10240" % (sH + k))
        E("s_cselect_b32 s%d, 0, s%d" % (sH + k, sH + k))
    E("s_lshl_b32 s%d, s%d, 4" % (sT0, sJ))
    E("v_add_u32 v2, s%d, v%d" % (sT0, vL))
    E("s_xor_b32 s%d, s%d, 8" % (sT0, sI))
    E("s_lshl_b32 s%d, s%d, 4" % (sT0, sT0))
    E("s_add_u32 s%d, s%d, s%d" % (sT0, sT0, sJ))
    E("v_cmp_gt_u32 vcc, 16, v%d" % vL)
    E("v_mov_b32 v3, s%d" % sT0)
    E("s_nop 0")
    E("v_cndmask_b32 v2, v3, v2, vcc")
    E("v_lshlrev_b32 v2, 7, v2")
    E("v_add_u32 v2, %d, v2" % F_OFF)
    park(16, 2)
    E("v_min_u32 v2, 15, v%d" % vL)
    E("s_lshl_b32 s%d, s%d, 7" % (sT0, sJ))
    E("s_add_u32 s%d, s%d, %d" % (sT0, sT0, R_OFF))
    E("v_lshl_add_u32 v2, v2, 11, s%d" % sT0)
    park(14, 2)
    E("s_sub_u32 s%d, 16, s%d" % (sT0, sI))
    E("s_mul_i32 s%d, s%d, 640" % (sT0, sT0))
    E("v_lshl_add_u32 v2, v10, 3, s%d" % sT0)
    park(15, 2)
    E("v_mul_u32_u24 v2, 144, v10")
    E("v_add_u32 v2, %d, v2" % TTAB)
    E("s_lshl_b32 s%d, s%d, 11" % (sT0, sW))
    E("s_add_u32 s%d, s%d, %d" % (sT0, sT0, TRS))
    E("v_cmp_gt_u32 vcc, 20, v%d" % vL)
    E("v_lshl_add_u32 v3, v%d, 4, s%d" % (vL, sT0))
    E("s_nop 0")
    E("v_cndmask_b32 v2, v3, v2, vcc")
    park(17, 2)
    E("s_mov_b32 s%d, 3840" % sE1)
    E("s_mov_b32 s%d, 7680" % sE2)

    def exp_nat(dst, x, t0, t1):
        E("v_mul_f32 v%d, s%d, v%d" % (t0, sT0, x))
        E("v_fma_f32 v%d, v%d, s%d, -v%d" % (t1, x, sT0, t0))
        E("v_exp_f32 v%d, v%d" % (t0, t0))
        E("v_fma_f32 v%d, v%d, s%d, v%d" % (t1, x, sT1, t1))
        E("v_mul_f32 v%d, s%d, v%d" % (t1, sT2, t1))
        E("v_fma_f32 v%d, v%d, v%d, v%d" % (dst, t0, t1, t0))

    E("s_mov_b32 s%d, 0x%x" % (sT0, LOG2E))
    E("s_mov_b32 s%d, 0x%x" % (sT1, LOG2E_LO))
    E("s_mov_b32 s%d, 0x%x" % (sT2, LN2))
    T = 16
    E.wait(vm="par0")
    E("v_lshlrev_b32 v13, 16, v13")
    E("v_lshlrev_b32 v%d, 16, v11" % (T + 0))
    E("v_lshlrev_b32 v%d, 16, v12" % (T + 1))
    exp_nat(13, 13, 2, 3)
    E("v_cvt_pk_bf16_f32 v13, v13, v13")
    E("v_lshlrev_b32 v13, 16, v13")
    E("v_mul_f32 v11, v13, v%d" % (T + 0))
    E("v_mul_f32 v12, v13, v%d" % (T + 1))
    exp_nat(11, 11, 2, 3)
    E("v_mul_f32 v12, 0.15915494, v12")
    E("v_rndne_f32 v2, v12")
    E("v_sub_f32 v12, v12, v2")
    E("v_cos_f32 v2, v12")
    E("v_sin_f32 v3, v12")
    E("v_mul_f32 v4, v%d, v%d" % (T + 0, T + 0))
    E("v_fmac_f32 v4, v%d, v%d" % (T + 1, T + 1))
    E("v_mul_f32 v%d, v11, v2" % (T + 2))
    E("v_mul_f32 v%d, v11, v3" % (T + 3))
    E("v_rcp_f32 v4, v4")
    cmul(T + 6, T + 2, T + 2)
    cmul(T + 4, T + 6, T + 6)
    cmul(vA8, T + 4, T + 4)
    cmul(T + 6, vA8, vA8)
    cmul(T + 8, T + 6, T + 6)
    cmul(T + 6, T + 8, T + 8)
    cmul(vA128, T + 6, T + 6)
    E("v_add_f32 v4, v4, v4")
    E("v_add_f32 v2, -1.0, v%d" % (T + 2))
    E("v_mul_f32 v6, v2, v%d" % (T + 0))
    E("v_fmac_f32 v6, v%d, v%d" % (T + 3, T + 1))
    E("v_mul_f32 v7, v%d, v%d" % (T + 3, T + 0))
    E("v_fma_f32 v7, -v2, v%d, v7" % (T + 1))
    E("v_mul_f32 v%d, v4, v6" % (vCO + 0))
    E("v_mul_f32 v%d, v4, v7" % (vCO + 1))
    E("v_lshlrev_b32 v2, 5, v10")
    E("v_add_u32 v2, %d, v2" % PTAB)
    E("s_mov_b64 exec, 0xfffff")
    E.lg("ptw", "ds_write_b128 v2, %s" % vr(T + 2, 4))
    E.lg("ptw", "ds_write_b64 v2, %s offset:16" % vr(vCO, 2))
    E("s_mov_b64 exec, -1")
    E("v_and_b32 v9, 15, v%d" % vL)
    E("v_lshlrev_b32 v9, 5, v9")
    E("v_add_u32 v9, %d, v9" % PTAB)
    E("v_and_b32 v2, 15, v%d" % vL)
    E("v_mul_u32_u24 v2, 144, v2")
    E("v_lshrrev_b32 v3, 4, v%d" % vL)
    E("v_lshl_add_u32 v2, v3, 3, v2")
    E("s_lshl_b32 s%d, s%d, 5" % (sT0, sW))
    E("s_add_u32 s%d, s%d, %d" % (sT0, sT0, ETAB))
    E("v_add_u32 v12, s%d, v2" % sT0)
    E("v_mul_u32_u24 v13, 144, v10")
    E("v_add_u32 v13, %d, v13" % ETAB)
    E("v_and_b32 v2, 31, v%d" % vL)
    E("v_lshlrev_b32 v6, 4, v2")
    E("v_mul_u32_u24 v4, 1280, v8")
    E("v_cmp_gt_u32 vcc, 16, v2")
    E("v_add_u32 v4, v4, v6")
    E("v_mov_b32 v3, 0x%x" % OOB)
    E("s_mov_b32 s%d, 0xffff0000" % sT0)
    E("v_cndmask_b32 v5, v3, v4, vcc")
    E("v_cndmask_b32 v7, v3, v6, vcc")
    for n in range(1, npro):
        emit_dma(E, "st%d" % n, dma_stage_ops(n))
    E.wait(vm=("tagw", "st0"), lg="ptw")
    E.c("thread 0 of workgroup 0 picks this launch's tag: the word an earlier launch left, plus one")
    E("v_add_u32 v%d, 1, v%d" % (vN, vN))
    E("v_mov_b32 v%d, 1" % (vN + 1))
    E("s_barrier")
    E.vm("ns", "buffer_store_dwordx2 %s, v%d, %s, 0 offen sc1" % (vr(vN, 2), vTD, srd(SDBG)))
    E.vm("ns", "buffer_store_dword v%d, v%d, %s, 0 offen sc1" % (vN, vTW, srd(SWS)))
    stamp("first")

    issueG = {}

    def rdA(kap, mt):
        n, ks = kap >> 1, kap & 1
        return ("A%d_%d" % (kap, mt), "ds_read_b128 %s, v%d offset:%d" % (vr(AF + 8 * (kap & 1) + 4 * mt, 4), vRA + 4 * ks + n % 4, 2048 * mt))

    def rdB(kap, nt):
        n, ks = kap >> 1, kap & 1
        return ("B%d_%d" % (kap, nt), "ds_read_b128 %s, v%d offset:%d" % (vr(BF + 4 * nt, 4), vRB + 4 * ks + n % 4, 2048 * nt))

    side = {}

    def at(G, fn):
        side.setdefault(G, []).append(fn)

    lgsched = {}

    def lgop(G, rd):
        lgsched.setdefault(G, []).append(rd[0])

        def f():
            E.lg(rd[0], rd[1])
            issueG[rd[0]] = G
        at(G, f)

    for kap in range(19):
        g0 = 20 * kap
        if kap & 1 == 0:
            lgop(g0 + 0, rdA(kap + 1, 0))
            lgop(g0 + 2, rdA(kap + 1, 1))
            for nt in range(10):
                lgop(g0 + 2 * nt + 1, rdB(kap + 1, nt))
        else:
            lgop(g0 + 6, rdA(kap + 1, 0))
            lgop(g0 + 8, rdA(kap + 1, 1))
            for nt, g in enumerate([7, 9, 10, 11, 12, 13, 14, 15, 17, 19]):
                lgop(g0 + g, rdB(kap + 1, nt))

    def place_dma(tag, ops, G0, offs):
        for (pre, d, post), o in zip(ops, offs):
            for p in pre:
                at(G0 + o - 1, (lambda p=p: E(p)))
            at(G0 + o, (lambda d=d: E.vm(tag, d)))
            for k, p in enumerate(post):
                at(G0 + o + 1, (lambda p=p: E(p)))

    batches = [("st%d" % n, dma_stage_ops(n), 1 if n < 4 else 20 * (2 * (n - 4) + 1) + 7) for n in range(npro, 10)]
    batches += [("c%d" % k, dma_c_ops(k), 20 * (2 * (k + 6) + 1) + 7) for k in plan[0]]
    nextG = 1
    for tag, ops, g_ok in batches:
        g = max(g_ok, nextG)
        late = g > g_ok or tag in ("st1", "st2", "st3")
        n = len(ops)
        offs = [2 * k for k in range(n)] if late else [(34 * k) // (n - 1) for k in range(n)]
        if tag[0] == "c":
            span = {1: span1, 2: 54, 3: 34}[len(plan[0])]
            offs = [(span * k) // (n - 1) for k in range(n)]
        place_dma(tag, ops, g, offs)
        nextG = g + offs[-1] + 3
    for n in range(10):
        G = 20 * (2 * n + 1) + 5

        def bar(n=n):
            E.wait(vm=("st%d" % (n + 1),), lg=list(E.lgq))
            E("s_barrier")
            stamp("b%d" % n, 2)
        at(G, bar)
    slow = []
    at(20 * 5 + 4, lambda: E.vm("tag", "buffer_load_dwordx2 v[14:15], off, %s, 0 sc1" % srd(SDBG)))

    def tagchk():
        E.wait(vm="tag")
        E.label("L_tag")
        E("v_cmp_eq_u32 vcc, 1, v15")
        E("v_mov_b32 v%d, v14" % vN)
        E("s_cbranch_vccz L_tag_slow")
        E.label("L_tag_ok")
    at(20 * 11 + 6, tagchk)
    at(20 * 11 + 8, lambda: E("v_xor_b32 v%d, 0x%x, v14" % (vN + 1, TAGK)))
    at(20 * 11 + 10, lambda: E.vm("rdy", "buffer_store_dwordx2 %s, v%d, %s, s%d offen sc1" % (vr(vN, 2), vF, srd(SWS), sRD)))
    slow += ["L_tag_slow:", "s_add_u32 s%d, s%d, 1" % (sCNT, sCNT), "s_cmp_gt_u32 s%d, %d" % (sCNT, SPIN), "s_cbranch_scc1 L_tag_ok",
             "s_sleep 2", "buffer_load_dwordx2 v[14:15], off, %s, 0 sc1" % srd(SDBG), "s_waitcnt vmcnt(0)", "s_branch L_tag"]
    for n in range(5):
        lgop(20 * 19 + 6 + 2 * n, ("pa%d" % n, "ds_read_b128 %s, v9 offset:%d" % (vr(PA + 4 * n, 4), 512 * n)))
        lgop(20 * 19 + 7 + 2 * n, ("pc%d" % n, "ds_read_b64 %s, v9 offset:%d" % (vr(PCF + 2 * n, 2), 512 * n + 16)))

    first_reads = [rdA(0, 0), rdB(0, 0), rdA(0, 1)] + [rdB(0, nt) for nt in range(1, 10)]
    for rd in first_reads:
        E.lg(rd[0], rd[1])
        issueG[rd[0]] = -1
    cap = {G: [len(v), 0] for G, v in side.items()}
    q = [(rd[0], -1) for rd in first_reads]
    for G in range(400):
        kap, g = divmod(G, 20)
        need = {"A%d_%d" % (kap, g & 1), "B%d_%d" % (kap, g >> 1)}
        if any(t in need for t, _ in q):
            last = max(i for i, (t, gi) in enumerate(q) if t in need or gi <= G - 8)
            q = q[last + 1:]
            cap.setdefault(G - 1, [0, 0])[0] += 1
        q += [(t, G) for t in lgsched.get(G, [])]
        if G % 40 == 25:
            q = []
            cap[G][0] += 2
    cap[226][0] += 2

    def fits(G, kind):
        u = cap.setdefault(G, [0, 0])
        if kind == "dsw" or (kind == "vm" and vmx):
            return u[0] == 0
        return u[0] < 2 and not (kind == "valu" and u[1])

    def put(G, kind, fn):
        while not fits(G, kind):
            G += 1
        u = cap[G]
        u[0] += 2 if kind == "dsw" or (kind == "vm" and vmx) else 1
        u[1] += kind == "valu"
        if fn is not None:
            at(G, fn)
        return G

    GX, GW, GT = 200, 212, 224
    for k in range(3):
        put(70 + 40 * k, "vm", lambda k=k: E.vm("gw%d" % k, "buffer_load_dwordx4 %s, v%d, %s, 0 offen offset:%d" % (vr(GW + 4 * k, 4), 7 if k == 2 else 6, srd(ST0), 512 * k)))
        put(90 + 40 * k, "vm", lambda k=k: E.vm("gx%d" % k, "buffer_load_dwordx4 %s, v%d, %s, 0 offen offset:%d" % (vr(GX + 4 * k, 4), 5 if k == 2 else 4, srd(SX), 512 * k)))
    G = 0
    for k in range(12):
        if k % 4 == 0:
            G = put(max(G, 186 + 40 * (k // 4) - (40 if k == 0 else 0)), "wait", lambda k=k: E.wait(vm=("gw%d" % (k // 4), "gx%d" % (k // 4))))
        d = GT + 5 if k == 0 else GT
        seq = ["v_lshlrev_b32 v%d, 16, v%d" % (GT, GX + k), "v_and_b32 v%d, s%d, v%d" % (GT + 1, sT0, GX + k),
               "v_lshlrev_b32 v%d, 16, v%d" % (GT + 2, GW + k), "v_and_b32 v%d, s%d, v%d" % (GT + 3, sT0, GW + k),
               "v_mul_f32 v%d, v%d, v%d" % (GT, GT, GT + 2), "v_mul_f32 v%d, v%d, v%d" % (GT + 1, GT + 1, GT + 3),
               "v_cvt_pk_bf16_f32 v%d, v%d, v%d" % (GT + 2, GT, GT + 1),
               "v_lshlrev_b32 v%d, 16, v%d" % (d, GT + 2), "v_and_b32 v%d, s%d, v%d" % (d + 1, sT0, GT + 2)]
        if k:
            seq += ["v_add_f32 v%d, v%d, v%d" % (GT + 5, GT + 5, GT), "v_add_f32 v%d, v%d, v%d" % (GT + 6, GT + 6, GT + 1)]
        for t in seq:
            G = put(G, "valu", lambda t=t: E(t))
    a, b = GT, GT + 1
    seq = [(0, "v_add_f32 v%d, v%d, v%d" % (a, GT + 5, GT + 6))]
    seq += [(2, "v_add_f32_dpp v%d, v%d, v%d row_ror:%d row_mask:0xf bank_mask:0xf" % (a, a, a, sh)) for sh in (8, 4, 2, 1)]
    seq += [(0, "v_mov_b32 v%d, v%d" % (b, a)), (2, "v_permlane16_swap_b32 v%d, v%d" % (a, b)), (0, "v_add_f32 v%d, v%d, v%d" % (a, a, b)),
            (0, "v_cvt_pk_bf16_f32 v%d, v%d, v%d" % (a, a, a)), (0, "v_lshlrev_b32 v%d, 16, v%d" % (a, a)),
            (0, "v_mul_f32 v%d, 0x%x, v%d" % (a, LOG2E | 0x80000000, a)), (0, "v_exp_f32 v%d, v%d" % (a, a)),
            (0, "v_add_f32 v%d, 1.0, v%d" % (a, a)), (0, "v_rcp_f32 v%d, v%d" % (a, a)),
            (0, "v_cvt_pk_bf16_f32 v%d, v%d, v%d" % (a, a, a)), (0, "v_lshlrev_b32 v%d, 16, v%d" % (GT + 4, a)),
            (0, "v_sub_f32 v%d, 1.0, v%d" % (a, GT + 4)), (0, "v_cvt_pk_bf16_f32 v%d, v%d, v%d" % (a, a, a)),
            (0, "v_lshlrev_b32 v%d, 16, v%d" % (GT + 5, a)), (0, "v_mov_b32 v%d, v%d" % (GT + 6, vN)), (0, "v_mov_b32 v%d, v%d" % (GT + 7, vN + 1))]
    for dG, t in seq:
        G = put(G + dG, "valu", lambda t=t: E(t))
    G = put(G, "vm", lambda: E.vm("gpub", "buffer_store_dwordx4 %s, v%d, %s, 0 offen sc1" % (vr(GT + 4, 4), vG, srd(SWS))))
    assert 232 < G < 384, G
    G = put(340, "valu", lambda: unpark(E, 14, 11))
    put(G + 2, "vm", lambda: E.vm("rchk", "buffer_load_dwordx2 v[6:7], v11, %s, 0 offen sc1" % srd(SWS)))

    def need_lg(tags, G):
        tags = [t for t in tags if E.outstanding_lg(t)]
        if not tags:
            return
        extra = [t for t in E.lgq if issueG.get(t, 1 << 30) <= G - 8]
        E.wait(lg=tags + extra)

    for kap in range(20):
        for nt in range(10):
            for mt in range(2):
                G = 20 * kap + 2 * nt + mt
                need_lg(["A%d_%d" % (kap, mt), "B%d_%d" % (kap, nt)], G)
                d = vr(acc(mt, nt), 4)
                E("v_mfma_f32_16x16x32_bf16 %s, %s, %s, %s" % (d, vr(AF + 8 * (kap & 1) + 4 * mt, 4), vr(BF + 4 * nt, 4), d if kap else "0"))
                for fn in side.pop(G, []):
                    fn()
    assert not side, sorted(side)
    stamp("gemm1")

    moved = set()

    def c_move(R, sig):
        if sig in moved:
            return
        moved.add(sig)
        R.wait(vm="c%d" % sig)
        si = CSI[CSLOT[sig]]
        for ks in range(2):
            for n in range(5):
                R.lg("cm%d" % sig, "ds_read_b128 %s, v%d offset:%d" % (cfrag(sig, ks, n), vRC + 3 * ks + si, 2048 * n))
                if isinstance(R, Rec) and n in (1, 4):
                    R.mark()

    def c_dma(R, sig):
        if sig >= 3:
            c_move(R, sig - 3)
            R.wait(lg="cm%d" % (sig - 3))
        emit_dma(R, "c%d" % sig, dma_c_ops(sig))

    E1 = 96
    E2 = 116
    EL = 120
    ET = 130
    ELO = 164
    E.wait(lg=["pa0"])
    E(".p2align 3")

    def scan_step(R, dre, dim, pre, pim, ure, uim, a, conj=False):
        R("v_pk_fma_f32 %s, %s, %s, %s %s" % (vr(dre, 2), vr(a, 2), vr(pre, 2), vr(ure, 2), BC_LO))
        R("v_pk_fma_f32 %s, %s, %s, %s %s" % (vr(dim, 2), vr(a, 2), vr(pim, 2), vr(uim, 2), BC_LO))
        R("v_pk_fma_f32 %s, %s, %s, %s %s %s" % (vr(dre, 2), vr(a, 2), vr(pim, 2), vr(dre, 2), BC_HI, "" if conj else NEG0))
        R("v_pk_fma_f32 %s, %s, %s, %s %s %s" % (vr(dim, 2), vr(a, 2), vr(pre, 2), vr(dim, 2), BC_HI, NEG0 if conj else ""))

    F = Rec()
    for n in range(5):
        a = PA + 4 * n
        e = E1 + 4 * n
        if n == 1:
            F.wait(lg=["pc4"])
        scan_step(F, e, e + 2, U(0, n, 0), U(1, n, 0), U(0, n, 1), U(1, n, 1), a)
        scan_step(F, E2, E2 + 2, e, e + 2, U(0, n, 2), U(1, n, 2), a)
        scan_step(F, e, e + 2, E2, E2 + 2, U(0, n, 3), U(1, n, 3), a)
        F("v_fma_f32 v%d, v%d, v%d, v%d" % (EL + 2 * n, a + 2, e, e + 1))
        F("v_fma_f32 v%d, v%d, v%d, v%d" % (EL + 2 * n + 1, a + 2, e + 2, e + 3))
        F("v_fma_f32 v%d, -v%d, v%d, v%d" % (EL + 2 * n, a + 3, e + 2, EL + 2 * n))
        F("v_fma_f32 v%d, v%d, v%d, v%d" % (EL + 2 * n + 1, a + 3, e, EL + 2 * n + 1))
        F.lg("etw", "ds_write_b64 v12, %s offset:%d" % (vr(EL + 2 * n, 2), 2304 * n))
    B = Rec()
    for k in plan[1]:
        c_dma(B, k)
    E.play(F, B)

    def elo(n):
        e = E1 + 4 * n
        c = PCF + 2 * n
        E("v_mul_f32 v%d, v%d, v%d" % (ELO + 2 * n, c, e))
        E("v_mul_f32 v%d, v%d, v%d" % (ELO + 2 * n + 1, c + 1, e))
        E("v_fma_f32 v%d, -v%d, v%d, v%d" % (ELO + 2 * n, c + 1, e + 2, ELO + 2 * n))
        E("v_fma_f32 v%d, -v%d, v%d, -v%d" % (ELO + 2 * n + 1, c, e + 2, ELO + 2 * n + 1))
    elo(0)
    elo(1)
    E.wait(lg="etw")
    E("s_barrier")
    E("s_mov_b64 exec, 0xfffff")
    for k in range(8):
        E.lg("etr%d" % k, "ds_read_b128 %s, v13 offset:%d" % (vr(ET + 2 + 4 * k, 4), 16 * k))
    E("s_mov_b64 exec, -1")
    elo(2)
    elo(3)
    elo(4)
    S0, S1 = 2, 4
    cur = ET + 2
    for j in range(1, 16):
        if j in (1, 4, 8):
            E.wait(lg="etr%d" % {1: 1, 4: 3, 8: 7}[j])
            E("s_nop 0")
        nxt = S0 if cur != S0 else S1
        E("v_pk_fma_f32 %s, %s, %s, %s %s" % (vr(nxt, 2), vr(vA8, 2), vr(cur, 2), vr(ET + 2 + 2 * j, 2), BC_LO))
        E("v_pk_fma_f32 %s, %s, %s, %s %s neg_lo:[0,1,0]" % (vr(nxt, 2), vr(vA8, 2), vr(cur, 2), vr(nxt, 2), BC_HI_SW))
        cur = nxt
    E("v_min_u32 v%d, -2, v%d" % (cur, cur))
    E("v_min_u32 v%d, -2, v%d" % (cur + 1, cur + 1))
    E.vm("epub", "buffer_store_dwordx2 %s, v%d, %s, 0 offen sc1" % (vr(cur, 2), vE, srd(SE)))
    stamp("epub")

    unpark(E, 15, 14)
    E("s_bfm_b64 s[%d:%d], s%d, 0" % (sT1, sT1 + 1, sI))

    def scale_u(R, n):
        c = PCF + 2 * n
        for s in range(4):
            ur, ui = U(0, n, s), U(1, n, s)
            R("v_pk_mul_f32 v[2:3], %s, %s op_sel:[1,0] op_sel_hi:[1,1] neg_lo:[1,0] neg_hi:[1,0]" % (vr(c, 2), vr(ui, 2)))
            R("v_pk_mul_f32 %s, %s, %s op_sel_hi:[0,1] neg_lo:[1,0] neg_hi:[1,0]" % (vr(ui, 2), vr(c, 2), vr(ui, 2)))
            R("v_pk_fma_f32 %s, %s, %s, %s %s %s" % (vr(ui, 2), vr(c, 2), vr(ur, 2), vr(ui, 2), BC_HI, NEG0))
            R("v_pk_fma_f32 %s, %s, %s, v[2:3] %s" % (vr(ur, 2), vr(c, 2), vr(ur, 2), BC_LO))

    F = Rec()
    for n in range(5):
        scale_u(F, n)
    for j in range(15):
        r = ET + 2 + 2 * j
        F("v_pk_mul_f32 v[2:3], %s, %s op_sel_hi:[0,1] neg_hi:[1,0]" % (vr(vCO, 2), vr(r, 2)))
        F("v_pk_fma_f32 %s, %s, %s, v[2:3] %s %s" % (vr(r, 2), vr(vCO, 2), vr(r, 2), BC_HI_SW, NEG0))
    AD = 220
    LS = 174
    U2 = Rec()
    for k, v in ((0, 9), (1, 11), (2, 15), (3, 8), (16, vFA), (17, 13)):
        unpark(U2, k, v)
    for k in range(6):
        unpark(U2, 4 + k, AD + k)
    for k in range(3):
        unpark(U2, 11 + k, LS + k)
    unpark(U2, 10, LS + 3)
    B = Rec()
    for k in plan[2]:
        c_dma(B, k)
    E.play(F, B, lead=0, tail=early)
    E("s_mov_b32 s%d, 0" % sCNT)
    E.wait(vm="rchk")
    E.label("L_clr")
    E("v_cmp_ne_u64 vcc, v[6:7], %s" % vr(vN, 2))
    E("s_add_u32 s%d, s%d, 1" % (sCNT, sCNT))
    E("s_nop 0")
    E("s_and_b64 vcc, vcc, s[%d:%d]" % (sT1, sT1 + 1))
    E("s_cbranch_scc1 L_clr_slow")
    E.label("L_clr_ok")
    slow += ["L_clr_slow:", "s_cmp_gt_u32 s%d, %d" % (sCNT, SPIN), "s_cbranch_scc1 L_clr_ok", "s_sleep 2",
             "buffer_load_dwordx2 v[6:7], v11, %s, 0 offen sc1" % srd(SWS), "s_waitcnt vmcnt(0)", "s_branch L_clr"]
    PK = [96 + 2 * k for k in range(15)]
    E("s_mov_b32 s%d, 0" % sCNT)

    def e_loads():
        for k in range(15):
            so = ["0", "s%d" % sE1, "s%d" % sE2][k // 6]
            E.vm("ep", "buffer_load_dwordx2 %s, v14, %s, %s offen offset:%d sc1" % (vr(PK[k], 2), srd(SE), so, 640 * (k % 6)))
    stamp("winB")
    E("s_mov_b64 exec, 0xfffff")
    e_loads()
    E("s_mov_b64 exec, -1")
    E.play(U2)
    for k in range(max(plan[0] + plan[1] + plan[2]) + 1):
        c_move(E, k)
    E("s_mov_b64 exec, 0xfffff")
    E("s_branch L_ep_chk")
    E.label("L_ep")
    e_loads()
    E.label("L_ep_chk")
    E.wait_all(vm=True)
    regs = [r for p in PK for r in (p, p + 1)]
    E("v_max3_u32 v2, v%d, v%d, v%d" % tuple(regs[:3]))
    for k in range(3, 29, 2):
        E("v_max3_u32 v2, v2, v%d, v%d" % (regs[k], regs[k + 1]))
    E("v_max_u32 v2, v2, v%d" % regs[29])
    E("v_cmp_eq_u32 vcc, -1, v2")
    E("s_add_u32 s%d, s%d, 1" % (sCNT, sCNT))
    E("s_cbranch_vccz L_ep_ok")
    E("s_cmp_gt_u32 s%d, %d" % (sCNT, SPIN))
    E("s_cbranch_scc0 L_ep")
    E.label("L_ep_ok")
    stamp("earr")

    XP, GR, DS, DU = 226, 160, 148, 44
    gload = "buffer_load_dwordx4 %s, v%d, %s, 0 offen sc1" % (vr(GR, 4), LS + 3, srd(SWS))

    def small_loads():
        E.vm("gl", gload)
        L = E
        for pi in range(3):
            L.vm("ds", "buffer_load_dwordx2 %s, v%d, %s, 0 offen" % (vr(DS + 4 * pi, 2), AD + pi, srd(ST1)))
            L.vm("ds", "buffer_load_dwordx2 %s, v%d, %s, 0 offen" % (vr(DS + 4 * pi + 2, 2), AD + pi, srd(ST2)))
            for s in range(2):
                L.vm("xp", "buffer_load_dwordx2 %s, v%d, %s, s%d offen" % (vr(XP + 6 * s + 2 * pi, 2), AD + 3 + pi, srd(SX), sTO + 4 + 2 * s))

    E(".p2align 3")
    E("s_mov_b64 exec, -1")
    F = Rec()
    for k in range(13, -1, -1):
        F("v_pk_fma_f32 %s, %s, %s, %s %s" % (vr(PK[k], 2), vr(vA128, 2), vr(PK[k + 1], 2), vr(PK[k], 2), BC_LO))
        F("v_pk_fma_f32 %s, %s, %s, %s %s neg_lo:[0,1,0]" % (vr(PK[k], 2), vr(vA128, 2), vr(PK[k + 1], 2), vr(PK[k], 2), BC_HI_SW))
    F("v_pk_mul_f32 v[2:3], %s, %s op_sel_hi:[0,1] neg_hi:[1,0]" % (vr(vCO, 2), vr(PK[0], 2)))
    F("v_pk_fma_f32 %s, %s, %s, v[2:3] %s %s" % (vr(ET, 2), vr(vCO, 2), vr(PK[0], 2), BC_HI_SW, NEG0))
    for j in range(15):
        t, r = ET + 2 * j, ET + 2 + 2 * j
        F("v_pk_fma_f32 %s, %s, %s, %s %s" % (vr(r, 2), vr(vA8, 2), vr(t, 2), vr(r, 2), BC_LO))
        F("v_pk_fma_f32 %s, %s, %s, %s %s neg_hi:[1,0,0]" % (vr(r, 2), vr(vA8, 2), vr(t, 2), vr(r, 2), BC_HI_SW))
        if j & 1 == 0:
            k = j >> 1
            F.lg("ttw", "ds_write_b128 v13, %s offset:%d" % (vr(ET + 4 * k, 4), 16 * k))
    B = Rec()
    if tin:
        for k in plan[3]:
            c_dma(B, k)
    E.play(F, B, tail=12)
    if lpos == 0:
        small_loads()
    if not tin:
        for k in plan[3]:
            c_dma(E, k)
    stamp("tchain", 2)
    E.wait(lg="ttw")
    E("s_barrier")
    stamp("tbar", 2)
    Q = 96
    DV = 116
    TRV = 132
    for n in range(5):
        E.lg("ttr%d" % n, "ds_read_b64 %s, v12 offset:%d" % (vr(Q + 4 * n, 2), (TTAB - ETAB) + 2304 * n))

    def h_store(n):
        E.wait(lg="tr%d" % n)
        E("s_nop 0")
        for mp in range(2):
            E.vm("hst", "buffer_store_dwordx4 %s, v8, %s, s%d offen offset:%d %s" % (vr(TRV + 8 * (n & 1) + 4 * mp, 4), srd(SWS), sHB0 + mp, 512 * n, hflag))

    E(".p2align 3")
    for n in range(5):
        a = PA + 4 * n
        q = Q + 4 * n
        if not E.wait(lg="ttr%d" % (0 if n == 0 else 4)):
            E("s_nop 0")
        E("v_mov_b32 v%d, v%d" % (q + 2, q + 1))
        E("v_fma_f32 v%d, v%d, v%d, v%d" % (q + 3, a + 2, q + 1, ELO + 2 * n + 1))
        E("v_fma_f32 v%d, v%d, v%d, v%d" % (q + 1, a + 2, q, ELO + 2 * n))
        E("v_fma_f32 v%d, -v%d, v%d, v%d" % (q + 3, a + 3, q, q + 3))
        E("v_fma_f32 v%d, v%d, v%d, v%d" % (q + 1, a + 3, q + 2, q + 1))
        pre, pim = q, q + 2
        for s in range(4):
            scan_step(E, U(0, n, s), U(1, n, s), pre, pim, U(0, n, s), U(1, n, s), a, conj=True)
            pre, pim = U(0, n, s), U(1, n, s)
            if s == 1 and n:
                h_store(n - 1)
        dv = DV + 8 * (n & 1)
        for kind in range(2):
            for h in range(2):
                E("v_cvt_pk_bf16_f32 v%d, v%d, v%d" % (dv + 4 * kind + 2 * h, U(kind, n, 0) + h, U(kind, n, 1) + h))
                E("v_cvt_pk_bf16_f32 v%d, v%d, v%d" % (dv + 4 * kind + 2 * h + 1, U(kind, n, 2) + h, U(kind, n, 3) + h))
            E.lg("trw", "ds_write_b128 v9, %s offset:%d" % (vr(dv + 4 * kind, 4), 1024 * kind))
        for mp in range(2):
            for half in range(2):
                E.lg("tr%d" % n, "ds_read_b64_tr_b16 %s, v%d offset:%d" % (vr(TRV + 8 * (n & 1) + 4 * mp + 2 * half, 2), 11 if (mp ^ half) == 0 else 15, 256 * half))
    h_store(4)
    stamp("hst")

    E("s_mov_b32 s%d, 0" % sCNT)
    E.wait(vm="gl")
    E.label("L_g")
    E("v_cmp_ne_u64 vcc, %s, %s" % (vr(GR + 2, 2), vr(vN, 2)))
    E("s_add_u32 s%d, s%d, 1" % (sCNT, sCNT))
    E("s_cbranch_vccnz L_g_slow")
    E.label("L_g_ok")
    slow += ["L_g_slow:", "s_cmp_gt_u32 s%d, %d" % (sCNT, SPIN), "s_cbranch_scc1 L_g_ok", "s_sleep 2", gload, "s_waitcnt vmcnt(0)", "s_branch L_g"]
    E("s_bitcmp1_b32 s2, 0")
    E("s_cselect_b64 vcc, -1, 0")
    E("s_mov_b32 s%d, 0xffff0000" % sT0)
    E("v_cndmask_b32 v8, v%d, v%d, vcc" % (GR, GR + 1))
    E("v_cndmask_b32 v9, v%d, v%d, vcc" % (GR + 1, GR))
    F = Rec()
    for s in range(4):
        for pi in range(3):
            d = GS[3 * s + pi] if s < 2 else GO[3 * (s - 2) + pi]
            F.lg("gp", "ds_bpermute_b32 v%d, v%d, v8 offset:%d" % (d, LS + pi, 32 * s))
            if s >= 2:
                F.lg("gp", "ds_bpermute_b32 v%d, v%d, v9 offset:%d" % (d + 1, LS + pi, 32 * s))
    F.wait(vm=("ds", "xp"))
    for k in range(12):
        F("v_lshlrev_b32 v%d, 16, v%d" % (DU + 2 * k, DS + k))
        F("v_and_b32 v%d, s%d, v%d" % (DU + 1 + 2 * k, sT0, DS + k))
    for pi in range(3):
        F("v_add_u32 v%d, 40960, v%d" % (vPR[1][pi], vPR[0][pi]))
    F("v_and_b32 v2, 31, v%d" % vL)
    F("v_lshlrev_b32 v%d, 4, v2" % vXL[2])
    for k in range(4):
        F("s_mov_b32 s%d, 0x%x" % (sSEL + k, 0x07060500 + k))
    F("s_mov_b32 s68, 0x0c0c0400")
    F("s_mov_b32 s69, 0x04000c0c")
    F.wait(lg="gp")
    for s in range(2):
        for pi in range(3):
            x = XP + 6 * s + 2 * pi
            g = GO[3 * s + pi]
            sk = SKIP + 12 * s + 4 * pi
            for h in range(2):
                F("v_lshlrev_b32 v2, 16, v%d" % (x + h))
                F("v_and_b32 v3, s%d, v%d" % (sT0, x + h))
                F("v_pk_mul_f32 v[4:5], v[2:3], %s" % vr(DU + 8 * pi + 2 * h, 2))
                F("v_pk_mul_f32 v[6:7], v[2:3], %s" % vr(DU + 8 * pi + 4 + 2 * h, 2))
                F("v_cvt_pk_bf16_f32 v4, v4, v5")
                F("v_cvt_pk_bf16_f32 v6, v6, v7")
                F("v_and_b32 v5, s%d, v4" % sT0)
                F("v_lshlrev_b32 v4, 16, v4")
                F("v_and_b32 v7, s%d, v6" % sT0)
                F("v_lshlrev_b32 v6, 16, v6")
                F("v_pk_mul_f32 %s, %s, v[4:5] op_sel_hi:[0,1]" % (vr(sk + 2 * h, 2), vr(g, 2)))
                F("v_pk_fma_f32 %s, %s, v[6:7], %s %s" % (vr(sk + 2 * h, 2), vr(g, 2), vr(sk + 2 * h, 2), BC_HI))

    B = Rec()
    for k in range(min(plan[4] + plan[5] + (5,))):
        c_move(B, k)
    for k in plan[4]:
        c_dma(B, k)
    E.play(F, B, lead=dlead)
    stamp("dsetup", 2)
    E.wait(vm="hst")
    E("s_barrier")
    E.vm("flag", "buffer_store_dwordx2 %s, v%d, %s, 0 offen sc1" % (vr(vN, 2), vF, srd(SWS)))
    stamp("flag")

    if lpos == 1:
        small_loads()
    for k in plan[5]:
        c_dma(E, k)
    for k in range(5):
        c_move(E, k)
    def h_load(u, k):
        E.vm("h%d_%d" % (u, k), "buffer_load_dwordx4 %s, v%d, %s, s%d offen offset:%d sc1" % (vr(HBUF + 4 * (10 * (u & 1) + k), 4), vHL, srd(SWS), sH + (k >> 1), 1024 * (k & 1)))

    stamp("winE")
    E("s_cmp_lg_u32 s%d, 0" % sW)
    E("s_cbranch_scc1 L_f_done")
    E("s_mov_b32 s%d, 0" % sCNT)
    E("s_mov_b64 exec, 0x1ffff")
    E.label("L_f")
    E("buffer_load_dwordx2 v[16:17], v%d, %s, 0 offen sc1" % (vFA, srd(SWS)))
    E("s_waitcnt vmcnt(0)")
    E("v_cmp_ne_u64 vcc, v[16:17], %s" % vr(vN, 2))
    E("s_add_u32 s%d, s%d, 1" % (sCNT, sCNT))
    E("s_cbranch_vccz L_f_ok")
    E("s_cmp_gt_u32 s%d, %d" % (sCNT, SPIN))
    E("s_cbranch_scc0 L_f")
    E.label("L_f_ok")
    E("s_mov_b64 exec, -1")
    E.label("L_f_done")
    E("s_barrier")
    stamp("prod")

    for k in range(10):
        h_load(0, k)
    E("v_add_u32 v%d, s%d, v%d" % (vHL, sTO + 1, vHB))
    for k in range(10):
        h_load(1, k)
    E("v_add_u32 v%d, s%d, v%d" % (vHL, sTO + 2, vHB))
    E("s_mov_b32 s%d, 0" % sCNT)
    side = {}
    cap.clear()

    def hwait(u, k):
        return u < 2 or k % 2 == 0

    for u in range(8):
        for k in range(10):
            if hwait(u, k) and (u or k):
                put(50 * u + 5 * k - 1, "wait", None)
    for u in range(6):
        for k in range(10):
            G = put(50 * u + 5 * k + 4, "vm", lambda u=u, k=k: h_load(u + 2, k))
        if u < 5:
            put(G, "valu", lambda u=u: E("v_add_u32 v%d, s%d, v%d" % (vHL, sTO + u + 3, vHB)))

    def red_write(u, n, h=None):
        off = 40960 * ((u >> 1) & 1) + 5120 * (u & 1) + 64 * n
        r = ACC2 + 20 * (u & 1) + 4 * n
        if h is None:
            E.lg("pw%d" % u, "ds_write_b128 v%d, %s offset:%d" % (vPW, vr(r, 4), off))
        else:
            E.lg("pw%d" % u, "ds_write_b64 v%d, %s offset:%d" % (vPW, vr(r + 2 * h, 2), off + 8 * h))

    def red_read(s, pi, w):
        E.lg("pr%d_%d" % (s, pi), "ds_read_b128 %s, v%d offset:%d" % (vr(PART[pi if s == 3 else pi & 1] + 4 * w, 4), vPR[s & 1][pi], 10240 * w))

    def x_loads(s):
        return ["buffer_load_dwordx4 %s, v%d, %s, s%d offen offset:%d sc1" % (vr(XD[s] + 4 * pi, 4), vXL[pi], srd(SWS), sXR + s, 1024 * pi) for pi in range(3)]

    def x_check():
        ins = []
        for k in range(6):
            r = XD[k // 3] + 4 * (k % 3)
            ins += ["v_perm_b32 v14, v%d, v%d, s68" % (r + 1, r), "v_perm_b32 v15, v%d, v%d, s69" % (r + 3, r + 2),
                    "v_bitop3_b32 v%d, v14, v15, v%d bitop3:0x56" % (172 + k, vN)]
        ins += ["v_or3_b32 v15, v172, v173, v174", "v_or3_b32 v14, v175, v176, v177", "v_or_b32 v15, v14, v15", "v_cmp_ne_u32 vcc, 0, v15"]
        slow.extend(["L_x_slow:", "s_add_u32 s%d, s%d, 1" % (sCNT, sCNT), "s_cmp_gt_u32 s%d, %d" % (sCNT, SPIN), "s_cbranch_scc1 L_x_ok"]
                    + x_loads(0) + x_loads(1) + ["s_waitcnt vmcnt(0)"] + ins + ["s_nop 0", "s_cbranch_vccnz L_x_slow", "s_branch L_x_ok"])
        return ins

    lastw = {}
    for u in range(7):
        G = 50 * (u + 1) + 3
        for n in range(5):
            if w64:
                for h in range(2):
                    G = put(G, "ds", lambda u=u, n=n, h=h: red_write(u, n, h))
                    lastw[u] = G
                    G += 2
            else:
                G = put(G, "dsw", lambda u=u, n=n: red_write(u, n))
                lastw[u] = G
                G += 4
    G = 0
    for s in range(2):
        G = max(G, gxd[s])
        for t in x_loads(s):
            G = put(G, "vm", lambda t=t: E.vm("xd", t)) + 1
    prev_end = 0
    for s in range(3):
        def bar(s=s):
            E.wait(lg="pw%d" % (2 * s + 1))
            E("s_barrier")
        G = put(max(lastw[2 * s + 1] + 6, prev_end), "dsw", bar)
        for pi in range(2):
            for w in range(4):
                G = put(G + 1, "ds", lambda w=w, pi=pi, s=s: red_read(s, pi, w))
        G -= 0
        for pi in range(3):
            p = PART[pi & 1]
            G = put(G + (2 if pi == 0 else 0), "wait", lambda pi=pi, s=s: E.wait(lg="pr%d_%d" % (s, pi)))
            seq = ["v_add_f32 v%d, v%d, v%d" % (p + h, p + h, p + 4 + h) for h in range(4)]
            seq += ["v_add_f32 v%d, v%d, v%d" % (p + 8 + h, p + 8 + h, p + 12 + h) for h in range(4)]
            seq += ["v_add_f32 v%d, v%d, v%d" % (p + h, p + h, p + 8 + h) for h in range(4)]
            if s < 2:
                seq += ["v_mul_f32 v%d, v%d, v%d" % (p + 4 + h, GS[3 * s + pi], p + h) for h in range(4)]
                seq += ["v_perm_b32 v%d, v%d, v%d, s%d" % (p + 4 + h, p + 4 + h, vN, sSEL + h) for h in range(4)]
                st = "buffer_store_dwordx4 %s, v%d, %s, s%d offen offset:%d %s" % (vr(p + 4, 4), vXA[pi], srd(SWS), sXW + s, 1024 * pi, xflag2)
            else:
                sk = SKIP + 4 * pi
                seq += ["v_fmac_f32 v%d, v%d, v%d" % (sk + h, GO[pi], p + h) for h in range(4)]
                st = None
            for t in seq:
                G = put(G, "valu2" if s in v2 else "valu", lambda t=t: E(t))
            if st is not None:
                G = put(G, "vm", lambda st=st: E.vm("out", st))
            if pi == 0:
                G2 = G
                for w in range(4):
                    G2 = put(G2 + 1, "ds", lambda w=w, s=s: red_read(s, 2, w))
        prev_end = G
    for u in range(8):
        A = ACC2 + 20 * (u & 1)
        for k in range(10):
            if hwait(u, k):
                last = k if (k == 9 or hwait(u, k + 1)) else k + 1
                E.wait(vm=["h%d_%d" % (u, k), "h%d_%d" % (u, last)], lg=["cm%d" % j for j in range(5)])
            if k == 0:
                stamp("t%d" % u, 2)
            for n in range(5):
                G = 50 * u + 5 * k + n
                d = vr(A + 4 * n, 4)
                E("v_mfma_f32_16x16x32_bf16 %s, %s, %s, %s" % (d, cfrag(k >> 1, k & 1, n), vr(HBUF + 4 * (10 * (u & 1) + k), 4), d if k else "0"))
                for fn in side.pop(G, []):
                    fn()
    stamp("gemm2")
    left = [fn for G in sorted(side) for fn in side[G]]
    if len(left) < 4:
        E("s_nop 3")
    for n in range(5):
        for fn in left[:4]:
            fn()
        del left[:4]
        if n == 4 and not left:
            E("s_nop 3")
        red_write(7, n)
    for fn in left:
        fn()
    E.wait(vm="xd")
    for t in x_check():
        E(t)
    E("s_nop 0")
    E("s_cbranch_vccnz L_x_slow")
    E.label("L_x_ok")
    for pi in range(3):
        sk = SKIP + 4 * pi
        for h in range(2):
            E("v_pk_add_f32 %s, %s, %s" % (vr(sk + 2 * h, 2), vr(sk + 2 * h, 2), vr(XD[0] + 4 * pi + 2 * h, 2)))
        E.vm("out", "buffer_store_dwordx4 %s, v%d, %s, s%d offen %s" % (vr(sk, 4), vO[pi], srd(SOUT), sO, outflag))
    E.wait(lg="pw7")
    E("s_barrier")
    for pi in range(3):
        for w in range(4):
            red_read(3, pi, w)
    for pi in range(3):
        sk = SKIP + 12 + 4 * pi
        p = PART[pi]
        g = GO[3 + pi]
        for h in range(2):
            E("v_pk_add_f32 %s, %s, %s" % (vr(sk + 2 * h, 2), vr(sk + 2 * h, 2), vr(XD[1] + 4 * pi + 2 * h, 2)))
        E.wait(lg="pr3_%d" % pi)
        for h in range(2):
            E("v_pk_add_f32 %s, %s, %s" % (vr(p + 2 * h, 2), vr(p + 2 * h, 2), vr(p + 4 + 2 * h, 2)))
            E("v_pk_add_f32 %s, %s, %s" % (vr(p + 8 + 2 * h, 2), vr(p + 8 + 2 * h, 2), vr(p + 12 + 2 * h, 2)))
        for h in range(2):
            E("v_pk_add_f32 %s, %s, %s" % (vr(p + 2 * h, 2), vr(p + 2 * h, 2), vr(p + 8 + 2 * h, 2)))
        for h in range(2):
            E("v_pk_fma_f32 %s, %s, %s, %s %s" % (vr(sk + 2 * h, 2), vr(g, 2), vr(p + 2 * h, 2), vr(sk + 2 * h, 2), BC_LO))
        E.vm("out", "buffer_store_dwordx4 %s, v%d, %s, s%d offen %s" % (vr(sk, 4), vO[pi], srd(SOUT), sO + 1, lastflag))
    if stamps:
        stamp("fin")
        E.wait_all(vm=True)
        stamp("drain")
        E("s_memrealtime s[100:101]")
        E("s_waitcnt lgkmcnt(0)")
        E("s_mov_b32 s%d, s100" % (sSTAMP + 16))
        E("s_lshl_b32 s%d, s2, 2" % sT0)
        E("s_add_u32 s%d, s%d, s%d" % (sT0, sT0, sW))
        E("s_lshl_b32 s%d, s%d, 7" % (sT0, sT0))
        E("s_add_u32 s%d, s%d, %d" % (sT0, sT0, ST_OFF))
        E("v_mov_b32 v2, 0")
        for k in range(18):
            E("v_mov_b32 v3, s%d" % (sSTAMP + k))
            E("buffer_store_dword v3, v2, %s, s%d offen offset:%d sc1" % (srd(SWS), sT0, 4 * k))
        E("buffer_store_dword v253, v2, %s, s%d offen offset:72 sc1" % (srd(SWS), sT0))
        E("buffer_store_dword v254, v2, %s, s%d offen offset:76 sc1" % (srd(SWS), sT0))
        E("s_waitcnt vmcnt(0)")
    E.label("L_end")
    E("s_endpgm")
    for t in slow:
        E(t)
    E.label("L_last")
    body = E.text()
    if stamps:
        body = "; STAMPS " + " ".join(names) + "\n" + body
    probs = check_hazards(body)
    assert not probs, "hazards"
    return body


HEADER = open("gated_mix__ssm_conv_s5__ssm_conv_s5__prompt.s.ref").read()


def full_file(**kw):
    body = generate(**kw)
    head = HEADER[:HEADER.index("; Override launch geometry")]
    out = head
    out += "; Generated by a hand-written scheduler script (fused two-phase kernel, one workgroup per CU).\n"
    out += "; @launch grid=(256,1,1) block=(256,1,1) lds=163840\n"
    out += '.amdgcn_target "amdgcn-amd-amdhsa--gfx950"\n.text\n.globl %s\n.p2align 8\n.type %s,@function\n%s:\n' % (KNAME, KNAME, KNAME)
    out += body + "\ns_endpgm\n"
    out += """.section .rodata,"a"
.p2align 6
.amdhsa_kernel %s
  .amdhsa_next_free_vgpr 512
  .amdhsa_next_free_sgpr 102
  .amdhsa_accum_offset 256
  .amdhsa_group_segment_fixed_size 0
  .amdhsa_kernarg_size 176
  .amdhsa_user_sgpr_count 2
  .amdhsa_user_sgpr_kernarg_segment_ptr 1
  .amdhsa_system_sgpr_workgroup_id_x 1
  .amdhsa_float_denorm_mode_32 3
.end_amdhsa_kernel
""" % KNAME
    return out


if __name__ == "__main__":
    import ast
    kw = {}
    path = sys.argv[1]
    for a in sys.argv[2:]:
        k, v = a.split("=", 1)
        try:
            kw[k] = ast.literal_eval(v)
        except Exception:
            kw[k] = v
    open(path, "w").write(full_file(**kw))
    print("wrote", path)
```
